```python
import torch

def _softmax(x, axis=-1):
    return torch.softmax(x, dim=axis)

def _gelu(x):
    return torch.nn.functional.gelu(x, approximate='tanh')

def _silu(x):
    return torch.nn.functional.silu(x)

def _sigmoid(x):
    return torch.sigmoid(x)

def _layernorm(x, axis=-1, eps=1e-05):
    m = x.mean(dim=axis, keepdim=True)
    v = x.var(dim=axis, keepdim=True, unbiased=False)
    return (x - m) / torch.sqrt(v + eps)

def _scatter_add(tgt, idx, src, axis=0):
    return tgt.clone().index_add_(axis, idx, src)

def _segment_sum(src, seg, n):
    out = torch.zeros((n,) + src.shape[1:], dtype=src.dtype)
    return out.index_add_(0, seg, src)

def _pad(x, pw):
    flat = tuple((v for pair in reversed(pw) for v in pair))
    return torch.nn.functional.pad(x, flat)
kernel_name = 'adaLN_cond__gqa_block_cached__dense_activation_silu__decode'

def setup_inputs():

    _w = lambda a: (lambda t: t.to(torch.bfloat16) if t.is_floating_point() else t)(torch.as_tensor(a))

    def _A_setup():
        B, Sq, D = (1, 1, 640)
        Hq, Hkv, Sk, Dh = (32, 32, 16384, 192)
        assert Hq % Hkv == 0, (Hq, Hkv)
        return {'x': _w((lambda *s: torch.randn(*s, dtype=torch.bfloat16) * 0.1)(B, Sq, D)), 'k_cache': _w((lambda *s: torch.randn(*s, dtype=torch.bfloat16) * 0.8)(B, Hkv, Sk, Dh)), 'v_cache': _w((lambda *s: torch.randn(*s, dtype=torch.bfloat16) * 3.2)(B, Hkv, Sk, Dh)), 'wq': _w((lambda *s: torch.randn(*s, dtype=torch.bfloat16) * 0.8)(D, Hq * Dh) * D ** (-0.5)), 'wo': _w((lambda *s: torch.randn(*s, dtype=torch.bfloat16) * 3.2)(Hq * Dh, D) * (Hq * Dh) ** (-0.5))}
    _A_in = _A_setup()

    def _B_setup():
        B, S, D, F = (1, 1, 640, 1536)
        return {'x': _w((lambda *s: torch.randn(*s, dtype=torch.bfloat16) * 0.1)(B, S, D)), 'w1': _w((lambda *s: torch.randn(*s, dtype=torch.bfloat16) * 3.2)(D, F) * D ** (-0.5)), 'w2': _w((lambda *s: torch.randn(*s, dtype=torch.bfloat16) * 3.2)(F, D) * F ** (-0.5))}
    _B_in = _B_setup()
    return {'A_x': _A_in['x'], 'A_k_cache': _A_in['k_cache'], 'A_v_cache': _A_in['v_cache'], 'A_wq': _A_in['wq'], 'A_wo': _A_in['wo'], 'B_x': _B_in['x'], 'B_w1': _B_in['w1'], 'B_w2': _B_in['w2'], 'c': _w((lambda *s: torch.randn(*s, dtype=torch.bfloat16) * 0.2)(1, 640) * 8.0), 'w_mod': _w((lambda *s: torch.randn(*s, dtype=torch.bfloat16) * 0.2)(640, 6 * 640) * 640 ** (-0.5) * 8.0)}

def reference(A_x, A_k_cache, A_v_cache, A_wq, A_wo, B_x, B_w1, B_w2, c, w_mod):

    def _A_ref(x, k_cache, v_cache, wq, wo):
        B, Sq, D = x.shape
        Hq, Dh = (32, 192)
        Hkv = k_cache.shape[1]
        rep = Hq // Hkv
        q = (lambda x, *d: x.permute(*d))((x @ wq).reshape(B, Sq, Hq, Dh), 0, 2, 1, 3)
        k = (lambda x, n, axis: torch.repeat_interleave(x, n, dim=axis))(k_cache, rep, axis=1)
        v = (lambda x, n, axis: torch.repeat_interleave(x, n, dim=axis))(v_cache, rep, axis=1)
        scores = torch.einsum('bhqd,bhkd->bhqk', q, k) * Dh ** (-0.5)
        p = _softmax(scores, axis=-1)
        o = torch.einsum('bhqk,bhkd->bhqd', p, v)
        return (lambda x, *d: x.permute(*d))(o, 0, 2, 1, 3).reshape(B, Sq, Hq * Dh) @ wo

    def _B_ref(x, w1, w2):
        h = torch.einsum('bsd,df->bsf', x, w1)
        h = _silu(h)
        out = torch.einsum('bsf,fd->bsd', h, w2)
        return out
    x = A_x
    mod = (_silu(c) @ w_mod).reshape(c.shape[0], 6, 1, -1)
    sa, ca, ga, sb, cb, gb = (mod[:, 0].clone(), mod[:, 1].clone(), mod[:, 2].clone(), mod[:, 3].clone(), mod[:, 4].clone(), mod[:, 5].clone())
    h = _layernorm(x, axis=-1) * (1 + ca) + sa
    x = x + ga * _A_ref(h, A_k_cache, A_v_cache, A_wq, A_wo)
    h = _layernorm(x, axis=-1) * (1 + cb) + sb
    x = x + gb * _B_ref(h, B_w1, B_w2)
    return x
```

```python
import re, struct

def f2u(x):
    return struct.unpack('<I', struct.pack('<f', x))[0]

TRANS = ('v_exp_f32', 'v_log_f32', 'v_rcp_f32', 'v_rsq_f32', 'v_sqrt_f32', 'v_sin_f32', 'v_cos_f32', 'v_rcp_iflag_f32')
DPP_RE = re.compile(r'\b(quad_perm|row_shl|row_shr|row_ror|row_mirror|row_half_mirror|row_bcast|row_newbcast|wave_shl|wave_shr|wave_rol|wave_ror)\b')

def regs_of(tok):
    tok = tok.strip()
    tok = re.sub(r'^-|^\|', '', tok)
    tok = re.sub(r'^abs\((.*)\)$', r'\1', tok)
    tok = tok.rstrip('|')
    m = re.fullmatch(r'([vsa])(\d+)', tok)
    if m: return [(m.group(1), int(m.group(2)))]
    m = re.fullmatch(r'([vsa])\[(\d+):(\d+)\]', tok)
    if m: return [(m.group(1), i) for i in range(int(m.group(2)), int(m.group(3)) + 1)]
    if tok == 'vcc': return [('s', 'vcc_lo'), ('s', 'vcc_hi')]
    if tok in ('vcc_lo', 'vcc_hi'): return [('s', tok)]
    if tok == 'exec': return [('s', 'exec_lo'), ('s', 'exec_hi')]
    if tok == 'm0': return [('s', 'm0')]
    return []

class Ins:
    def __init__(self, text):
        self.text = text
        t = text.split(';')[0].strip()
        self.label = t.endswith(':')
        self.directive = t.startswith('.')
        self.empty = (t == '')
        self.op = ''
        self.w = set(); self.r = set()
        self.valu = self.trans = self.dpp = self.perm = self.rdlane = self.dot = self.vmem = self.ds = self.salu = False
        self.mfma = False
        self.widestore = False; self.sdata = set()
        if self.label or self.directive or self.empty: return
        parts = t.split(None, 1)
        self.op = op = parts[0]
        rest = parts[1] if len(parts) > 1 else ''
        ops = [o.strip() for o in re.split(r',(?![^\[]*\])', rest)] if rest else []
        if ops:
            last = ops[-1].split()
            ops[-1] = last[0] if last else ''
        self.ops = ops
        base = re.sub(r'_(e32|e64|dpp|sdwa)$', '', op)
        self.base = base
        if op.startswith('v_'):
            self.valu = True
            self.trans = base in TRANS
            self.dpp = bool(DPP_RE.search(t))
            self.perm = base.startswith('v_permlane')
            self.rdlane = base in ('v_readfirstlane_b32', 'v_readlane_b32')
            self.dot = base.startswith('v_dot')
            self.mfma = base.startswith('v_mfma')
            if base.startswith('v_cmp'):
                self.w |= set(regs_of(ops[0])); srcs = ops[1:]
            elif self.perm:
                self.w |= set(regs_of(ops[0])) | set(regs_of(ops[1])); srcs = ops
            elif base in ('v_add_co_u32', 'v_sub_co_u32', 'v_addc_co_u32', 'v_subb_co_u32'):
                self.w |= set(regs_of(ops[0])) | set(regs_of(ops[1])); srcs = ops[2:]
            else:
                self.w |= set(regs_of(ops[0])); srcs = ops[1:]
                if base in ('v_fmac_f32', 'v_dot2c_f32_bf16', 'v_pk_fmac_f16', 'v_writelane_b32') or self.dpp:
                    srcs = ops
            for s in srcs: self.r |= set(regs_of(s))
            if base == 'v_cndmask_b32' and len(ops) == 3: self.r |= set(regs_of('vcc'))
        elif op.startswith(('buffer_', 'global_', 'flat_')):
            self.vmem = True
            isst = 'store' in op
            isat = 'atomic' in op
            islds = (' lds' in t) or ('load_lds' in op)
            if op in ('buffer_inv', 'buffer_wbl2'):
                pass
            elif isst:
                for s in ops: self.r |= set(regs_of(s))
                d = ops[0] if op.startswith('buffer_') else ops[1]
                self.sdata = set(regs_of(d))
                self.widestore = ('x3' in op or 'x4' in op)
            elif isat:
                ret = ' sc0' in t
                if op.startswith('global_') and ret:
                    self.w |= set(regs_of(ops[0])); srcs = ops[1:]
                else:
                    srcs = ops
                    if op.startswith('buffer_') and ret: self.w |= set(regs_of(ops[0]))
                for s in srcs: self.r |= set(regs_of(s))
            elif islds:
                for s in ops: self.r |= set(regs_of(s))
                self.r.add(('s', 'm0'))
            else:
                self.w |= set(regs_of(ops[0]))
                for s in ops[1:]: self.r |= set(regs_of(s))
        elif op.startswith('ds_'):
            self.ds = True
            if 'read' in op or 'permute' in op or 'swizzle' in op or '_rtn' in op:
                self.w |= set(regs_of(ops[0]))
                for s in ops[1:]: self.r |= set(regs_of(s))
            else:
                for s in ops: self.r |= set(regs_of(s))
        elif op.startswith('s_'):
            self.salu = True
            if op in ('s_nop', 's_waitcnt', 's_barrier', 's_endpgm', 's_sleep', 's_setprio', 's_branch') or op.startswith('s_cbranch') or op.startswith('s_cmp') or op.startswith('s_bitcmp'):
                for s in ops: self.r |= set(regs_of(s))
            else:
                if ops: self.w |= set(regs_of(ops[0]))
                for s in ops[1:]: self.r |= set(regs_of(s))
    def states(self):
        if self.op == 's_nop': return int(self.ops[0], 0) + 1
        return 1

def need(prod, cons):
    n = 0
    pv = {r for r in prod.w if r[0] == 'v'}
    ps = {r for r in prod.w if r[0] == 's'}
    if prod.valu:
        if cons.valu and (cons.dpp or cons.perm) and (pv & cons.r): n = max(n, 2)
        if cons.rdlane and (pv & cons.r): n = max(n, 1)
        if prod.trans and cons.valu and not cons.trans and (pv & cons.r): n = max(n, 1)
        if prod.trans and (cons.vmem or cons.ds) and (pv & cons.r): n = max(n, 1)
        if ps and cons.valu and (ps & cons.r): n = max(n, 2)
        if ps and cons.vmem and (ps & cons.r): n = max(n, 5)
        if ps and cons.salu and (ps & cons.r): n = max(n, 1)
        if prod.dot:
            if cons.valu and cons.base == prod.base:
                ab = set()
                for s in cons.ops[1:3]: ab |= set(regs_of(s))
                if pv & ab: n = max(n, 3)
            elif (pv & (cons.r | cons.w)): n = max(n, 3)
        if cons.mfma and not prod.mfma and (pv & cons.r): n = max(n, 2)
        if prod.mfma:
            p = 8 if '32x32' in prod.base else 4
            samec = cons.mfma and cons.base == prod.base and set(regs_of(cons.ops[3])) == pv
            if cons.mfma:
                ab = set(regs_of(cons.ops[1])) | set(regs_of(cons.ops[2]))
                if pv & ab: n = max(n, 8 if p == 4 else 12)
                elif (pv & set(regs_of(cons.ops[3]))) and not samec: n = max(n, 6 if p == 4 else 10)
            elif pv & (cons.r | cons.w): n = max(n, 8 if p == 4 else 12)
    if prod.mfma and cons.valu and not cons.mfma:
        c = set(regs_of(prod.ops[3]))
        if c & cons.w: n = max(n, 3 if '16x16' in prod.base else 7)
    if prod.widestore and (cons.valu or cons.vmem or cons.ds) and (prod.sdata & cons.w): n = max(n, 2)
    if prod.salu and ('s', 'm0') in prod.w and cons.vmem and ('s', 'm0') in cons.r: n = max(n, 1)
    return n

def hazard_pass(lines):
    out = []
    window = []
    for text in lines:
        ins = Ins(text)
        if ins.label or ins.directive or ins.empty:
            out.append(text); continue
        dist = 0; req = 0
        for p in reversed(window):
            k = need(p, ins)
            if k > dist: req = max(req, k - dist)
            dist += p.states()
            if dist > 20: break
        if req > 0:
            nop = Ins(f's_nop {req-1}')
            out.append(f'    s_nop {req-1}'); window.append(nop)
        out.append(text if text.startswith(' ') else '    ' + text)
        window.append(ins)
        if ins.op in ('s_branch', 's_endpgm'): window = []
        if len(window) > 32: window = window[-32:]
    return out

class Asm:
    def __init__(self): self.L = []; self.uid = 0
    def __call__(self, s):
        for x in s.split('\n'):
            x = x.strip()
            if x: self.L.append(x)
    def label(self, n): self.L.append(n + ':')
    def newlabel(self, p='L'):
        self.uid += 1; return f'{p}_{self.uid}'
    def text(self): return '\n'.join(hazard_pass(self.L)) + '\n'
```

```python
import sys, math
from asmlib import Asm, f2u

KN = "adaLN_cond__gqa_block_cached__dense_activation_silu__decode_kernel"
HEADER = open('adaLN_cond__gqa_block_cached__dense_activation_silu__decode.s.ref').read().split('; Override')[0]

WS_EPOCH = 0
WS_CNT = 0x1000; CNT_STRIDE = 1152
WS_G1 = 0x10000
WS_GR = 0x24000
WS_G2 = 0x30000
WS_G3 = 0x100000
WS_G5 = WS_G3 + 0x40000
WS_G4 = WS_G5 + 48*2560
WS_ST = 0x200000
TAGC = 0x9E3779B9
NUNITS = 2048
HEADB = 16384*384
L_Q = 0
L_H = 512
L_ML = 1536
L_PART = 2048
L_WP = 16384
L_X2 = 20480
LDS_BYTES = 24576

def gen(P):
    a = Asm()
    NSW = 12
    NB = P.get('nb', 2)
    PW = P.get('pw', 6)
    STAMP = P.get('stamp', 0)
    SPIN = P.get('spin', 400000)
    NSTAT = 8*(NSW*(NB+2) + 4)
    LD = 'nt'

    vL, vOFF = 0, 1
    vT = list(range(2, 10))
    vQ = 10
    vM, vLS = 22, 23
    vACC = 24
    vAK, vAV = 48, 60
    vB = [72, 96]
    vU = 120
    vTK = 127

    def stamp(k, cond_wave=None, r=120):
        if not STAMP: return
        lab = a.newlabel('ST')
        if cond_wave is not None:
            a(f"s_cmp_lg_u32 s3, {cond_wave}\ns_cbranch_scc1 {lab}")
        a(f"""s_memrealtime s[76:77]
        s_lshl_b32 s78, s2, 8
        s_add_u32 s78, s78, {WS_ST + 8*k}
        s_waitcnt lgkmcnt(0)
        s_mov_b64 s[80:81], exec
        s_mov_b64 exec, 1
        v_mov_b32 v{r+2}, s78
        v_mov_b32 v{r}, s76
        v_mov_b32 v{r+1}, s77
        global_store_dwordx2 v{r+2}, v[{r}:{r+1}], s[40:41]
        s_mov_b64 exec, s[80:81]""")
        a.label(lab)

    def rbf(d, s):
        a(f"v_cvt_pk_bf16_f32 v{d}, v{s}, v{s}\nv_and_b32 v{d}, s7, v{d}")

    def dpp(op, d, s0, s1, ctl):
        a(f"{op}_dpp v{d}, v{s0}, v{s1} {ctl} row_mask:0xf bank_mask:0xf")

    def red8(op, x):
        dpp(op, x, x, x, "quad_perm:[1,0,3,2]"); dpp(op, x, x, x, "quad_perm:[2,3,0,1]"); dpp(op, x, x, x, "row_half_mirror")
    def red16(op, xs):
        for ctl in ("quad_perm:[1,0,3,2]", "quad_perm:[2,3,0,1]", "row_half_mirror", "row_mirror"):
            for x in xs: dpp(op, x, x, x, ctl)
    def red_hi(op, xs, ts, bits=(4, 5)):
        for b in bits:
            sw = 'v_permlane16_swap_b32' if b == 4 else 'v_permlane32_swap_b32'
            for x, t in zip(xs, ts): a(f"v_mov_b32 v{t}, v{x}")
            for x, t in zip(xs, ts): a(f"{sw} v{x}, v{t}")
            for x, t in zip(xs, ts): a(f"{op} v{x}, v{x}, v{t}")
    def rs_step(bit, pairs):
        sw = 'v_permlane16_swap_b32' if bit == 4 else 'v_permlane32_swap_b32'
        for x, y in pairs: a(f"{sw} v{x}, v{y}")
        for x, y in pairs: a(f"v_add_f32 v{x}, v{x}, v{y}")

    def spin_tail(lab_retry):
        done = a.newlabel('GD')
        a(f"""s_cbranch_vccz {done}
        s_add_u32 s67, s67, 1
        s_cmp_gt_u32 s67, {SPIN}
        s_cbranch_scc1 L_end
        s_sleep 1
        s_branch {lab_retry}""")
        a.label(done)

    def tile_dots(acc, tile, nrb, chi, clo):
        for rb in range(nrb):
            for d in range(4):
                a(f"v_dot2c_f32_bf16 v{acc+2*d}, v{tile+4*rb+d}, v{clo[rb]}")
                a(f"v_dot2c_f32_bf16 v{acc+2*d+1}, v{tile+4*rb+d}, v{chi[rb]}")
    def tile_reduce8(acc, sel):
        rs_step(5, [(acc+i, acc+4+i) for i in range(4)])
        rs_step(4, [(acc+i, acc+2+i) for i in range(2)])
        dpp('v_add_f32', acc, acc, acc, 'row_ror:8'); dpp('v_add_f32', acc+1, acc+1, acc+1, 'row_ror:8')
        a(f"v_cndmask_b32 v{acc}, v{acc}, v{acc+1}, {sel}")
    def tile_reduce4(acc):
        rs_step(5, [(acc+i, acc+4+i) for i in range(4)])
        rs_step(4, [(acc+i, acc+2+i) for i in range(2)])
        for ctl in ('row_ror:8', 'row_ror:4'):
            dpp('v_add_f32', acc, acc, acc, ctl); dpp('v_add_f32', acc+1, acc+1, acc+1, ctl)

    def loadK(r):
        for j in range(3): a(f"buffer_load_dwordx4 v[{r+4*j}:{r+4*j+3}], v{vOFF}, s[44:47], s62 offen offset:{128*j} {LD}")
    def loadV(r):
        for j in range(3): a(f"buffer_load_dwordx4 v[{r+4*j}:{r+4*j+3}], v{vOFF}, s[48:51], s62 offen offset:{128*j} {LD}")
    def ticket():
        a(f"""s_mov_b64 exec, 1
        global_atomic_add v{vTK}, v{vU+4}, v{vU+5}, s[60:61] sc0
        s_mov_b64 exec, -1""")
    def qk_dots(K):
        t0, t1, t2 = vT[0], vT[1], vT[2]
        a(f"v_mov_b32 v{t0}, 0\nv_mov_b32 v{t1}, 0\nv_mov_b32 v{t2}, 0")
        for r in range(4):
            for j in range(3):
                a(f"v_dot2c_f32_bf16 v{vT[j]}, v{K+4*j+r}, v{vQ+4*j+r}")
    def softmax():
        t0, t1, t2, t3, p, al = vT[0], vT[1], vT[2], vT[3], vT[4], vT[6]
        a(f"v_add_f32 v{t0}, v{t0}, v{t1}\nv_add_f32 v{t0}, v{t0}, v{t2}")
        red8('v_add_f32', t0)
        rbf(t0, t0)
        a(f"v_mul_f32 v{t0}, s43, v{t0}")
        rbf(t0, t0)
        a(f"""v_max_f32 v{t1}, v{vM}, v{t0}
        v_sub_f32 v{t2}, v{vM}, v{t1}
        v_sub_f32 v{t3}, v{t0}, v{t1}
        v_mul_f32 v{t2}, s42, v{t2}
        v_mul_f32 v{t3}, s42, v{t3}
        v_exp_f32 v{al}, v{t2}
        v_exp_f32 v{p}, v{t3}
        v_mov_b32 v{vM}, v{t1}
        v_fma_f32 v{vLS}, v{vLS}, v{al}, v{p}""")
        for i in range(12):
            r = vACC + 2*i
            a(f"v_pk_mul_f32 v[{r}:{r+1}], v[{r}:{r+1}], v[{al}:{al+1}] op_sel_hi:[1,0]")
    def pv(V):
        p = vT[4]
        for i in range(12):
            t = vU + 2*(i & 1)
            r = vACC + 2*i
            a(f"""v_lshlrev_b32 v{t}, 16, v{V+i}
            v_and_b32 v{t+1}, s7, v{V+i}
            v_pk_fma_f32 v[{r}:{r+1}], v[{t}:{t+1}], v[{p}:{p+1}], v[{r}:{r+1}] op_sel_hi:[1,0,1]""")

    a(f"""s_cmp_ge_u32 s2, 256
    s_cbranch_scc1 L_end
    s_load_dwordx16 s[16:31], s[0:1], 0
    s_load_dwordx8 s[32:39], s[0:1], 64
    s_load_dwordx2 s[40:41], s[0:1], 96
    v_lshrrev_b32 v1, 6, v0
    v_readfirstlane_b32 s3, v1
    v_and_b32 v0, 63, v0
    s_lshr_b32 s4, s2, 3
    s_and_b32 s5, s2, 7
    s_mov_b32 s7, 0xffff0000
    s_mov_b32 s42, {hex(f2u(math.log2(math.e)))}
    s_mov_b32 s43, {hex(f2u(192 ** -0.5))}
    s_mov_b32 s67, 0
    v_lshrrev_b32 v2, 3, v0
    v_and_b32 v3, 7, v0
    v_mul_u32_u24 v1, 384, v2
    v_lshl_add_u32 v1, v3, 4, v1
    s_mul_i32 s8, s4, {HEADB}
    s_mov_b32 s46, {HEADB}
    s_mov_b32 s47, 0x20000
    s_mov_b32 s50, {HEADB}
    s_mov_b32 s51, 0x20000
    s_mov_b32 s55, 0x20000
    s_mov_b32 s59, 0x20000
    s_mul_i32 s9, s4, {CNT_STRIDE}
    s_add_u32 s9, s9, {WS_CNT}
    s_waitcnt lgkmcnt(0)
    s_add_u32 s44, s18, s8
    s_addc_u32 s45, s19, 0
    s_add_u32 s48, s20, s8
    s_addc_u32 s49, s21, 0
    s_add_u32 s60, s40, s9
    s_addc_u32 s61, s41, 0
    s_cmp_lt_u32 s3, 4
    s_cbranch_scc1 L_chain""")
    a(f"""s_mul_i32 s8, s5, {NSW}
    s_add_u32 s8, s8, s3
    s_sub_u32 s8, s8, 4
    s_mul_i32 s62, s8, 3072""")
    stamp(0, 4)
    groups = []
    bufs = [(vAK, vAV)] + [(vB[i], vB[i]+12) for i in range(NB)]
    issued = 0
    for bi, (kr, vr) in enumerate(bufs):
        for which in (0, 1):
            if issued >= PW:
                a(f"s_waitcnt vmcnt({PW-3})")
            (loadK if which == 0 else loadV)(kr if which == 0 else vr)
            issued += 3
        a(f"s_add_u32 s62, s62, {96*3072}")
    stamp(1, 4)
    a("s_barrier")
    a("s_branch L_qready")

    a.label("L_chain")
    a(f"""s_setprio 2
    s_load_dword s6, s[40:41], {WS_EPOCH}
    s_mov_b32 s12, 0xff00ff00\ns_mov_b32 s13, 0xff00ff00
    s_cmp_eq_u32 s3, 3
    s_cbranch_scc1 L_xwave""")
    TILE = 48
    a(f"""s_mul_i32 s8, s5, {80*12288}
    s_mul_i32 s9, s4, 384
    s_add_u32 s8, s8, s9
    s_lshl_b32 s9, s3, 7
    s_add_u32 s8, s8, s9
    s_add_u32 s52, s22, s8
    s_addc_u32 s53, s23, 0
    s_mov_b32 s54, {80*12288}
    v_mul_u32_u24 v4, 12288, v2
    v_lshl_add_u32 v4, v3, 4, v4
    v_lshlrev_b32 v5, 2, v0
    s_mov_b32 s10, 0""")
    for t in range(5): a(f"global_load_dword v{24+t}, v5, s[16:17] offset:{256*t}")
    a(f"""v_bfe_u32 v6, v0, 4, 1
    v_lshl_add_u32 v6, v3, 1, v6
    s_mul_i32 s8, s5, 80
    v_add_u32 v7, s8, v6
    v_lshlrev_b32 v7, 1, v7""")
    for t in range(5): a(f"global_load_ushort v{30+t}, v7, s[16:17] offset:{32*t}")
    for rb in range(10):
        a(f"buffer_load_dwordx4 v[{TILE+4*rb}:{TILE+4*rb+3}], v4, s[52:55], s10 offen {LD}")
        if rb < 9: a(f"s_add_u32 s10, s10, {8*12288}")
    a(f"""v_mul_u32_u24 v8, 10240, v2
    v_lshl_add_u32 v8, v3, 4, v8
    s_mul_i32 s8, s5, 640
    s_add_u32 s8, s8, {WS_G1}
    v_add_u32 v8, s8, v8
    v_add_u32 v9, 5120, v8
    s_waitcnt vmcnt(10)""")
    for t in range(5):
        a(f"v_lshlrev_b32 v{36+2*t}, 16, v{24+t}\nv_and_b32 v{37+2*t}, s7, v{24+t}")
    a("v_add_f32 v24, v36, v37")
    for i in range(2, 10): a(f"v_add_f32 v24, v24, v{36+i}")
    red16('v_add_f32', [24]); red_hi('v_add_f32', [24], [25])
    a(f"v_mul_f32 v24, {hex(f2u(1/640))}, v24")
    a("v_mov_b32 v26, 0")
    for i in range(10): a(f"v_sub_f32 v{36+i}, v{36+i}, v24\nv_fmac_f32 v26, v{36+i}, v{36+i}")
    red16('v_add_f32', [26]); red_hi('v_add_f32', [26], [25])
    a(f"v_mul_f32 v26, {hex(f2u(1/640))}, v26")
    rbf(24, 24); rbf(26, 26)
    a(f"v_add_f32 v26, {hex(f2u(1e-5))}, v26")
    rbf(26, 26)
    a("v_sqrt_f32 v26, v26")
    rbf(26, 26)
    a("v_rcp_f32 v26, v26")
    for t in range(5):
        a(f"v_lshlrev_b32 v{30+t}, 16, v{30+t}\nv_sub_f32 v{30+t}, v{30+t}, v24")
        rbf(30+t, 30+t)
        a(f"v_mul_f32 v{30+t}, v{30+t}, v26")
        rbf(30+t, 30+t)
    a(f"s_waitcnt lgkmcnt(0)\ns_add_u32 s6, s6, {hex(TAGC)}")
    stamp(2, 0, 44)
    GG = 88
    lab = a.newlabel('G1'); a.label(lab)
    for t in range(10):
        part, tt = divmod(t, 5)
        a(f"global_load_dwordx4 v[{GG+4*t}:{GG+4*t+3}], v{8+part}, s[40:41] offset:{128*tt} sc1")
    a("s_waitcnt vmcnt(0)\nv_mov_b32 v24, 0")
    for t in range(10):
        a(f"v_bitop3_b32 v24, v24, v{GG+4*t+1}, s6 bitop3:0xf6\nv_bitop3_b32 v24, v24, v{GG+4*t+3}, s6 bitop3:0xf6")
    a("v_cmp_ne_u32 vcc, 0, v24")
    spin_tail(lab)
    stamp(3, 0, 44)
    rs_step(5, [(GG+4*t+e, GG+4*(t+5)+e) for t in range(5) for e in (0, 2)])
    rs_step(4, [(GG+4*t, GG+4*t+2) for t in range(5)])
    for t in range(5): dpp('v_add_f32', GG+4*t, GG+4*t, GG+4*t, 'row_ror:8')
    for t in range(5): a(f"v_mov_b32 v{GG+4*t+1}, v{GG+4*t}")
    for t in range(5): a(f"v_permlane32_swap_b32 v{GG+4*t}, v{GG+4*t+1}")
    for t in range(5):
        sa, ca = GG+4*t, GG+4*t+1
        rbf(sa, sa); rbf(ca, ca)
        a(f"v_add_f32 v{ca}, 1.0, v{ca}"); rbf(ca, ca)
        a(f"v_mul_f32 v{ca}, v{30+t}, v{ca}"); rbf(ca, ca)
        a(f"v_add_f32 v{ca}, v{ca}, v{sa}"); rbf(ca, ca)
    a(f"""s_mul_i32 s8, s3, 320
    s_add_u32 s8, s8, {L_H}
    v_lshl_add_u32 v6, v6, 2, s8
    v_lshl_add_u32 v7, v2, 2, s8""")
    for t in range(5): a(f"ds_write_b32 v6, v{GG+4*t+1} offset:{64*t}")
    a("s_waitcnt lgkmcnt(0)")
    for rb in range(10): a(f"ds_read_b32 v{24+rb}, v7 offset:{32*rb}")
    for i in range(8): a(f"v_mov_b32 v{GG+i}, 0")
    a("s_waitcnt lgkmcnt(0)")
    for rb in range(10): a(f"v_lshrrev_b32 v{34+rb}, 16, v{24+rb}")
    tile_dots(GG, TILE, 10, [24+rb for rb in range(10)], [34+rb for rb in range(10)])
    tile_reduce8(GG, 's[12:13]')
    a(f"""s_mul_i32 s8, s2, 1536
    s_lshl_b32 s9, s3, 9
    s_add_u32 s8, s8, s9
    s_add_u32 s8, s8, {WS_G2}
    v_lshl_add_u32 v4, v3, 3, v2
    v_lshl_add_u32 v4, v4, 3, s8
    v_mov_b32 v{GG+1}, s6
    global_store_dwordx2 v4, v[{GG}:{GG+1}], s[40:41] sc1""")
    stamp(4, 0, 44)
    a(f"""s_mul_i32 s8, s4, {8*1536}
    s_add_u32 s8, s8, s9
    s_add_u32 s8, s8, {WS_G2}
    v_lshl_add_u32 v4, v0, 3, s8
    v_add_u32 v5, {3*1536}, v4
    v_add_u32 v6, {6*1536}, v4""")
    lab = a.newlabel('G2'); a.label(lab)
    for sp in range(8):
        a(f"global_load_dwordx2 v[{24+2*sp}:{25+2*sp}], v{4+sp//3}, s[40:41] offset:{1536*(sp%3)} sc1")
    a("s_waitcnt vmcnt(0)\nv_mov_b32 v7, 0")
    for sp in range(8): a(f"v_bitop3_b32 v7, v7, v{25+2*sp}, s6 bitop3:0xf6")
    a("v_cmp_ne_u32 vcc, 0, v7")
    spin_tail(lab)
    for sp in range(1, 8): a(f"v_add_f32 v24, v24, v{24+2*sp}")
    a(f"""v_cvt_pk_bf16_f32 v24, v24, v24
    s_lshl_b32 s8, s3, 7
    v_lshl_add_u32 v4, v0, 1, s8
    ds_write_b16 v4, v24 offset:{L_Q}
    s_waitcnt lgkmcnt(0)""")
    stamp(5, 0, 44)
    a("s_barrier")
    a("s_branch L_chainjoin")

    def mod_tile_loads():
        for rb in range(10): a(f"global_load_ushort v{24+rb}, v7, s[32:33] offset:{16*rb}")
        for rb in range(10):
            a(f"buffer_load_dwordx4 v[{TILE+4*rb}:{TILE+4*rb+3}], v4, s[52:55], s10 offen {LD}")
            a(f"s_add_u32 s10, s10, {8*7680}")
    def silu_coefs():
        for rb in range(10):
            x, t = 24+rb, 34+rb
            a(f"""v_lshlrev_b32 v{x}, 16, v{x}
            v_mul_f32 v{t}, s42, v{x}
            v_exp_f32 v{t}, -v{t}
            v_add_f32 v{t}, 1.0, v{t}
            v_rcp_f32 v{t}, v{t}
            v_mul_f32 v{x}, v{x}, v{t}""")
            rbf(x, x)
            a(f"v_lshrrev_b32 v{t}, 16, v{x}")
    a.label("L_xwave")
    a(f"""v_mul_u32_u24 v4, 7680, v2
    v_lshl_add_u32 v4, v3, 4, v4
    s_mov_b32 s54, {640*7680}
    s_cmp_ge_u32 s5, 5
    s_cbranch_scc1 L_xskip
    s_mul_i32 s8, s4, 5
    s_add_u32 s8, s8, s5
    s_lshr_b32 s9, s8, 3
    s_and_b32 s11, s8, 7
    s_lshl_b32 s14, s9, 7
    s_add_u32 s52, s34, s14
    s_addc_u32 s53, s35, 0
    s_sub_u32 s54, s54, s14
    s_mul_i32 s10, s11, {80*7680}
    s_mul_i32 s14, s11, 160
    v_lshl_add_u32 v7, v2, 1, s14""")
    mod_tile_loads()
    a(f"""s_mul_i32 s14, s8, 3072
    s_add_u32 s14, s14, {WS_G3}
    v_lshl_add_u32 v5, v0, 4, s14
    v_mov_b32 v88, -1
    v_mov_b32 v89, -1
    v_mov_b32 v90, -1
    v_mov_b32 v91, -1
    global_store_dwordx4 v5, v[88:91], s[40:41] sc1
    global_store_dwordx4 v5, v[88:91], s[40:41] offset:1024 sc1
    global_store_dwordx4 v5, v[88:91], s[40:41] offset:2048 sc1
    s_cmp_lg_u32 s5, 0
    s_cbranch_scc1 L_xnocnt
    v_mov_b32 v6, 0
    s_mov_b64 exec, 1
    global_store_dword v6, v6, s[60:61] sc1
    s_mov_b64 exec, -1""")
    a.label("L_xnocnt")
    a("s_waitcnt vmcnt(13)")
    silu_coefs()
    for i in range(8): a(f"v_mov_b32 v{GG+i}, 0")
    a("s_waitcnt vmcnt(0) lgkmcnt(0)")
    a(f"s_add_u32 s6, s6, {hex(TAGC)}")
    tile_dots(GG, TILE, 10, [24+rb for rb in range(10)], [34+rb for rb in range(10)])
    tile_reduce8(GG, 's[12:13]')
    a(f"""s_mul_i32 s14, s11, 10240
    s_lshl_b32 s9, s9, 9
    s_add_u32 s14, s14, s9
    s_add_u32 s14, s14, {WS_G1}
    v_lshl_add_u32 v5, v3, 3, v2
    v_lshl_add_u32 v5, v5, 3, s14
    v_mov_b32 v{GG+1}, s6
    global_store_dwordx2 v5, v[{GG}:{GG+1}], s[40:41] sc1""")
    stamp(6, 3, 44)
    a("s_barrier\ns_branch L_chainjoin")
    a.label("L_xskip")
    a(f"s_waitcnt lgkmcnt(0)\ns_add_u32 s6, s6, {hex(TAGC)}")
    a("s_barrier")
    a(f"""s_mov_b32 s9, s4
    s_cmp_eq_u32 s5, 7
    s_cbranch_scc1 L_xrest
    s_add_u32 s9, s4, 8
    s_cmp_lg_u32 s5, 6
    s_cbranch_scc1 L_chainjoin
    s_cmp_lt_u32 s4, 24
    s_cbranch_scc1 L_chainjoin""")
    a.label("L_xrest")
    a(f"""s_lshl_b32 s14, s9, 7
    s_add_u32 s14, s14, 2560
    s_add_u32 s52, s34, s14
    s_addc_u32 s53, s35, 0
    s_sub_u32 s54, s54, s14
    s_mov_b32 s10, 0
    s_mov_b32 s11, 0
    v_lshlrev_b32 v7, 1, v2""")
    for i in range(8): a(f"v_mov_b32 v{GG+i}, 0")
    a.label("L_xrloop")
    mod_tile_loads()
    a("s_waitcnt vmcnt(10)")
    silu_coefs()
    a("s_waitcnt vmcnt(0)")
    tile_dots(GG, TILE, 10, [24+rb for rb in range(10)], [34+rb for rb in range(10)])
    a(f"""v_add_u32 v7, 160, v7
    s_add_u32 s11, s11, 1
    s_cmp_lt_u32 s11, 8
    s_cbranch_scc1 L_xrloop""")
    tile_reduce8(GG, 's[12:13]')
    a(f"""s_lshl_b32 s9, s9, 9
    s_add_u32 s9, s9, {WS_GR}
    v_lshl_add_u32 v5, v3, 3, v2
    v_lshl_add_u32 v5, v5, 3, s9
    v_mov_b32 v{GG+1}, s6
    global_store_dwordx2 v5, v[{GG}:{GG+1}], s[40:41] sc1""")
    stamp(7, 3, 44)

    def read_q_init():
        a(f"""v_lshlrev_b32 v4, 4, v3
        ds_read_b128 v[{vQ}:{vQ+3}], v4 offset:{L_Q}
        ds_read_b128 v[{vQ+4}:{vQ+7}], v4 offset:{L_Q+128}
        ds_read_b128 v[{vQ+8}:{vQ+11}], v4 offset:{L_Q+256}
        v_mov_b32 v{vM}, 0xff7fffff
        v_mov_b32 v{vLS}, 0
        v_mov_b32 v{vU+4}, 0
        v_mov_b32 v{vU+5}, 1""")
        for i in range(24): a(f"v_mov_b32 v{vACC+i}, 0")
        a("s_waitcnt lgkmcnt(0)")

    a.label("L_chainjoin")
    a(f"""s_setprio 0
    s_lshl_b32 s8, s5, 2
    s_add_u32 s8, s8, s3
    s_add_u32 s8, s8, {8*NSW*(NB+2)}
    s_mul_i32 s62, s8, 3072
    v_and_b32 v3, 7, v0""")
    read_q_init()
    ticket(); loadK(vAK); loadV(vAV)
    a("s_branch L_loop")

    a.label("L_qready")
    read_q_init()
    stamp(8, 4)
    nrest = 6*NB
    a(f"s_waitcnt vmcnt({3+nrest})")
    qk_dots(vAK)
    ticket(); loadK(vAK)
    softmax()
    a(f"s_waitcnt vmcnt({nrest+4})")
    pv(vAV)
    loadV(vAV)
    for bi in range(NB):
        left = 6*(NB-bi-1)
        a(f"s_waitcnt vmcnt({3+left+7})")
        qk_dots(vB[bi]); softmax()
        a(f"s_waitcnt vmcnt({left+7})")
        pv(vB[bi]+12)
    stamp(9, 4)
    a.label("L_loop")
    a("s_waitcnt vmcnt(3)")
    a(f"v_readfirstlane_b32 s8, v{vTK}")
    qk_dots(vAK)
    a(f"""s_add_u32 s8, s8, {NSTAT}
    s_cmp_ge_u32 s8, {NUNITS}
    s_cbranch_scc1 L_drain
    s_mul_i32 s62, s8, 3072""")
    ticket(); loadK(vAK)
    softmax()
    a("s_waitcnt vmcnt(4)")
    pv(vAV)
    loadV(vAV)
    a("s_branch L_loop")

    a.label("L_drain")
    stamp(10, 4)
    softmax()
    a(f"""v_lshrrev_b32 v2, 3, v0
    v_and_b32 v3, 7, v0
    s_cmp_ge_u32 s5, 5
    s_cbranch_scc1 L_pf_notw""")
    WO = 72
    a(f"""s_mul_i32 s64, s4, 5
    s_add_u32 s64, s64, s5
    s_mul_i32 s65, s64, 205
    s_lshr_b32 s65, s65, 12
    s_mul_i32 s8, s65, 20
    s_sub_u32 s64, s64, s8
    s_mul_i32 s8, s65, 16
    s_add_u32 s8, s8, s3
    s_mul_i32 s8, s8, {48*1280}
    s_lshl_b32 s9, s64, 6
    s_add_u32 s8, s8, s9
    s_add_u32 s70, s24, s8
    s_addc_u32 s71, s25, 0
    v_lshrrev_b32 v96, 2, v0
    v_mul_u32_u24 v96, 1280, v96
    v_and_b32 v97, 3, v0
    v_lshl_add_u32 v96, v97, 4, v96
    v_add_u32 v97, {16*1280}, v96
    v_add_u32 v98, {32*1280}, v96
    global_load_dwordx4 v[{WO}:{WO+3}], v96, s[70:71] {LD}
    global_load_dwordx4 v[{WO+4}:{WO+7}], v97, s[70:71] {LD}
    global_load_dwordx4 v[{WO+8}:{WO+11}], v98, s[70:71] {LD}
    s_waitcnt vmcnt(3)
    s_branch L_pf_done""")
    a.label("L_pf_notw")
    W1, W2 = 72, 88
    a(f"""s_mov_b32 s66, s4
    s_cmp_eq_u32 s5, 5
    s_cbranch_scc1 L_pf_m
    s_add_u32 s66, s4, 32
    s_cmp_lg_u32 s5, 6
    s_cselect_b32 s66, -1, s66
    s_cmp_ge_u32 s4, 16
    s_cselect_b32 s66, -1, s66
    s_cmp_eq_u32 s66, -1
    s_cbranch_scc1 L_pf_none""")
    a.label("L_pf_m")
    a(f"""s_cmp_ge_u32 s3, 10
    s_cbranch_scc1 L_pf_none
    s_mul_i32 s8, s3, {64*3072}
    s_lshl_b32 s9, s66, 6
    s_add_u32 s8, s8, s9
    s_add_u32 s70, s28, s8
    s_addc_u32 s71, s29, 0
    s_mul_i32 s8, s66, {32*1280}
    s_lshl_b32 s9, s3, 7
    s_add_u32 s8, s8, s9
    s_add_u32 s72, s30, s8
    s_addc_u32 s73, s31, 0
    v_lshrrev_b32 v104, 2, v0
    v_mul_u32_u24 v104, 3072, v104
    v_and_b32 v105, 3, v0
    v_lshl_add_u32 v104, v105, 4, v104
    v_mul_u32_u24 v105, 1280, v2
    v_lshl_add_u32 v105, v3, 4, v105""")
    for t in range(4):
        a(f"global_load_dwordx4 v[{W1+4*t}:{W1+4*t+3}], v104, s[70:71] {LD}")
        if t < 3: a(f"v_add_u32 v104, {16*3072}, v104")
    for t in range(4):
        a(f"global_load_dwordx4 v[{W2+4*t}:{W2+4*t+3}], v105, s[72:73] {LD}")
        if t < 3: a(f"v_add_u32 v105, {8*1280}, v105")
    a("s_waitcnt vmcnt(8)\ns_branch L_pf_done")
    a.label("L_pf_none")
    a("s_waitcnt vmcnt(0)")
    a.label("L_pf_done")
    pv(vAV)
    stamp(11, 4)
    t0, t1, t2, t3 = 4, 5, 6, 7
    dpp('v_max_f32', t0, vM, vM, 'row_ror:8')
    red_hi('v_max_f32', [t0], [t1])
    a(f"""v_sub_f32 v{t2}, v{vM}, v{t0}
    v_mul_f32 v{t2}, s42, v{t2}
    v_exp_f32 v{t2}, v{t2}
    v_mul_u32_u24 v48, 3, v2""")
    a(f"v_mul_f32 v{t1}, v{vLS}, v{t2}")
    for i in range(12):
        r = vACC + 2*i
        a(f"v_pk_mul_f32 v[{r}:{r+1}], v[{r}:{r+1}], v[{t2}:{t2+1}] op_sel_hi:[1,0]")
    dpp('v_add_f32', t1, t1, t1, 'row_ror:8')
    red_hi('v_add_f32', [t1], [8])
    rs_step(5, [(vACC+i, vACC+12+i) for i in range(12)])
    rs_step(4, [(vACC+i, vACC+6+i) for i in range(6)])
    for i in range(6): dpp('v_add_f32', vACC+i, vACC+i, vACC+i, 'row_ror:8')
    a("s_mov_b32 s12, 0xff00ff00\ns_mov_b32 s13, 0xff00ff00")
    for i in range(3): a(f"v_cndmask_b32 v{vACC+i}, v{vACC+i}, v{vACC+3+i}, s[12:13]")
    a(f"s_mul_i32 s8, s3, 768\ns_add_u32 s8, s8, {L_PART}\nv_lshl_add_u32 v49, v3, 5, s8")
    for i in range(3):
        a(f"""v_add_u32 v50, {i}, v48
        v_lshrrev_b32 v51, 3, v50
        v_and_b32 v50, 7, v50
        v_lshl_add_u32 v51, v51, 8, v49
        v_lshl_add_u32 v51, v50, 2, v51
        ds_write_b32 v51, v{vACC+i}""")
    a(f"""s_lshl_b32 s8, s3, 3
    v_mov_b32 v50, s8
    ds_write_b64 v50, v[{t0}:{t1}] offset:{L_ML}
    s_waitcnt lgkmcnt(0)
    s_barrier
    s_cmp_ge_u32 s3, 3
    s_cbranch_scc1 L_pdone""")
    a(f"""s_lshl_b32 s8, s3, 8
    v_lshl_add_u32 v4, v0, 2, s8
    v_and_b32 v5, 15, v0
    v_lshlrev_b32 v5, 3, v5
    ds_read_b64 v[6:7], v5 offset:{L_ML}
    v_add_u32 v5, {L_PART}, v4""")
    for k in range(8): a(f"ds_read2st64_b32 v[{24+2*k}:{25+2*k}], v5 offset0:{6*k} offset1:{6*k+3}")
    a("s_waitcnt lgkmcnt(8)\nv_mov_b32 v8, v6")
    red16('v_max_f32', [8])
    a(f"""v_sub_f32 v6, v6, v8
    v_mul_f32 v6, s42, v6
    v_exp_f32 v6, v6
    v_mov_b32 v40, 0
    v_mov_b32 v41, 0
    v_mul_f32 v9, v7, v6
    s_waitcnt lgkmcnt(0)""")
    for k in range(16): a(f"v_fmac_f32_dpp v{40+(k&1)}, v6, v{24+k} row_newbcast:{k} row_mask:0xf bank_mask:0xf")
    a(f"""v_add_f32 v40, v40, v41
    s_lshl_b32 s8, s2, 10
    s_add_u32 s8, s8, {WS_G3}
    v_min_u32 v40, -2, v40
    v_add_u32 v4, s8, v4
    global_store_dword v4, v40, s[40:41] sc1
    s_cmp_lg_u32 s3, 0
    s_cbranch_scc1 L_pdone""")
    red16('v_add_f32', [9])
    a(f"""v_min_u32 v8, -2, v8
    v_min_u32 v9, -2, v9
    s_mov_b64 exec, 1
    global_store_dwordx2 v4, v[8:9], s[40:41] offset:768 sc1
    s_mov_b64 exec, -1""")
    a.label("L_pdone")
    stamp(12, 0)
    a(f"""s_cmp_ge_u32 s5, 5
    s_cbranch_scc1 L_notw""")
    a(f"""s_lshl_b32 s8, s65, 2
    s_lshr_b32 s9, s3, 2
    s_add_u32 s8, s8, s9
    s_lshl_b32 s8, s8, 13
    s_add_u32 s8, s8, {WS_G3}
    s_and_b32 s9, s3, 3
    s_mul_i32 s9, s9, 192
    s_add_u32 s9, s9, s8
    v_lshrrev_b32 v4, 4, v0
    v_and_b32 v5, 15, v0
    v_lshlrev_b32 v4, 11, v4
    v_lshl_add_u32 v4, v5, 2, v4
    v_add_u32 v4, s9, v4
    v_lshl_add_u32 v5, v3, 10, s8
    v_lshrrev_b32 v9, 2, v0
    v_lshlrev_b32 v9, 2, v9""")
    lab = a.newlabel('G3'); a.label(lab)
    a("global_load_dwordx2 v[6:7], v5, s[40:41] offset:768 sc1")
    for t in range(3):
        for b in range(2):
            a(f"global_load_dword v{24+2*t+b}, v4, s[40:41] offset:{1024*b+64*t} sc1")
    a("""s_waitcnt vmcnt(0)
    v_max3_u32 v8, v6, v7, v24
    v_max3_u32 v8, v8, v25, v26
    v_max3_u32 v8, v8, v27, v28
    v_max_u32 v8, v8, v29
    v_cmp_eq_u32 vcc, -1, v8""")
    spin_tail(lab)
    stamp(13, 0)
    a("v_mov_b32 v8, v6")
    red8('v_max_f32', 8)
    a(f"""v_sub_f32 v6, v6, v8
    v_mul_f32 v6, s42, v6
    v_exp_f32 v6, v6
    v_mul_f32 v7, v7, v6""")
    red8('v_add_f32', 7)
    a("v_rcp_f32 v7, v7\nv_mul_f32 v6, v6, v7")
    for r in range(4):
        a(f"v_mov_b32_dpp v30, v6 row_newbcast:{2*r} row_mask:{hex(1<<r)} bank_mask:0xf")
        a(f"v_mov_b32_dpp v31, v6 row_newbcast:{2*r+1} row_mask:{hex(1<<r)} bank_mask:0xf")
    for t in range(3): a(f"v_mul_f32 v{24+2*t}, v{24+2*t}, v30")
    for t in range(3): a(f"v_fmac_f32 v{24+2*t}, v{25+2*t}, v31")
    a("v_mov_b32 v27, v26")
    rs_step(5, [(24, 28), (26, 27)])
    rs_step(4, [(24, 26)])
    rbf(24, 24)
    for t in range(3): a(f"ds_bpermute_b32 v{32+t}, v9, v24 offset:{64*t}")
    for i in range(8): a(f"v_mov_b32 v{40+i}, 0")
    a("s_waitcnt lgkmcnt(0)")
    for t in range(3): a(f"v_lshrrev_b32 v{36+t}, 16, v{32+t}")
    tile_dots(40, WO, 3, [32, 33, 34], [36, 37, 38])
    tile_reduce4(40)
    a(f"""v_and_b32 v4, 3, v0
    v_lshrrev_b32 v5, 4, v0
    v_lshlrev_b32 v5, 3, v5
    v_lshl_add_u32 v4, v4, 5, v5
    s_lshl_b32 s8, s3, 7
    v_add_u32 v4, s8, v4
    ds_write_b64 v4, v[40:41] offset:{L_WP}
    s_waitcnt lgkmcnt(0)
    s_barrier
    s_cmp_lg_u32 s3, 0
    s_cbranch_scc1 L_end
    v_and_b32 v4, 31, v0
    v_lshrrev_b32 v5, 5, v0
    v_lshlrev_b32 v5, 10, v5
    v_lshl_add_u32 v5, v4, 2, v5
    v_add_u32 v5, {L_WP}, v5""")
    for k in range(4): a(f"ds_read2_b32 v[{24+2*k}:{25+2*k}], v5 offset0:{64*k} offset1:{64*k+32}")
    a(f"""s_mul_i32 s8, s65, 2560
    s_lshl_b32 s9, s64, 7
    s_add_u32 s8, s8, s9
    s_add_u32 s8, s8, {WS_G4}
    v_lshl_add_u32 v4, v4, 2, s8
    s_waitcnt lgkmcnt(0)
    v_add_f32 v24, v24, v25
    v_add_f32 v26, v26, v27
    v_add_f32 v28, v28, v29
    v_add_f32 v30, v30, v31
    v_add_f32 v24, v24, v26
    v_add_f32 v28, v28, v30
    v_add_f32 v24, v24, v28""")
    red_hi('v_add_f32', [24], [25], bits=(5,))
    a(f"""v_min_u32 v24, -2, v24
    s_mov_b32 exec_hi, 0
    global_store_dword v4, v24, s[40:41] sc1
    s_mov_b64 exec, -1""")
    stamp(14, 0)
    a("s_endpgm")

    a.label("L_notw")
    a(f"""s_cmp_eq_u32 s66, -1
    s_cbranch_scc1 L_end
    s_cmp_gt_u32 s3, 10
    s_cbranch_scc1 L_end
    s_load_dword s6, s[40:41], {WS_EPOCH}
    s_cmp_eq_u32 s3, 10
    s_cbranch_scc1 L_fwave""")
    a(f"""v_and_b32 v4, 15, v0
    v_lshrrev_b32 v5, 4, v0
    v_lshl_add_u32 v6, v4, 2, v5
    s_lshl_b32 s8, s3, 6
    v_add_u32 v6, s8, v6
    v_lshlrev_b32 v7, 1, v6
    global_load_ushort v48, v7, s[16:17]
    v_lshlrev_b32 v7, 3, v6
    v_add_u32 v7, {WS_GR}, v7
    v_add_u32 v8, 5120, v7
    v_add_u32 v9, 10240, v7
    s_waitcnt lgkmcnt(0)
    s_add_u32 s6, s6, {hex(TAGC)}""")
    lab = a.newlabel('GR'); a.label(lab)
    a(f"""global_load_dwordx2 v[50:51], v7, s[40:41] sc1
    global_load_dwordx2 v[52:53], v8, s[40:41] sc1
    global_load_dwordx2 v[54:55], v9, s[40:41] sc1
    s_waitcnt vmcnt(0)
    v_xor_b32 v56, s6, v51
    v_bitop3_b32 v56, v56, v53, s6 bitop3:0xf6
    v_bitop3_b32 v56, v56, v55, s6 bitop3:0xf6
    v_cmp_ne_u32 vcc, 0, v56""")
    spin_tail(lab)
    rbf(50, 50); rbf(52, 52); rbf(54, 54)
    a("v_add_f32 v54, 1.0, v54"); rbf(54, 54)
    a(f"""v_lshlrev_b32 v48, 16, v48
    v_mul_u32_u24 v7, 5120, v5
    v_lshl_add_u32 v7, v4, 4, v7
    s_lshl_b32 s8, s3, 8
    s_add_u32 s8, s8, {WS_G4}
    v_add_u32 v7, s8, v7
    v_lshlrev_b32 v8, 2, v6
    v_lshlrev_b32 v9, 2, v0
    v_bfe_u32 v56, v0, 2, 2
    v_lshl_add_u32 v56, v56, 4, v5
    v_lshlrev_b32 v56, 2, v56
    v_lshlrev_b32 v57, 2, v2""")
    lab = a.newlabel('G4'); a.label(lab)
    a(f"""global_load_dwordx4 v[24:27], v7, s[40:41] sc1
    global_load_dwordx4 v[28:31], v7, s[40:41] offset:2560 sc1
    s_waitcnt vmcnt(0)
    v_max3_u32 v32, v24, v25, v26
    v_max3_u32 v33, v27, v28, v29
    v_max3_u32 v32, v32, v30, v31
    v_max_u32 v32, v32, v33
    v_cmp_eq_u32 vcc, -1, v32""")
    spin_tail(lab)
    stamp(15, 0)
    for i in range(4): a(f"v_add_f32 v{24+i}, v{24+i}, v{28+i}")
    rs_step(5, [(24, 26), (25, 27)])
    rs_step(4, [(24, 25)])
    rbf(24, 24)
    a("v_mul_f32 v24, v50, v24"); rbf(24, 24)
    a("v_add_f32 v24, v48, v24"); rbf(24, 24)
    a(f"""ds_write_b32 v8, v24 offset:{L_X2}
    s_waitcnt lgkmcnt(0)
    s_barrier
    v_mov_b32 v8, {L_X2}
    ds_read_b32 v38, v8
    v_add_u32 v9, {L_X2}, v9""")
    for k in range(5): a(f"ds_read2st64_b32 v[{28+2*k}:{29+2*k}], v9 offset0:{2*k} offset1:{2*k+1}")
    a("s_waitcnt lgkmcnt(0)")
    for i in range(10): a(f"v_sub_f32 v{28+i}, v{28+i}, v38")
    a("v_add_f32 v26, v28, v29\nv_mul_f32 v27, v28, v28\nv_fmac_f32 v27, v29, v29")
    for i in range(2, 10): a(f"v_add_f32 v26, v26, v{28+i}\nv_fmac_f32 v27, v{28+i}, v{28+i}")
    red16('v_add_f32', [26, 27]); red_hi('v_add_f32', [26, 27], [28, 29])
    a(f"""v_mul_f32 v26, {hex(f2u(1/640))}, v26
    v_mul_f32 v27, {hex(f2u(1/640))}, v27
    v_fma_f32 v27, -v26, v26, v27
    v_max_f32 v27, 0, v27
    v_add_f32 v26, v26, v38""")
    rbf(26, 26); rbf(27, 27)
    a(f"v_add_f32 v27, {hex(f2u(1e-5))}, v27"); rbf(27, 27)
    a("v_sqrt_f32 v27, v27"); rbf(27, 27)
    a("v_rcp_f32 v27, v27\nv_sub_f32 v24, v24, v26"); rbf(24, 24)
    a("v_mul_f32 v24, v24, v27"); rbf(24, 24)
    a("v_mul_f32 v24, v24, v54"); rbf(24, 24)
    a("v_add_f32 v24, v24, v52"); rbf(24, 24)
    for t in range(4): a(f"ds_bpermute_b32 v{32+t}, v56, v24 offset:{16*t}")
    for i in range(8): a(f"v_mov_b32 v{40+i}, 0")
    a("s_waitcnt lgkmcnt(0)")
    for t in range(4): a(f"v_lshrrev_b32 v{36+t}, 16, v{32+t}")
    tile_dots(40, W1, 4, [32, 33, 34, 35], [36, 37, 38, 39])
    tile_reduce4(40)
    a(f"""v_and_b32 v4, 3, v0
    v_lshlrev_b32 v5, 3, v5
    v_lshl_add_u32 v4, v4, 5, v5
    s_lshl_b32 s8, s3, 7
    v_add_u32 v4, s8, v4
    ds_write_b64 v4, v[40:41] offset:{L_WP}
    v_and_b32 v4, 31, v0
    v_lshrrev_b32 v5, 5, v0
    v_mul_u32_u24 v5, 640, v5
    v_lshl_add_u32 v5, v4, 2, v5
    v_add_u32 v5, {L_WP}, v5
    s_waitcnt lgkmcnt(0)
    s_barrier
    ds_read2_b32 v[24:25], v5 offset0:0 offset1:32
    ds_read2_b32 v[26:27], v5 offset0:64 offset1:96
    ds_read_b32 v28, v5 offset:512""")
    for i in range(8): a(f"v_mov_b32 v{40+i}, 0")
    a(f"""s_waitcnt lgkmcnt(0)
    v_add_f32 v24, v24, v25
    v_add_f32 v26, v26, v27
    v_add_f32 v24, v24, v28
    v_add_f32 v24, v24, v26""")
    red_hi('v_add_f32', [24], [25], bits=(5,))
    rbf(24, 24)
    a(f"""v_mul_f32 v25, s42, v24
    v_exp_f32 v25, -v25
    v_add_f32 v25, 1.0, v25
    v_rcp_f32 v25, v25
    v_mul_f32 v24, v24, v25""")
    rbf(24, 24)
    for t in range(4): a(f"ds_bpermute_b32 v{32+t}, v57, v24 offset:{32*t}")
    a(f"""s_mul_i32 s8, s66, 2560
    s_lshl_b32 s9, s3, 8
    s_add_u32 s8, s8, s9
    s_add_u32 s8, s8, {WS_G5}
    v_lshl_add_u32 v4, v3, 3, v2
    v_lshl_add_u32 v4, v4, 2, s8
    s_waitcnt lgkmcnt(0)""")
    for t in range(4): a(f"v_lshrrev_b32 v{36+t}, 16, v{32+t}")
    tile_dots(40, W2, 4, [32, 33, 34, 35], [36, 37, 38, 39])
    tile_reduce8(40, 's[12:13]')
    a(f"""v_min_u32 v40, -2, v40
    global_store_dword v4, v40, s[40:41] sc1""")
    stamp(16, 0)
    a("s_endpgm")

    a.label("L_fwave")
    a(f"""s_cmp_ge_u32 s66, 40
    s_cbranch_scc1 L_end
    v_and_b32 v4, 3, v0
    v_lshrrev_b32 v5, 4, v0
    v_lshl_add_u32 v6, v4, 2, v5
    s_lshl_b32 s8, s66, 4
    v_add_u32 v6, s8, v6
    v_lshlrev_b32 v7, 3, v6
    v_add_u32 v7, {WS_GR + 1920*8}, v7
    s_waitcnt lgkmcnt(0)
    s_add_u32 s6, s6, {hex(TAGC)}""")
    lab = a.newlabel('GF'); a.label(lab)
    a(f"""global_load_dwordx2 v[50:51], v7, s[40:41] sc1
    s_waitcnt vmcnt(0)
    v_cmp_ne_u32 vcc, s6, v51""")
    spin_tail(lab)
    rbf(50, 50)
    a(f"""v_lshlrev_b32 v8, 2, v6
    v_lshrrev_b32 v7, 2, v0
    v_mul_u32_u24 v7, 2560, v7
    v_lshl_add_u32 v7, v4, 4, v7
    s_lshl_b32 s8, s66, 6
    s_add_u32 s8, s8, {WS_G5}
    v_add_u32 v7, s8, v7
    v_add_u32 v52, {16*2560}, v7
    v_add_u32 v53, {32*2560}, v7
    v_lshlrev_b32 v6, 1, v6
    s_barrier
    ds_read_b32 v48, v8 offset:{L_X2}
    s_waitcnt lgkmcnt(0)
    s_barrier""")
    lab = a.newlabel('G5'); a.label(lab)
    a(f"""global_load_dwordx4 v[24:27], v7, s[40:41] sc1
    global_load_dwordx4 v[28:31], v52, s[40:41] sc1
    global_load_dwordx4 v[32:35], v53, s[40:41] sc1
    s_waitcnt vmcnt(0)
    v_max3_u32 v36, v24, v25, v26
    v_max3_u32 v37, v27, v28, v29
    v_max3_u32 v38, v30, v31, v32
    v_max3_u32 v36, v36, v33, v34
    v_max3_u32 v37, v37, v35, v38
    v_max_u32 v36, v36, v37
    v_cmp_eq_u32 vcc, -1, v36""")
    spin_tail(lab)
    stamp(17, 10)
    for i in range(4): a(f"v_add_f32 v{24+i}, v{24+i}, v{28+i}")
    for i in range(4): a(f"v_add_f32 v{24+i}, v{24+i}, v{32+i}")
    rs_step(5, [(24, 26), (25, 27)])
    rs_step(4, [(24, 25)])
    dpp('v_add_f32', 24, 24, 24, 'row_ror:8'); dpp('v_add_f32', 24, 24, 24, 'row_ror:4')
    rbf(24, 24)
    a("v_mul_f32 v24, v50, v24"); rbf(24, 24)
    a(f"""v_add_f32 v24, v48, v24
    v_cvt_pk_bf16_f32 v24, v24, v24
    s_mov_b32 exec_lo, 0x000f000f
    s_mov_b32 exec_hi, 0x000f000f
    global_store_short v6, v24, s[36:37]
    s_cmp_lg_u32 s66, 0
    s_cbranch_scc1 L_fend
    s_mov_b64 exec, 1
    v_mov_b32 v4, {WS_EPOCH}
    v_mov_b32 v5, s6
    global_store_dword v4, v5, s[40:41] sc1""")
    a.label("L_fend")
    a("s_mov_b64 exec, -1")
    stamp(18, 10)
    a.label("L_end")
    a("s_endpgm")

    body = a.text()
    out = HEADER
    out += f"; @launch grid=(256,1,1) block=(1024,1,1) lds={LDS_BYTES}\n"
    out += '.amdgcn_target "amdgcn-amd-amdhsa--gfx950"\n.text\n'
    out += f".globl {KN}\n.p2align 8\n.type {KN},@function\n{KN}:\n" + body
    out += f""".section .rodata,"a"
.p2align 6
.amdhsa_kernel {KN}
  .amdhsa_next_free_vgpr 128
  .amdhsa_next_free_sgpr 96
  .amdhsa_accum_offset 128
  .amdhsa_group_segment_fixed_size 0
  .amdhsa_kernarg_size 104
  .amdhsa_user_sgpr_count 2
  .amdhsa_user_sgpr_kernarg_segment_ptr 1
  .amdhsa_system_sgpr_workgroup_id_x 1
  .amdhsa_float_denorm_mode_32 3
.end_amdhsa_kernel
"""
    return out

if __name__ == '__main__':
    import json
    P = json.loads(sys.argv[2]) if len(sys.argv) > 2 else {}
    open(sys.argv[1], 'w').write(gen(P))
```

```python
import sys, math
from asmlib import Asm, f2u

KN = "adaLN_cond__gqa_block_cached__dense_activation_silu__decode_kernel"
HEADER = open('adaLN_cond__gqa_block_cached__dense_activation_silu__decode.s.ref').read().split('; Override')[0]

WS_EPOCH = 0
WS_CNT = 0x1000; CNT_STRIDE = 1152
WS_GM = 0x10000
WS_GR = WS_GM + 1280*8
WS_G1 = 0x20000
WS_GQ = 0x30000
WS_G3 = 0x100000
WS_G5 = WS_G3 + 0x40000
WS_G4 = WS_G5 + 48*2560
WS_ST = 0x200000
TAGC = 0x9E3779B9
NUNITS = 2048
HEADB = 16384*384
L_Q = 0
L_FLAG = 512
L_ZERO = 528
L_ROLE = L_FLAG + 12
L_ML = 576
L_ST = 704
L_O = 1024
L_U = 2560
L_WP = 3072
L_X2 = 4096
L_PART = 8192
L_TP = 8192
L_W = 20480
L_W2 = L_W + 40960
LDS_BYTES = L_W + 81920

def gen(P):
    a = Asm()
    NSW = 12
    NB = P.get('nb', 2)
    PW = P.get('pw', 4)
    SLOW = {int(k): v for k, v in P.get('slow', {1: 0, 3: 1}).items()}
    STAMP = P.get('stamp', 0)
    SPIN = P.get('spin', 400000)
    NST = P.get('nst', 10)
    NL = P.get('nl', 1)
    TRIG = P.get('trig', 12)
    W2E = P.get('w2e', 1)
    PDF = P.get('pdf', 2)
    PD = P.get('pd', 1)
    NSTAT = 8*(NSW*(NB+NL+1) + NST)
    LD = 'nt'

    vL, vOFF = 0, 1
    vT = list(range(2, 10))
    vQ = 10
    vM, vLS = 22, 23
    vACC = 24
    vAK, vAV = 48, 60
    vB = [72, 96]
    vU = 120
    vTK = 127

    def stamp(k, cond_wave=None, r=None):
        if not STAMP: return
        a(f"""s_memrealtime s[92:93]
        s_waitcnt lgkmcnt(0)
        v_writelane_b32 v126, s92, {k}""")

    def rbf(d, s):
        a(f"v_cvt_pk_bf16_f32 v{d}, v{s}, v{s}\nv_and_b32 v{d}, s7, v{d}")

    def dpp(op, d, s0, s1, ctl):
        a(f"{op}_dpp v{d}, v{s0}, v{s1} {ctl} row_mask:0xf bank_mask:0xf")

    def red8(op, x):
        dpp(op, x, x, x, "quad_perm:[1,0,3,2]"); dpp(op, x, x, x, "quad_perm:[2,3,0,1]"); dpp(op, x, x, x, "row_half_mirror")
    def red16(op, xs):
        for ctl in ("quad_perm:[1,0,3,2]", "quad_perm:[2,3,0,1]", "row_half_mirror", "row_mirror"):
            for x in xs: dpp(op, x, x, x, ctl)
    def red_hi(op, xs, ts, bits=(4, 5)):
        for b in bits:
            sw = 'v_permlane16_swap_b32' if b == 4 else 'v_permlane32_swap_b32'
            for x, t in zip(xs, ts): a(f"v_mov_b32 v{t}, v{x}")
            for x, t in zip(xs, ts): a(f"{sw} v{x}, v{t}")
            for x, t in zip(xs, ts): a(f"{op} v{x}, v{x}, v{t}")
    def rs_step(bit, pairs):
        sw = 'v_permlane16_swap_b32' if bit == 4 else 'v_permlane32_swap_b32'
        for x, y in pairs: a(f"{sw} v{x}, v{y}")
        for x, y in pairs: a(f"v_add_f32 v{x}, v{x}, v{y}")

    def spin_tail(lab_retry, slp=1):
        done = a.newlabel('GD')
        a(f"""s_cbranch_vccz {done}
        s_add_u32 s67, s67, 1
        s_cmp_gt_u32 s67, {SPIN}
        s_cbranch_scc1 L_end
        s_sleep {slp}
        s_branch {lab_retry}""")
        a.label(done)

    def tile_dots(acc, tile, nrb, chi, clo):
        for rb in range(nrb):
            for d in range(4):
                a(f"v_dot2c_f32_bf16 v{acc+2*d}, v{tile+4*rb+d}, v{clo[rb]}")
                a(f"v_dot2c_f32_bf16 v{acc+2*d+1}, v{tile+4*rb+d}, v{chi[rb]}")
    def tile_reduce8(acc, sel):
        rs_step(5, [(acc+i, acc+4+i) for i in range(4)])
        rs_step(4, [(acc+i, acc+2+i) for i in range(2)])
        dpp('v_add_f32', acc, acc, acc, 'row_ror:8'); dpp('v_add_f32', acc+1, acc+1, acc+1, 'row_ror:8')
        a(f"v_cndmask_b32 v{acc}, v{acc}, v{acc+1}, {sel}")
    def tile_reduce4(acc):
        rs_step(5, [(acc+i, acc+4+i) for i in range(4)])
        rs_step(4, [(acc+i, acc+2+i) for i in range(2)])
        for ctl in ('row_ror:8', 'row_ror:4'):
            dpp('v_add_f32', acc, acc, acc, ctl); dpp('v_add_f32', acc+1, acc+1, acc+1, ctl)

    def loadK(r):
        for j in range(3): a(f"buffer_load_dwordx4 v[{r+4*j}:{r+4*j+3}], v{vOFF}, s[44:47], s62 offen offset:{128*j} {LD}")
    def loadV(r):
        for j in range(3): a(f"buffer_load_dwordx4 v[{r+4*j}:{r+4*j+3}], v{vOFF}, s[48:51], s62 offen offset:{128*j} {LD}")
    def ticket():
        a(f"""s_mov_b64 exec, 1
        global_atomic_add v{vTK}, v{vU+4}, v{vU+5}, s[60:61] sc0
        s_mov_b64 exec, -1""")
    def qk_dots(K):
        t0, t1, t2 = vT[0], vT[1], vT[2]
        a(f"v_mov_b32 v{t0}, 0\nv_mov_b32 v{t1}, 0\nv_mov_b32 v{t2}, 0")
        for r in range(4):
            for j in range(3):
                a(f"v_dot2c_f32_bf16 v{vT[j]}, v{K+4*j+r}, v{vQ+4*j+r}")
    def softmax(last=False):
        t0, t1, t2, t3, p, al = vT[0], vT[1], vT[2], vT[3], vT[4], vT[6]
        a(f"v_add_f32 v{t0}, v{t0}, v{t1}\nv_add_f32 v{t0}, v{t0}, v{t2}")
        red8('v_add_f32', t0)
        rbf(t0, t0)
        a(f"v_mul_f32 v{t0}, s43, v{t0}")
        rbf(t0, t0)
        a(f"v_max_f32 v{t1}, v{vM}, v{t0}")
        if last:
            dpp('v_max_f32', t1, t1, t1, 'row_ror:8')
            red_hi('v_max_f32', [t1], [t2])
        a(f"""v_sub_f32 v{t2}, v{vM}, v{t1}
        v_sub_f32 v{t3}, v{t0}, v{t1}
        v_mul_f32 v{t2}, s42, v{t2}
        v_mul_f32 v{t3}, s42, v{t3}
        v_exp_f32 v{al}, v{t2}
        v_exp_f32 v{p}, v{t3}
        v_mov_b32 v{vM}, v{t1}
        v_fma_f32 v{vLS}, v{vLS}, v{al}, v{p}""")
        if last:
            dpp('v_add_f32', vLS, vLS, vLS, 'row_ror:8')
            red_hi('v_add_f32', [vLS], [t2])
            a(f"""s_lshl_b32 s8, s3, 3
            v_mov_b32 v{t2}, s8
            v_mov_b32 v{t0}, 0
            v_mov_b32 v{t1}, 1
            s_mov_b64 exec, 1
            ds_write_b64 v{t2}, v[{vM}:{vLS}] offset:{L_ML-32}
            ds_add_u32 v{t0}, v{t1} offset:{L_FLAG+4}
            s_mov_b64 exec, -1""")
        for i in range(12):
            r = vACC + 2*i
            a(f"v_pk_mul_f32 v[{r}:{r+1}], v[{r}:{r+1}], v[{al}:{al+1}] op_sel_hi:[1,0]")
    def lds_wait(off, val, lab, slp, cmp='ge', vz=4, vd=5):
        top = a.newlabel('LW'); a.label(top)
        a(f"""ds_read_b32 v{vd}, v{vz} offset:{off}
        s_waitcnt lgkmcnt(0)
        v_readfirstlane_b32 s8, v{vd}
        s_cmp_ge_u32 s8, {val}
        s_cbranch_scc1 {lab}
        s_add_u32 s67, s67, 1
        s_cmp_gt_u32 s67, {SPIN*8}
        s_cbranch_scc1 L_end""")
        if slp: a(f"s_sleep {slp}")
        a(f"s_branch {top}")
    def part_addr():
        a(f"""v_lshrrev_b32 v52, 3, v0
        v_and_b32 v53, 7, v0
        v_mul_u32_u24 v52, 3, v52
        s_mul_i32 s8, s3, 768
        s_add_u32 s8, s8, {L_PART-4*768}
        v_lshl_add_u32 v53, v53, 5, s8
        s_mov_b32 s12, 0xff00ff00
        s_mov_b32 s13, 0xff00ff00""")
        for i in range(3):
            a(f"""v_add_u32 v54, {i}, v52
            v_lshrrev_b32 v55, 3, v54
            v_and_b32 v54, 7, v54
            v_lshl_add_u32 v55, v55, 8, v53
            v_lshl_add_u32 v{48+i}, v54, 2, v55""")
        a("v_mov_b32 v52, 0\nv_mov_b32 v53, 1")
    def part_write():
        for i in range(12): a(f"v_permlane32_swap_b32 v{vACC+i}, v{vACC+12+i}")
        for i in range(0, 12, 2): a(f"v_pk_add_f32 v[{vACC+i}:{vACC+i+1}], v[{vACC+i}:{vACC+i+1}], v[{vACC+12+i}:{vACC+13+i}]")
        for i in range(6): a(f"v_permlane16_swap_b32 v{vACC+i}, v{vACC+6+i}")
        for i in range(0, 6, 2): a(f"v_pk_add_f32 v[{vACC+i}:{vACC+i+1}], v[{vACC+i}:{vACC+i+1}], v[{vACC+6+i}:{vACC+7+i}]")
        for i in range(6): dpp('v_add_f32', vACC+i, vACC+i, vACC+i, 'row_ror:8')
        for i in range(3): a(f"v_cndmask_b32 v{vACC+i}, v{vACC+i}, v{vACC+3+i}, s[12:13]")
        for i in range(3): a(f"ds_write_b32 v{48+i}, v{vACC+i}")
        a(f"""s_mov_b64 exec, 1
        ds_add_u32 v52, v53 offset:{L_FLAG+8}
        s_mov_b64 exec, -1""")
    def nan_retry(regs, raw, lab, tmp, masked=False):
        done = a.newlabel('NR')
        if len(regs) == 1: a(f"v_cmp_u_f32 vcc, v{regs[0]}, v{regs[0]}")
        elif len(regs) == 2: a(f"v_cmp_u_f32 vcc, v{regs[0]}, v{regs[1]}")
        else: a(f"v_add_f32 v{tmp}, v{regs[0]}, v{regs[1]}\nv_cmp_u_f32 vcc, v{tmp}, v{regs[2]}")
        a(f"s_cbranch_vccz {done}")
        if masked: a("s_mov_b64 s[68:69], vcc")
        a(f"""s_add_u32 s67, s67, 1
        s_and_b32 s8, s67, 15
        s_cbranch_scc1 {lab}
        s_cmp_gt_u32 s67, {SPIN}
        s_cbranch_scc1 L_end
        s_cmp_eq_u32 s63, 1
        s_cbranch_scc1 {done}""")
        a(f"v_mov_b32 v{tmp}, v{raw[0]}")
        for i in range(1, len(raw), 2):
            if i+1 < len(raw): a(f"v_max3_u32 v{tmp}, v{tmp}, v{raw[i]}, v{raw[i+1]}")
            else: a(f"v_max_u32 v{tmp}, v{tmp}, v{raw[i]}")
        a(f"""v_cmp_eq_u32 vcc, -1, v{tmp}
        s_cbranch_vccnz {lab}
        s_mov_b32 s63, 1
        s_branch {lab}""")
        a.label(done)
    def pv(V):
        p = vT[4]
        for i in range(12):
            t = vU + 2*(i & 1)
            r = vACC + 2*i
            a(f"""v_lshlrev_b32 v{t}, 16, v{V+i}
            v_and_b32 v{t+1}, s7, v{V+i}
            v_pk_fma_f32 v[{r}:{r+1}], v[{t}:{t+1}], v[{p}:{p+1}], v[{r}:{r+1}] op_sel_hi:[1,0,1]""")

    if STAMP: a("s_memrealtime s[98:99]\nv_mov_b32 v126, 0")
    a(f"""s_cmp_ge_u32 s2, 256
    s_cbranch_scc1 L_exit
    s_load_dwordx16 s[16:31], s[0:1], 0
    s_load_dwordx8 s[32:39], s[0:1], 64
    s_load_dwordx2 s[40:41], s[0:1], 96
    v_lshrrev_b32 v1, 6, v0
    v_readfirstlane_b32 s3, v1
    v_and_b32 v0, 63, v0
    s_lshr_b32 s4, s2, 3
    s_lshl_b32 s5, s2, 2
    s_add_u32 s4, s4, s5
    s_and_b32 s4, s4, 31
    s_lshr_b32 s5, s2, 5
    s_mov_b32 s7, 0xffff0000
    s_mov_b32 s42, {hex(f2u(math.log2(math.e)))}
    s_mov_b32 s43, {hex(f2u(192 ** -0.5))}
    s_mov_b32 s67, 0
    s_mov_b32 s63, 0
    v_lshrrev_b32 v2, 3, v0
    v_and_b32 v3, 7, v0
    v_mul_u32_u24 v1, 384, v2
    v_lshl_add_u32 v1, v3, 4, v1
    s_mul_i32 s8, s4, {HEADB}
    s_mov_b32 s46, {HEADB}
    s_mov_b32 s47, 0x20000
    s_mov_b32 s50, {HEADB}
    s_mov_b32 s51, 0x20000
    s_mov_b32 s55, 0x20000
    s_mov_b32 s59, 0x20000
    s_mul_i32 s9, s4, {CNT_STRIDE}
    s_add_u32 s9, s9, {WS_CNT}
    v_mov_b32 v4, 0
    v_mov_b32 v5, 0
    v_mov_b32 v6, 0
    v_mov_b32 v7, 0
    ds_write_b128 v4, v[4:7] offset:{L_FLAG}
    ds_write_b128 v4, v[4:7] offset:{L_ZERO}
    s_waitcnt lgkmcnt(0)
    s_barrier""")
    if STAMP: a("v_writelane_b32 v126, s98, 22")
    stamp(23)
    a(f"""s_add_u32 s44, s18, s8
    s_addc_u32 s45, s19, 0
    s_add_u32 s48, s20, s8
    s_addc_u32 s49, s21, 0
    s_add_u32 s60, s40, s9
    s_addc_u32 s61, s41, 0
    s_load_dword s6, s[40:41], {WS_EPOCH}
    s_mov_b32 s12, 0xff00ff00
    s_mov_b32 s13, 0xff00ff00
    s_cmp_lt_u32 s5, 3
    s_cbranch_scc1 L_qtile
    s_cmp_ge_u32 s2, 176
    s_cbranch_scc1 L_roles""")
    TILE = 48; CH = 24; CL = 30; TA = 40
    def tile_loads(stride, n=5):
        a(f"""s_mul_i32 s10, s3, {8*n*stride}
        v_mul_u32_u24 v4, {stride}, v2
        v_lshl_add_u32 v4, v3, 4, v4""")
        for t in range(n):
            a(f"buffer_load_dwordx4 v[{TILE+4*t}:{TILE+4*t+3}], v4, s[52:55], s10 offen {LD}")
            if t < n-1: a(f"s_add_u32 s10, s10, {8*stride}")
    def tile_finish(n=5, nwv=16, join=None):
        tile_dots(TA, TILE, n, [CH+t for t in range(n)], [CL+t for t in range(n)])
        tile_reduce8(TA, 's[12:13]')
        a(f"""ds_write_b32 v5, v{TA} offset:{L_TP}""")
        stamp(20)
        if join: a.label(join)
        a(f"""s_waitcnt vmcnt(0) lgkmcnt(0)
        s_barrier""")
        stamp(21)
        a(f"""s_cmp_lg_u32 s3, 0
        s_cbranch_scc1 L_tilebar
        v_lshlrev_b32 v5, 2, v0
        v_add_u32 v5, {L_TP}, v5""")
        for k in range(nwv//2): a(f"ds_read2st64_b32 v[{24+2*k}:{25+2*k}], v5 offset0:{2*k} offset1:{2*k+1}")
        for k in range(nwv//2):
            a(f"s_waitcnt lgkmcnt({nwv//2-1-k})")
            a(f"v_add_f32 v{24+2*k}, v{24+2*k}, v{25+2*k}")
            if k & 1: a(f"v_add_f32 v{22+2*k}, v{22+2*k}, v{24+2*k}")
        tops = [24+4*k for k in range((nwv//2+1)//2)]
        while len(tops) > 1:
            nxt = []
            for i in range(0, len(tops)-1, 2):
                a(f"v_add_f32 v{tops[i]}, v{tops[i]}, v{tops[i+1]}"); nxt.append(tops[i])
            if len(tops) & 1: nxt.append(tops[-1])
            tops = nxt
    def tile_ldsaddr():
        a(f"""v_lshl_add_u32 v5, v3, 3, v2
        s_lshl_b32 s8, s3, 8
        v_lshl_add_u32 v5, v5, 2, s8""")
        for i in range(8): a(f"v_mov_b32 v{TA+i}, 0")
    a.label("L_modtile")
    a(f"""s_sub_u32 s9, s2, 96
    s_cmp_ge_u32 s3, 10
    s_cbranch_scc1 L_poison
    s_lshr_b32 s11, s9, 2
    s_and_b32 s15, s9, 3
    s_lshl_b32 s14, s11, 7
    s_mul_i32 s8, s15, {160*7680}
    s_add_u32 s14, s14, s8
    s_add_u32 s52, s34, s14
    s_addc_u32 s53, s35, 0
    s_sub_u32 s54, {640*7680}, s14
    s_mul_i32 s14, s15, 320
    s_lshl_b32 s8, s3, 5
    s_add_u32 s14, s14, s8
    v_lshl_add_u32 v7, v2, 1, s14""")
    for t in range(2): a(f"global_load_ushort v{CH+t}, v7, s[32:33] offset:{16*t}")
    tile_loads(7680, 2)
    tile_ldsaddr()
    a(f"""s_mul_i32 s14, s15, 10240
    s_lshl_b32 s8, s11, 9
    s_add_u32 s14, s14, s8
    s_add_u32 s14, s14, {WS_G1}
    v_lshl_add_u32 v6, v0, 3, s14
    s_waitcnt vmcnt(2)""")
    for t in range(2):
        x, u = CH+t, CL+t
        a(f"""v_lshlrev_b32 v{x}, 16, v{x}
        v_mul_f32 v{u}, s42, v{x}
        v_exp_f32 v{u}, -v{u}
        v_add_f32 v{u}, 1.0, v{u}
        v_rcp_f32 v{u}, v{u}
        v_mul_f32 v{x}, v{x}, v{u}""")
        rbf(x, x)
        a(f"v_lshrrev_b32 v{u}, 16, v{x}")
    a("s_waitcnt vmcnt(0)")
    stamp(19)
    tile_finish(2, 10, "L_modjoin")
    a(f"""s_add_u32 s8, s6, {hex(TAGC)}
    v_mov_b32 v25, s8
    global_store_dwordx2 v6, v[24:25], s[40:41] sc1""")
    stamp(6)
    a("s_branch L_tilebar")
    a.label("L_poison")
    a(f"""s_mul_i32 s14, s9, 6
    s_add_u32 s14, s14, s3
    s_lshl_b32 s14, s14, 10
    s_add_u32 s14, s14, {WS_G3 - 10*1024}
    v_lshl_add_u32 v6, v0, 4, s14
    v_mov_b32 v88, -1
    v_mov_b32 v89, -1
    v_mov_b32 v90, -1
    v_mov_b32 v91, -1
    global_store_dwordx4 v6, v[88:91], s[40:41] sc1
    s_cmp_lg_u32 s3, 15
    s_cbranch_scc1 L_modjoin
    s_cmp_ge_u32 s9, 40
    s_cbranch_scc1 L_modjoin
    s_mul_i32 s14, s9, {CNT_STRIDE}
    s_add_u32 s14, s14, {WS_CNT}
    v_mov_b32 v6, s14
    v_mov_b32 v8, 0
    s_mov_b64 exec, 1
    global_store_dword v6, v8, s[40:41] sc1
    s_mov_b64 exec, -1
    s_branch L_modjoin""")
    a.label("L_qtile")
    a(f"""s_mul_i32 s8, s4, 384
    s_lshl_b32 s9, s5, 7
    s_add_u32 s8, s8, s9
    s_add_u32 s52, s22, s8
    s_addc_u32 s53, s23, 0
    s_sub_u32 s54, {640*12288}, s8
    v_lshlrev_b32 v5, 2, v0
    s_mul_i32 s14, s3, 40
    v_add_u32 v8, s14, v3
    v_lshlrev_b32 v7, 1, v8""")
    for t in range(5): a(f"global_load_dword v{70+t}, v5, s[16:17] offset:{256*t}")
    for t in range(5): a(f"global_load_ushort v{CL+t}, v7, s[16:17] offset:{16*t}")
    tile_loads(12288)
    a("s_barrier")
    a(f"""v_lshlrev_b32 v8, 3, v8
    v_and_b32 v9, 3, v2
    v_mul_u32_u24 v9, 10240, v9
    v_add_u32 v8, v8, v9
    v_lshrrev_b32 v9, 5, v0
    v_mul_u32_u24 v9, 5120, v9
    v_add_u32 v8, v8, v9
    v_add_u32 v8, {WS_G1}, v8
    v_lshlrev_b32 v9, 2, v2""")
    tile_ldsaddr()
    a(f"""v_lshrrev_b32 v10, 1, v0
    v_mul_u32_u24 v11, 43, v10
    v_lshrrev_b32 v11, 7, v11
    v_add_u32 v11, v11, v10
    v_lshlrev_b32 v11, 2, v11
    v_lshlrev_b32 v10, 4, v10
    v_add_u32 v10, 12, v10
    v_and_b32 v12, 1, v0
    v_cmp_eq_u32 s[14:15], 1, v12
    s_mul_i32 s8, s4, 768
    s_lshl_b32 s9, s5, 8
    s_add_u32 s8, s8, s9
    s_add_u32 s8, s8, {WS_GQ}
    v_cndmask_b32 v10, v11, v10, s[14:15]
    v_add_u32 v10, s8, v10
    s_waitcnt vmcnt(5)""")
    for t in range(5):
        a(f"v_lshlrev_b32 v{76+2*t}, 16, v{70+t}\nv_and_b32 v{77+2*t}, s7, v{70+t}")
    a("v_add_f32 v70, v76, v77")
    for i in range(2, 10): a(f"v_add_f32 v70, v70, v{76+i}")
    red16('v_add_f32', [70]); red_hi('v_add_f32', [70], [71])
    a(f"v_mul_f32 v70, {hex(f2u(1/640))}, v70")
    a("v_mov_b32 v72, 0")
    for i in range(10): a(f"v_sub_f32 v{76+i}, v{76+i}, v70\nv_fmac_f32 v72, v{76+i}, v{76+i}")
    red16('v_add_f32', [72]); red_hi('v_add_f32', [72], [71])
    a(f"v_mul_f32 v72, {hex(f2u(1/640))}, v72")
    rbf(70, 70); rbf(72, 72)
    a(f"v_add_f32 v72, {hex(f2u(1e-5))}, v72")
    rbf(72, 72)
    a("v_sqrt_f32 v72, v72")
    rbf(72, 72)
    a("v_rcp_f32 v72, v72")
    for t in range(5):
        r = CL+t
        a(f"v_lshlrev_b32 v{r}, 16, v{r}\nv_sub_f32 v{r}, v{r}, v70")
        rbf(r, r)
        a(f"v_mul_f32 v{r}, v{r}, v72")
        rbf(r, r)
    a(f"s_waitcnt lgkmcnt(0)\ns_add_u32 s11, s6, {hex(TAGC)}")
    stamp(2, 0, 108)
    GG = 88
    lab = a.newlabel('GM'); a.label(lab)
    for t in range(5):
        a(f"global_load_dwordx2 v[{GG+2*t}:{GG+2*t+1}], v8, s[40:41] offset:{64*t} sc1")
    a("s_waitcnt vmcnt(0)")
    a(f"v_xor_b32 v70, s11, v{GG+1}")
    for k in range(1, 5): a(f"v_bitop3_b32 v70, v70, v{GG+2*k+1}, s11 bitop3:0xf6")
    a("v_cmp_ne_u32 vcc, 0, v70")
    spin_tail(lab, P.get('gmslp', 2))
    stamp(3)
    xs = [GG+2*t for t in range(5)]; ys = [GG+2*t+1 for t in range(5)]
    for x in xs: dpp('v_add_f32', x, x, x, 'row_ror:8')
    red_hi('v_add_f32', xs, ys, bits=(4,))
    for x in xs: rbf(x, x)
    for x, y in zip(xs, ys): a(f"v_mov_b32 v{y}, v{x}")
    for x, y in zip(xs, ys): a(f"v_permlane32_swap_b32 v{x}, v{y}")
    for y in ys: a(f"v_add_f32 v{y}, 1.0, v{y}")
    for y in ys: rbf(y, y)
    for t in range(5): a(f"v_mul_f32 v{ys[t]}, v{CL+t}, v{ys[t]}")
    for y in ys: rbf(y, y)
    for x, y in zip(xs, ys): a(f"v_add_f32 v{y}, v{y}, v{x}")
    for y in ys: a(f"v_cvt_pk_bf16_f32 v{y}, v{y}, 0")
    for t in range(5): a(f"ds_bpermute_b32 v{CL+t}, v9, v{ys[t]}")
    for t in range(5): a(f"s_waitcnt lgkmcnt({4-t})\nv_lshlrev_b32 v{CH+t}, 16, v{CL+t}")
    tile_finish()
    a(f"""v_mov_b32_dpp v25, v24 quad_perm:[1,0,3,2] row_mask:0xf bank_mask:0xf
    v_mov_b32 v26, s11
    v_cvt_pk_bf16_f32 v24, v24, v25
    v_cndmask_b32 v24, v24, v26, s[14:15]
    s_mov_b32 exec_lo, 0x557fffff
    s_mov_b32 exec_hi, 0x55555555
    global_store_dword v10, v24, s[40:41] sc1
    s_mov_b64 exec, -1""")
    stamp(4, 0, 108)
    a.label("L_tilebar")
    a("s_barrier")
    a.label("L_roles")
    a(f"""s_cmp_lt_u32 s3, 4
    s_cbranch_scc1 L_chain""")
    a(f"""s_mul_i32 s8, s5, {NSW}
    s_add_u32 s8, s8, s3
    s_sub_u32 s8, s8, 4
    s_mul_i32 s62, s8, 3072""")
    stamp(0, 4)

    bufs = [(vAK, vAV)] + [(vB[i], vB[i]+12) for i in range(NB)]
    issued = 0
    for bi, (kr, vr) in enumerate(bufs):
        for which in (0, 1):
            for j in range(3):
                if issued in SLOW: a(f"s_waitcnt vmcnt({SLOW[issued]})")
                elif issued >= PW: a(f"s_waitcnt vmcnt({PW-1})")
                r = (kr if which == 0 else vr) + 4*j
                a(f"buffer_load_dwordx4 v[{r}:{r+3}], v{vOFF}, s[{44+4*which}:{47+4*which}], s62 offen offset:{128*j} {LD}")
                issued += 1
        if bi < NB + NL: a(f"s_add_u32 s62, s62, {96*3072}")
    if NL: a(f"s_sub_u32 s11, s3, 4\ns_mul_i32 s11, s11, {6144*NL}\nv_lshl_add_u32 v9, v0, 4, s11")
    for li in range(NL):
        for which in (0, 1):
            for j in range(3):
                a(f"s_waitcnt vmcnt({PW-1})")
                a(f"s_add_u32 m0, s11, {L_W + 6144*li + 3072*which + 896*j}")
                a(f"buffer_load_dwordx4 v{vOFF}, s[{44+4*which}:{47+4*which}], s62 offen offset:{128*j} {LD} lds")
        if li < NL-1: a(f"s_add_u32 s62, s62, {96*3072}")
    a(f"""s_mul_i32 s8, s5, {NST}
    s_add_u32 s8, s8, s3
    s_add_u32 s8, s8, {96*(NB+NL+1) - 4}
    s_mul_i32 s62, s8, 3072
    v_mov_b32 v4, 0""")
    stamp(1, 4)
    lds_wait(L_FLAG, 3, "L_qready", 1)

    a.label("L_chain")
    a(f"""s_cmp_eq_u32 s3, 3
    s_cbranch_scc1 L_xwave
    s_setprio 2
    s_mul_i32 s8, s4, 768
    s_lshl_b32 s9, s3, 8
    s_add_u32 s8, s8, s9
    s_add_u32 s8, s8, {WS_GQ}
    s_add_u32 s60, s40, s8
    s_addc_u32 s61, s41, 0
    v_lshlrev_b32 v5, 2, v0
    v_lshl_add_u32 v5, s3, 7, v5
    v_mov_b32 v6, 0
    v_mov_b32 v7, 1
    s_waitcnt lgkmcnt(0)
    s_add_u32 s88, s6, {hex(TAGC)}""")
    def qreg(k):
        if k < 16: return 44 + k
        if k < 32: return 68 + k - 16
        if k < 40: return 8 + k - 32
        return 84 + k - 40
    a.label("L_qpoll")
    a(f"""s_load_dwordx16 s[44:59], s[60:61], 0 glc
    s_load_dwordx16 s[68:83], s[60:61], 64 glc
    s_load_dwordx8 s[8:15], s[60:61], 128 glc
    s_load_dwordx4 s[84:87], s[60:61], 160 glc
    s_waitcnt lgkmcnt(0)
    s_xor_b32 s89, s{qreg(3)}, s88""")
    for g in range(1, 11): a(f"s_xor_b32 s90, s{qreg(4*g+3)}, s88\ns_or_b32 s89, s89, s90")
    a(f"""s_cbranch_scc0 L_qgot
    s_add_u32 s67, s67, 1
    s_cmp_gt_u32 s67, {SPIN}
    s_cbranch_scc1 L_end
    s_sleep 2
    s_branch L_qpoll""")
    a.label("L_qgot")
    for i in range(32): a(f"v_writelane_b32 v4, s{qreg(4*(i//3) + i%3)}, {i}")
    a(f"""s_mov_b32 exec_hi, 0
    ds_write_b32 v5, v4 offset:{L_Q}
    s_mov_b64 exec, 1
    ds_add_u32 v6, v7 offset:{L_FLAG}
    s_mov_b64 exec, -1""")
    stamp(5, 0, 44)
    a("s_branch L_tail")

    a.label("L_xwave")
    XT = 48; XG = 88
    a(f"""s_cmp_lt_u32 s2, 216
    s_cbranch_scc1 L_tail
    s_sub_u32 s9, s2, 196""")
    a.label("L_xrest")
    a(f"""v_mul_u32_u24 v4, 7680, v2
    v_lshl_add_u32 v4, v3, 4, v4
    s_lshl_b32 s14, s9, 7
    s_add_u32 s52, s34, s14
    s_addc_u32 s53, s35, 0
    s_sub_u32 s54, {640*7680}, s14
    s_mov_b32 s10, 0
    s_mov_b32 s11, 0
    v_lshlrev_b32 v7, 1, v2
    v_mov_b32 v6, 0""")
    for i in range(8): a(f"v_mov_b32 v{XG+i}, 0")
    lds_wait(L_FLAG, 3, "L_xrloop", 4, vz=6)
    a.label("L_xrloop")
    for rb in range(10): a(f"global_load_ushort v{24+rb}, v7, s[32:33] offset:{16*rb}")
    for rb in range(10):
        a(f"buffer_load_dwordx4 v[{XT+4*rb}:{XT+4*rb+3}], v4, s[52:55], s10 offen {LD}")
        a(f"s_add_u32 s10, s10, {8*7680}")
    a("s_waitcnt vmcnt(10)")
    for rb in range(10):
        x, t = 24+rb, 34+rb
        a(f"""v_lshlrev_b32 v{x}, 16, v{x}
        v_mul_f32 v{t}, s42, v{x}
        v_exp_f32 v{t}, -v{t}
        v_add_f32 v{t}, 1.0, v{t}
        v_rcp_f32 v{t}, v{t}
        v_mul_f32 v{x}, v{x}, v{t}""")
        rbf(x, x)
        a(f"v_lshrrev_b32 v{t}, 16, v{x}")
    a("s_waitcnt vmcnt(0)")
    tile_dots(XG, XT, 10, [24+rb for rb in range(10)], [34+rb for rb in range(10)])
    a(f"""v_add_u32 v7, 160, v7
    s_add_u32 s11, s11, 1
    s_cmp_lt_u32 s11, 8
    s_cbranch_scc1 L_xrloop""")
    tile_reduce8(XG, 's[12:13]')
    rbf(XG, XG)
    a(f"""s_lshl_b32 s9, s9, 9
    s_add_u32 s9, s9, {WS_GM}
    s_add_u32 s8, s6, {hex(TAGC)}
    v_lshl_add_u32 v5, v3, 3, v2
    v_lshl_add_u32 v5, v5, 3, s9
    v_mov_b32 v{XG+1}, s8
    global_store_dwordx2 v5, v[{XG}:{XG+1}], s[40:41] sc1""")
    stamp(7, 3, 44)
    a("s_branch L_tail")

    def read_q_init():
        a(f"""v_lshlrev_b32 v4, 4, v3
        ds_read_b128 v[{vQ}:{vQ+3}], v4 offset:{L_Q}
        ds_read_b128 v[{vQ+4}:{vQ+7}], v4 offset:{L_Q+128}
        ds_read_b128 v[{vQ+8}:{vQ+11}], v4 offset:{L_Q+256}
        v_mov_b32 v{vM}, 0xff7fffff
        v_mov_b32 v{vLS}, 0
        v_mov_b32 v{vU+4}, 0
        v_mov_b32 v{vU+5}, 1""")
        for i in range(24): a(f"v_mov_b32 v{vACC+i}, 0")
        a("s_waitcnt lgkmcnt(0)")

    a.label("L_qready")
    if NL: a(f"v_mov_b32 v{vU+7-1-0}, v9" if False else f"v_mov_b32 v119, v9" if False else "")
    read_q_init()
    stamp(8, 4)
    nrest = 6*(NB+NL)
    a(f"s_cmp_ge_u32 s3, {4+NST}\ns_cbranch_scc1 L_catch2")
    a(f"s_waitcnt vmcnt({3+nrest})")
    qk_dots(vAK)
    ticket(); loadK(vAK)
    softmax()
    a(f"s_waitcnt vmcnt({nrest+4})")
    pv(vAV)
    loadV(vAV)
    def lds_unit(li):
        a(f"s_sub_u32 s11, s3, 4\ns_mul_i32 s11, s11, {6144*NL}\nv_lshl_add_u32 v{vU}, v0, 4, s11")
        for k in range(6): a(f"ds_read_b128 v[{vB[0]+4*k}:{vB[0]+4*k+3}], v{vU} offset:{L_W + 6144*li + 1024*k}")
        a("s_waitcnt lgkmcnt(0)")
    for bi in range(NB):
        left = 6*(NB+NL-bi-1)
        a(f"s_waitcnt vmcnt({3+left+7})")
        qk_dots(vB[bi]); softmax()
        a(f"s_waitcnt vmcnt({left+7})")
        pv(vB[bi]+12)
    for li in range(NL):
        a(f"s_waitcnt vmcnt({6*(NL-li-1)+7})")
        lds_unit(li)
        qk_dots(vB[0]); softmax(); pv(vB[0]+12)
    stamp(9, 4)
    a.label("L_loop")
    a("s_waitcnt vmcnt(3)")
    a(f"v_readfirstlane_b32 s8, v{vTK}")
    qk_dots(vAK)
    a(f"""s_add_u32 s8, s8, {NSTAT}
    s_cmp_ge_u32 s8, {NUNITS}
    s_cbranch_scc1 L_drain
    s_mul_i32 s62, s8, 3072""")
    if STAMP: a("s_memrealtime s[92:93]\ns_lshr_b32 s94, s8, 7\ns_add_u32 s94, s94, 32\ns_waitcnt lgkmcnt(0)\nv_writelane_b32 v126, s92, s94")
    ticket(); loadK(vAK)
    softmax()
    a("s_waitcnt vmcnt(4)")
    pv(vAV)
    loadV(vAV)
    a("s_branch L_loop")

    a.label("L_drain")
    a("s_setprio 3")
    stamp(10)
    softmax(last=True)
    part_addr()
    a("s_waitcnt vmcnt(0)")
    pv(vAV)
    stamp(11)
    part_write()
    a("s_branch L_end")

    a.label("L_catch2")
    a("s_waitcnt vmcnt(0)")
    for bi, (kr, vr) in enumerate(bufs):
        qk_dots(kr); softmax(last=(NL == 0 and bi == len(bufs)-1)); pv(vr)
    for li in range(NL):
        lds_unit(li)
        qk_dots(vB[0]); softmax(last=(li == NL-1)); pv(vB[0]+12)
    part_addr()
    part_write()
    a(f"""s_cmp_eq_u32 s3, 15
    s_cbranch_scc1 L_fwave
    s_cmp_lt_u32 s3, 12
    s_cbranch_scc1 L_end""")
    a(f"""s_sub_u32 s9, s3, 12
    s_lshl_b32 s8, s9, 8
    v_lshl_add_u32 v4, v0, 2, s8
    v_and_b32 v10, 15, v0
    v_min_u32 v11, 11, v10
    v_lshlrev_b32 v11, 3, v11
    v_cmp_gt_u32 s[14:15], 12, v10
    v_add_u32 v12, {L_PART}, v4
    s_lshl_b32 s8, s4, 3
    s_add_u32 s8, s8, s5
    s_lshl_b32 s8, s8, 10
    s_add_u32 s8, s8, {WS_G3}
    v_add_u32 v4, s8, v4""")
    lds_wait(L_FLAG+4, 12, "L_cml", 2, vz=52)
    a.label("L_cml")
    a(f"""ds_read_b64 v[6:7], v11 offset:{L_ML}
    s_waitcnt lgkmcnt(0)
    v_mov_b32 v8, v6
    v_cndmask_b32 v7, 0, v7, s[14:15]""")
    red16('v_max_f32', [8])
    a(f"""v_sub_f32 v6, v6, v8
    v_mul_f32 v6, s42, v6
    v_exp_f32 v6, v6
    v_mov_b32 v40, 0
    v_mov_b32 v41, 0
    v_mul_f32 v9, v7, v6
    s_setprio 3
    s_cmp_lg_u32 s9, 0
    s_cbranch_scc1 L_cwait""")
    red16('v_add_f32', [9])
    a(f"""v_min_u32 v8, -2, v8
    v_min_u32 v9, -2, v9
    s_mov_b64 exec, 1
    global_store_dwordx2 v4, v[8:9], s[40:41] offset:768 sc1
    s_mov_b64 exec, -1""")
    a.label("L_cwait")
    lds_wait(L_FLAG+8, 12, "L_cgo", 0, vz=52)
    a.label("L_cgo")
    for k in range(6): a(f"ds_read2st64_b32 v[{24+2*k}:{25+2*k}], v12 offset0:{6*k} offset1:{6*k+3}")
    for k in range(12):
        if k % 2 == 0: a(f"s_waitcnt lgkmcnt({5-k//2})")
        a(f"v_fmac_f32_dpp v{40+(k&1)}, v6, v{24+k} row_newbcast:{k} row_mask:0xf bank_mask:0xf")
    a(f"""v_add_f32 v40, v40, v41
    v_min_u32 v40, -2, v40
    global_store_dword v4, v40, s[40:41] sc1
    s_mov_b64 exec, 1
    ds_add_u32 v52, v53 offset:{L_FLAG+8}
    s_mov_b64 exec, -1""")
    stamp(12)
    a("s_branch L_end")

    def dma(n, srd, voff, sstep, lbase):
        for t in range(n):
            v = voff[t] if isinstance(voff, list) else voff
            a(f"""s_mov_b32 s10, {t*sstep}
            s_add_u32 m0, s11, {lbase + 1024*t}
            buffer_load_dwordx4 v{v}, s[{srd}:{srd+3}], s10 offen {LD} lds""")
    a.label("L_tail")
    a(f"""s_setprio 0
    v_lshrrev_b32 v2, 4, v0
    v_and_b32 v3, 15, v0
    v_lshrrev_b32 v10, 2, v3
    v_lshl_add_u32 v10, v2, 3, v10
    v_and_b32 v11, 3, v0
    v_mov_b32 v4, 0
    v_lshrrev_b32 v12, 2, v0
    v_and_b32 v13, 31, v0
    v_lshlrev_b32 v13, 2, v13
    s_mov_b32 s14, 0xffff0000
    s_mov_b32 s15, 0xffff0000
    s_mov_b32 s55, 0x20000
    s_mov_b32 s59, 0x20000
    s_cmp_lg_u32 s3, 0
    s_cbranch_scc1 L_rolewait
    s_and_b32 s9, s2, 7
    s_mul_i32 s8, s9, {CNT_STRIDE}
    s_add_u32 s8, s8, {WS_CNT + 32*CNT_STRIDE}
    s_add_u32 s60, s40, s8
    s_addc_u32 s61, s41, 0""")
    lds_wait(L_FLAG+4, TRIG, "L_roleget", 1)
    a.label("L_roleget")
    a(f"""s_mov_b32 s8, 1
    s_atomic_add s8, s[60:61], 0 glc
    s_waitcnt lgkmcnt(0)
    s_lshl_b32 s8, s8, 3
    s_add_u32 s8, s8, s9
    s_add_u32 s8, s8, 1
    v_mov_b32 v5, s8
    ds_write_b32 v4, v5 offset:{L_ROLE}
    s_branch L_rolegot""")
    a.label("L_rolewait")
    lds_wait(L_ROLE, 1, "L_rolegot", 1)
    a.label("L_rolegot")
    if STAMP: a("v_writelane_b32 v126, s8, 26")
    stamp(24)
    a(f"""s_sub_u32 s66, s8, 1
    s_cmp_lt_u32 s66, 48
    s_cbranch_scc1 L_notw
    s_sub_u32 s64, s66, 48
    s_cmp_ge_u32 s64, 160
    s_cbranch_scc1 L_end""")
    BF = 64
    a(f"""s_mul_i32 s65, s64, 205
    s_lshr_b32 s65, s65, 11
    s_mul_i32 s8, s65, 10
    s_sub_u32 s64, s64, s8
    s_lshl_b32 s9, s65, 2
    s_add_u32 s9, s9, s3
    s_mul_i32 s8, s9, {96*1280}
    s_lshl_b32 s10, s64, 7
    s_add_u32 s8, s8, s10
    s_add_u32 s52, s24, s8
    s_addc_u32 s53, s25, 0
    s_sub_u32 s54, {6144*1280}, s8
    v_lshrrev_b32 v14, 3, v0
    v_mul_u32_u24 v14, 1280, v14
    v_and_b32 v16, 7, v0
    v_lshl_add_u32 v14, v16, 4, v14
    s_mul_i32 s11, s3, 12288""")
    dma(12, 52, 14, 8*1280, L_W)
    a(f"""v_lshlrev_b32 v15, 7, v10
    v_lshl_add_u32 v15, v11, 3, v15
    v_add_u32 v15, s11, v15
    s_lshr_b32 s9, s9, 1
    s_lshl_b32 s9, s9, 13
    s_add_u32 s9, s9, {WS_G3}
    v_lshl_add_u32 v16, v16, 10, s9
    s_and_b32 s8, s3, 1
    s_mul_i32 s8, s8, 384
    s_add_u32 s9, s9, s8
    v_lshlrev_b32 v17, 11, v2
    v_lshl_add_u32 v17, v3, 3, v17
    v_add_u32 v17, s9, v17
    s_mul_i32 s8, s3, 384
    v_and_b32 v19, 1, v2
    v_lshl_add_u32 v18, v3, 1, v19
    v_lshl_add_u32 v18, v18, 1, s8
    v_lshrrev_b32 v19, 5, v0
    v_lshl_add_u32 v12, v19, 7, v18
    v_lshl_add_u32 v19, v2, 4, s8
    v_lshlrev_b32 v13, 2, v0
    s_lshl_b32 s8, s3, 8
    v_add_u32 v20, s8, v13
    s_mul_i32 s8, s65, 2560
    s_lshl_b32 s10, s64, 8
    s_add_u32 s8, s8, s10
    s_add_u32 s8, s8, {WS_G4}
    v_add_u32 v21, s8, v13
    s_mov_b32 s12, 0
    s_mov_b32 s13, -1
    s_setprio 2""")
    lab = a.newlabel('ML'); a.label(lab)
    a("""global_load_dwordx2 v[6:7], v16, s[40:41] offset:768 sc1
    s_waitcnt vmcnt(0)
    v_max_u32 v8, v6, v7
    v_cmp_eq_u32 vcc, -1, v8""")
    spin_tail(lab)
    stamp(25)
    for ks in range(3):
        for nt in range(4):
            for hf in range(2):
                r = BF + 16*ks + 4*nt + 2*hf
                a(f"ds_read_b64_tr_b16 v[{r}:{r+1}], v15 offset:{L_W + 4096*ks + 512*hf + 32*nt}")
    a("v_mov_b32 v8, v6")
    red8('v_max_f32', 8)
    a(f"""v_sub_f32 v6, v6, v8
    v_mul_f32 v6, s42, v6
    v_exp_f32 v6, v6
    v_mul_f32 v7, v7, v6""")
    red8('v_add_f32', 7)
    a("v_rcp_f32 v7, v7\nv_mul_f32 v6, v6, v7")
    for r in range(4):
        a(f"v_mov_b32_dpp v8, v6 row_newbcast:{2*r} row_mask:{hex(1<<r)} bank_mask:0xf")
        a(f"v_mov_b32_dpp v22, v6 row_newbcast:{2*r+1} row_mask:{hex(1<<r)} bank_mask:0xf")
    for i in range(12): a(f"v_mov_b32 v{112+i}, -1")
    a("s_mov_b64 s[68:69], -1")
    lab = a.newlabel('G3')
    lds_wait(L_FLAG+8, 15, lab, 1)
    a.label(lab)
    a("s_mov_b64 exec, s[68:69]")
    for t in range(3):
        for b in range(2):
            r = 112 + 4*t + 2*b
            a(f"global_load_dwordx2 v[{r}:{r+1}], v17, s[40:41] offset:{1024*b+128*t} sc1")
    a(f"s_mov_b64 exec, -1\ns_waitcnt vmcnt({6*(PD-1)})")
    for t in range(3):
        a(f"v_pk_mul_f32 v[{48+2*t}:{49+2*t}], v[{112+4*t}:{113+4*t}], v[8:9] op_sel_hi:[1,0]")
    for t in range(3):
        a(f"v_pk_fma_f32 v[{48+2*t}:{49+2*t}], v[{114+4*t}:{115+4*t}], v[22:23], v[{48+2*t}:{49+2*t}] op_sel_hi:[1,0,1]")
    a("v_pk_add_f32 v[56:57], v[48:49], v[50:51]\nv_pk_add_f32 v[56:57], v[56:57], v[52:53]")
    nan_retry([56, 57], list(range(112, 124)), lab, 60, True)
    stamp(13)
    a("""v_mov_b32 v54, v50
    v_mov_b32 v55, v51
    v_permlane32_swap_b32 v48, v52
    v_permlane32_swap_b32 v49, v53
    v_permlane32_swap_b32 v50, v54
    v_permlane32_swap_b32 v51, v55
    v_pk_add_f32 v[48:49], v[48:49], v[52:53]
    v_pk_add_f32 v[50:51], v[50:51], v[54:55]""")
    rs_step(4, [(48, 49), (50, 51)])
    a(f"""v_cvt_pk_bf16_f32 v48, v48, v48
    v_cvt_pk_bf16_f32 v50, v50, v50
    ds_write_b16 v12, v48 offset:{L_O}
    ds_write_b16 v18, v50 offset:{L_O + 64}""")
    for ks in range(3): a(f"ds_read_b128 v[{24+4*ks}:{27+4*ks}], v19 offset:{L_O + 64*ks}")
    for ks in range(3):
        a(f"s_waitcnt lgkmcnt({2-ks})")
        for nt in range(4):
            c = '0' if ks == 0 else f"v[{40+4*nt}:{43+4*nt}]"
            a(f"v_mfma_f32_16x16x32_bf16 v[{40+4*nt}:{43+4*nt}], v[{24+4*ks}:{27+4*ks}], v[{BF+16*ks+4*nt}:{BF+16*ks+4*nt+3}], {c}")
    a(f"""v_cndmask_b32 v56, v40, v44, s[14:15]
    v_cndmask_b32 v57, v48, v52, s[14:15]
    v_cndmask_b32 v56, v56, v57, s[12:13]
    ds_write_b32 v20, v56 offset:{L_WP}
    s_waitcnt lgkmcnt(0)
    s_barrier
    s_cmp_lg_u32 s3, 0
    s_cbranch_scc1 L_end
    ds_read2st64_b32 v[24:25], v13 offset0:{L_WP//256} offset1:{L_WP//256+1}
    ds_read2st64_b32 v[26:27], v13 offset0:{L_WP//256+2} offset1:{L_WP//256+3}
    s_waitcnt lgkmcnt(1)
    v_add_f32 v24, v24, v25
    s_waitcnt lgkmcnt(0)
    v_add_f32 v26, v26, v27
    v_add_f32 v24, v24, v26
    v_min_u32 v24, -2, v24
    global_store_dword v21, v24, s[40:41] sc1""")
    stamp(14)
    a("s_branch L_end")

    a.label("L_notw")

    B1, B2 = 48, 88
    a(f"""s_mul_i32 s8, s3, {160*3072}
    s_lshl_b32 s9, s66, 6
    s_add_u32 s8, s8, s9
    s_add_u32 s52, s28, s8
    s_addc_u32 s53, s29, 0
    s_sub_u32 s54, {640*3072}, s8
    s_mul_i32 s8, s66, {32*1280}
    s_mul_i32 s9, s3, 320
    s_add_u32 s8, s8, s9
    s_add_u32 s56, s30, s8
    s_addc_u32 s57, s31, 0
    s_sub_u32 s58, {1536*1280}, s8
    v_mul_u32_u24 v14, 3072, v12
    v_lshl_add_u32 v14, v11, 4, v14
    s_mul_i32 s11, s3, 10240""")
    dma(10, 52, 14, 16*3072, L_W)
    a(f"""    v_lshlrev_b32 v15, 6, v10
    v_lshl_add_u32 v15, v11, 3, v15
    v_add_u32 v15, s11, v15
    v_mul_u32_u24 v16, 320, v10
    v_lshl_add_u32 v16, v11, 3, v16
    v_add_u32 v16, s11, v16""")
    W2A = 30
    for t in range(10):
        a(f"""v_add_u32 v5, {64*t}, v0
        v_mul_u32_u24 v6, 3277, v5
        v_lshrrev_b32 v6, 16, v6
        v_mul_u32_u24 v7, 960, v6
        v_lshl_add_u32 v{W2A+t}, v5, 4, v7""")
    if W2E: dma(10, 56, [W2A+t for t in range(10)], 0, L_W2)
    a(f"""v_and_b32 v5, 1, v2
    v_lshl_add_u32 v5, v3, 1, v5
    v_lshrrev_b32 v6, 5, v0
    v_lshl_add_u32 v6, v6, 6, v5
    v_add_u32 v7, 128, v5
    s_mul_i32 s8, s3, 160
    v_lshl_add_u32 v17, v6, 1, s9
    v_lshl_add_u32 v18, v7, 1, s9
    v_add_u32 v6, s8, v6
    v_add_u32 v7, s8, v7
    v_lshlrev_b32 v19, 2, v6
    v_lshlrev_b32 v20, 2, v7
    v_lshlrev_b32 v8, 2, v0
    global_load_ushort v40, v17, s[16:17]
    global_load_ushort v41, v17, s[16:17] offset:64
    global_load_ushort v42, v18, s[16:17]""")
    for t in range(5): a(f"global_load_dword v{24+t}, v8, s[16:17] offset:{256*t}")
    a(f"""v_lshlrev_b32 v6, 3, v6
    v_lshlrev_b32 v7, 3, v7
    v_add_u32 v6, {WS_GR}, v6
    v_add_u32 v7, {WS_GR}, v7
    v_add_u32 v8, 5120, v6
    v_add_u32 v9, 5120, v7
    v_add_u32 v21, 10240, v6
    v_add_u32 v22, 10240, v7
    s_waitcnt lgkmcnt(0)
    s_add_u32 s6, s6, {hex(TAGC)}""")
    lab = a.newlabel('GR'); a.label(lab)
    GRB = 88
    srcs = [(6, 0), (6, 256), (7, 0), (8, 0), (8, 256), (9, 0), (21, 0), (21, 256), (22, 0)]
    for i, (v, o) in enumerate(srcs): a(f"global_load_dwordx2 v[{GRB+2*i}:{GRB+2*i+1}], v{v}, s[40:41] offset:{o} sc1")
    a(f"s_waitcnt vmcnt(0)\nv_xor_b32 v5, s6, v{GRB+1}")
    for i in range(1, 9): a(f"v_bitop3_b32 v5, v5, v{GRB+2*i+1}, s6 bitop3:0xf6")
    a("v_cmp_ne_u32 vcc, 0, v5")
    spin_tail(lab, 4)
    for j in range(3):
        a(f"""v_lshlrev_b32 v{40+j}, 16, v{40+j}
        v_mov_b32 v{43+j}, v{GRB+2*j}
        v_mov_b32 v{120+j}, v{GRB+6+2*j}
        v_add_f32 v{123+j}, 1.0, v{GRB+12+2*j}""")
        rbf(123+j, 123+j)
    a("v_mov_b32 v46, 0")
    for t in range(5): a(f"v_lshlrev_b32 v5, 16, v{24+t}\nv_and_b32 v6, s7, v{24+t}\nv_add_f32 v46, v46, v5\nv_add_f32 v46, v46, v6")
    red16('v_add_f32', [46]); red_hi('v_add_f32', [46], [5])
    a(f"""v_mul_f32 v46, {hex(f2u(1/640))}, v46
    v_mul_u32_u24 v21, 10240, v2
    v_lshl_add_u32 v21, v3, 3, v21
    s_mul_i32 s8, s3, 640
    s_add_u32 s9, s8, {WS_G4}
    v_add_u32 v21, s9, v21
    s_mul_i32 s9, s66, 2560
    s_add_u32 s8, s8, s9
    s_add_u32 s8, s8, {WS_G5}
    v_lshl_add_u32 v22, v0, 2, s8
    s_mul_i32 s8, s3, 320
    v_lshl_add_u32 v23, v2, 4, s8
    s_lshl_b32 s8, s3, 7
    v_add_u32 v47, s8, v13
    s_lshl_b32 s8, s3, 3
    v_mov_b32 v9, s8
    s_lshl_b32 s8, s3, 6
    v_lshrrev_b32 v12, 1, v13
    v_add_u32 v12, s8, v12
    s_add_u32 s8, s8, {L_U}
    v_lshl_add_u32 v5, v2, 4, s8
    v_lshrrev_b32 v6, 2, v3
    v_mov_b32 v7, {L_ZERO}""")
    for g in range(4):
        a(f"v_cmp_eq_u32 vcc, {g}, v6\nv_cndmask_b32 v{[2,3,10,11][g]}, v7, v5, vcc")
    if not W2E:
        lds_wait(L_FLAG+8, 15, "L_mgo2", 1)
        a.label("L_mgo2")
        dma(10, 56, [W2A+t for t in range(10)], 0, L_W2)
    a("s_setprio 2\ns_waitcnt vmcnt(10)")
    for ks in range(5):
        for nt in range(2):
            for hf in range(2):
                r = B1 + 8*ks + 4*nt + 2*hf
                a(f"ds_read_b64_tr_b16 v[{r}:{r+1}], v15 offset:{L_W + 2048*ks + 256*hf + 32*nt}")
    B2R = [B2 + 4*nt for nt in range(8)] + [24, 28]
    a("s_waitcnt vmcnt(0)")
    stamp(25)
    XR = [B2 + 2*i for i in range(16)] + [32, 34, 36, 38]
    raw = [r+k for r in XR for k in range(2)]
    a("v_add_u32 v14, 5120, v21")
    for r in raw: a(f"v_mov_b32 v{r}, -1")
    lab = a.newlabel('G4')
    a("s_mov_b64 s[68:69], -1")
    lds_wait(L_FLAG+8, 15, lab, 1)
    a.label(lab)
    a("s_mov_b64 exec, s[68:69]")
    for t in range(5):
        for b in range(4):
            r = XR[4*t+b]
            a(f"global_load_dwordx2 v[{r}:{r+1}], v{21 if b < 2 else 14}, s[40:41] offset:{2560*(b&1)+128*t} sc1")
    a(f"s_mov_b64 exec, -1\ns_waitcnt vmcnt({20*(PD-1)})")
    YR = [24, 28, 26, 30, 4]
    for t in range(5): a(f"v_pk_add_f32 v[{YR[t]}:{YR[t]+1}], v[{XR[4*t]}:{XR[4*t]+1}], v[{XR[4*t+1]}:{XR[4*t+1]+1}]")
    for t in range(5): a(f"v_pk_add_f32 v[{YR[t]}:{YR[t]+1}], v[{YR[t]}:{YR[t]+1}], v[{XR[4*t+2]}:{XR[4*t+2]+1}]")
    for t in range(5): a(f"v_pk_add_f32 v[{YR[t]}:{YR[t]+1}], v[{YR[t]}:{YR[t]+1}], v[{XR[4*t+3]}:{XR[4*t+3]+1}]")
    a("""v_pk_add_f32 v[6:7], v[24:25], v[28:29]
    v_pk_add_f32 v[126:127], v[26:27], v[30:31]
    v_pk_add_f32 v[6:7], v[6:7], v[4:5]
    v_pk_add_f32 v[6:7], v[6:7], v[126:127]""".replace("v[126:127]", "v[44:45]" if False else "v[122:123]") if False else """v_pk_add_f32 v[6:7], v[24:25], v[28:29]
    v_pk_add_f32 v[6:7], v[6:7], v[26:27]
    v_pk_add_f32 v[6:7], v[6:7], v[30:31]
    v_pk_add_f32 v[6:7], v[6:7], v[4:5]""")
    nan_retry([6, 7], raw, lab, 8, True)
    stamp(15)
    a("v_mov_b32 v6, v4\nv_mov_b32 v7, v5")
    for x, y in ((24, 26), (28, 30), (4, 6)):
        a(f"v_permlane32_swap_b32 v{x}, v{y}\nv_permlane32_swap_b32 v{x+1}, v{y+1}")
    for x, y in ((24, 26), (28, 30), (4, 6)): a(f"v_pk_add_f32 v[{x}:{x+1}], v[{x}:{x+1}], v[{y}:{y+1}]")
    rs_step(4, [(24, 25), (28, 29), (4, 5)])
    C3 = [24, 28, 4]
    for c in C3: rbf(c, c)
    for j, c in enumerate(C3): a(f"v_mul_f32 v{c}, v{43+j}, v{c}")
    for c in C3: rbf(c, c)
    for j, c in enumerate(C3): a(f"v_add_f32 v{c}, v{40+j}, v{c}")
    for c in C3: rbf(c, c)
    a(f"""v_sub_f32 v25, v24, v46
    v_sub_f32 v29, v28, v46
    v_sub_f32 v5, v4, v46
    ds_write_b32 v19, v24 offset:{L_X2}
    ds_write_b32 v19, v28 offset:{L_X2+128}
    ds_write_b32 v20, v4 offset:{L_X2}
    v_mul_f32 v26, 0.5, v5
    v_add_f32 v30, v25, v29
    v_mul_f32 v31, v25, v25
    v_add_f32 v30, v30, v26
    v_fmac_f32 v31, v29, v29
    v_fmac_f32 v31, v26, v5""")
    red16('v_add_f32', [30, 31]); red_hi('v_add_f32', [30, 31], [6, 7])
    a(f"""ds_write_b64 v9, v[30:31] offset:{L_ST}
    v_mov_b32 v8, 0
    s_waitcnt vmcnt(0) lgkmcnt(0)
    s_barrier
    ds_read_b128 v[32:35], v8 offset:{L_ST}
    ds_read_b128 v[36:39], v8 offset:{L_ST+16}""")
    for nt in range(8):
        for hf in range(2):
            r = B2R[nt] + 2*hf
            a(f"ds_read_b64_tr_b16 v[{r}:{r+1}], v16 offset:{L_W2 + 1280*hf + 32*nt}")
    a(f"""s_waitcnt lgkmcnt(15)
    v_pk_add_f32 v[32:33], v[32:33], v[34:35]
    v_pk_add_f32 v[36:37], v[36:37], v[38:39]
    v_pk_add_f32 v[32:33], v[32:33], v[36:37]
    v_mul_f32 v32, {hex(f2u(1/640))}, v32
    v_mul_f32 v33, {hex(f2u(1/640))}, v33
    v_fma_f32 v33, -v32, v32, v33
    v_add_f32 v32, v32, v46
    v_max_f32 v33, 0, v33""")
    rbf(32, 32); rbf(33, 33)
    a(f"v_add_f32 v33, {hex(f2u(1e-5))}, v33")
    for c in C3: a(f"v_sub_f32 v{c}, v{c}, v32")
    rbf(33, 33)
    a("v_sqrt_f32 v33, v33")
    for c in C3: rbf(c, c)
    rbf(33, 33)
    a("v_rcp_f32 v33, v33")
    for c in C3: a(f"v_mul_f32 v{c}, v{c}, v33")
    for c in C3: rbf(c, c)
    for j, c in enumerate(C3): a(f"v_mul_f32 v{c}, v{c}, v{123+j}")
    for c in C3: rbf(c, c)
    for j, c in enumerate(C3): a(f"v_add_f32 v{c}, v{c}, v{120+j}")
    for c in C3: a(f"v_cvt_pk_bf16_f32 v{c}, v{c}, v{c}")
    a(f"""ds_write_b16 v17, v24 offset:{L_O}
    ds_write_b16 v17, v28 offset:{L_O+64}
    ds_write_b16 v18, v4 offset:{L_O}""")
    A1 = [24, 28, 32, 36, 40]
    for ks in range(5): a(f"ds_read_b128 v[{A1[ks]}:{A1[ks]+3}], v23 offset:{L_O + 64*ks}")
    D1 = [4, 120]
    for ks in range(5):
        a(f"s_waitcnt lgkmcnt({4-ks})")
        for nt in range(2):
            c = '0' if ks == 0 else f"v[{D1[nt]}:{D1[nt]+3}]"
            a(f"v_mfma_f32_16x16x32_bf16 v[{D1[nt]}:{D1[nt]+3}], v[{A1[ks]}:{A1[ks]+3}], v[{B1+8*ks+4*nt}:{B1+8*ks+4*nt+3}], {c}")
    for nt in range(8, 10):
        for hf in range(2):
            r = B2R[nt] + 2*hf
            a(f"ds_read_b64_tr_b16 v[{r}:{r+1}], v16 offset:{L_W2 + 1280*hf + 32*nt}")
    a(f"""v_cndmask_b32 v8, v4, v120, s[14:15]
    ds_write_b32 v47, v8 offset:{L_WP}
    s_waitcnt lgkmcnt(0)
    s_barrier
    ds_read_b32 v32, v13 offset:{L_WP}
    ds_read_b32 v33, v13 offset:{L_WP+128}
    ds_read_b32 v34, v13 offset:{L_WP+256}
    ds_read_b32 v35, v13 offset:{L_WP+384}
    s_waitcnt lgkmcnt(2)
    v_add_f32 v32, v32, v33
    s_waitcnt lgkmcnt(0)
    v_add_f32 v34, v34, v35
    v_add_f32 v32, v32, v34""")
    rbf(32, 32)
    a(f"""v_mul_f32 v33, s42, v32
    v_exp_f32 v33, -v33
    v_add_f32 v33, 1.0, v33
    v_rcp_f32 v33, v33
    v_mul_f32 v32, v32, v33
    v_cvt_pk_bf16_f32 v32, v32, v32
    ds_write_b16 v12, v32 offset:{L_U}""")
    A2 = [48, 52, 56, 60]
    for g in range(4): a(f"ds_read_b128 v[{A2[g]}:{A2[g]+3}], v{[2,3,10,11][g]}")
    D2 = [64, 68, 72]
    for g in range(4):
        a(f"s_waitcnt lgkmcnt({3-g})")
        for j in range(3):
            nt = 4*j + g
            if nt >= 10: continue
            c = '0' if g == 0 else f"v[{D2[j]}:{D2[j]+3}]"
            a(f"v_mfma_f32_16x16x32_bf16 v[{D2[j]}:{D2[j]+3}], v[{A2[g]}:{A2[g]+3}], v[{B2R[nt]}:{B2R[nt]+3}], {c}")
    a(f"""v_min_u32 v76, -2, v72
    s_mov_b32 exec_hi, 0
    global_store_dword v22, v76, s[40:41] offset:512 sc1
    s_mov_b64 exec, -1
    v_min_u32 v77, -2, v64
    v_min_u32 v78, -2, v68
    global_store_dword v22, v77, s[40:41] sc1
    global_store_dword v22, v78, s[40:41] offset:256 sc1""")
    stamp(16)
    a("s_branch L_end")

    a.label("L_fwave")
    lds_wait(L_ROLE, 1, "L_frole", 4, vz=52)
    a.label("L_frole")
    a(f"""s_sub_u32 s66, s8, 1
    s_cmp_ge_u32 s66, 40
    s_cbranch_scc1 L_end
    v_and_b32 v4, 3, v0
    v_lshrrev_b32 v5, 4, v0
    v_lshl_add_u32 v6, v4, 2, v5
    s_lshl_b32 s8, s66, 4
    v_add_u32 v6, s8, v6
    v_lshlrev_b32 v7, 3, v6
    v_add_u32 v7, {WS_GR + 1920*8}, v7
    s_waitcnt lgkmcnt(0)
    s_add_u32 s6, s6, {hex(TAGC)}""")
    lab = a.newlabel('GF'); a.label(lab)
    a(f"""global_load_dwordx2 v[50:51], v7, s[40:41] sc1
    s_waitcnt vmcnt(0)
    v_cmp_ne_u32 vcc, s6, v51""")
    spin_tail(lab, 4)
    a(f"""v_lshlrev_b32 v8, 2, v6
    v_lshrrev_b32 v7, 2, v0
    v_mul_u32_u24 v7, 2560, v7
    v_lshl_add_u32 v7, v4, 4, v7
    s_lshl_b32 s8, s66, 6
    s_add_u32 s8, s8, {WS_G5}
    v_add_u32 v7, s8, v7
    v_add_u32 v52, {16*2560}, v7
    v_add_u32 v53, {32*2560}, v7
    v_lshlrev_b32 v6, 1, v6
    v_mov_b32 v4, {WS_EPOCH}
    v_mov_b32 v5, s6""")
    for r in range(24, 36): a(f"v_mov_b32 v{r}, -1")
    a(f"""s_barrier
    ds_read_b32 v48, v8 offset:{L_X2}
    s_waitcnt lgkmcnt(0)
    s_barrier""")
    a("s_mov_b64 s[68:69], -1")
    lab = a.newlabel('G5'); a.label(lab)
    a(f"""s_mov_b64 exec, s[68:69]
    global_load_dwordx4 v[24:27], v7, s[40:41] sc1
    global_load_dwordx4 v[28:31], v52, s[40:41] sc1
    global_load_dwordx4 v[32:35], v53, s[40:41] sc1
    s_mov_b64 exec, -1
    s_waitcnt vmcnt({3*(PDF-1)})
    v_pk_add_f32 v[36:37], v[24:25], v[28:29]
    v_pk_add_f32 v[38:39], v[26:27], v[30:31]
    v_pk_add_f32 v[36:37], v[36:37], v[32:33]
    v_pk_add_f32 v[38:39], v[38:39], v[34:35]
    v_pk_add_f32 v[42:43], v[36:37], v[38:39]""")
    nan_retry([42, 43], list(range(24, 36)), lab, 40, True)
    stamp(17)
    rs_step(5, [(36, 38), (37, 39)])
    rs_step(4, [(36, 37)])
    dpp('v_add_f32', 36, 36, 36, 'row_ror:8'); dpp('v_add_f32', 36, 36, 36, 'row_ror:4')
    rbf(36, 36)
    a("v_mul_f32 v36, v50, v36"); rbf(36, 36)
    a(f"""v_add_f32 v36, v48, v36
    v_cvt_pk_bf16_f32 v36, v36, v36
    s_mov_b32 exec_lo, 0x000f000f
    s_mov_b32 exec_hi, 0x000f000f
    global_store_short v6, v36, s[36:37]
    s_cmp_lg_u32 s66, 0
    s_cbranch_scc1 L_fend
    s_mov_b64 exec, 1
    global_store_dword v4, v5, s[40:41] sc1""")
    a.label("L_fend")
    a("s_mov_b64 exec, -1")
    stamp(18)
    a.label("L_end")
    if STAMP:
        a(f"""s_mov_b64 exec, -1
        v_writelane_b32 v126, s67, 27
        v_writelane_b32 v126, s63, 28
        s_lshl_b32 s8, s2, 4
        s_add_u32 s8, s8, s3
        s_lshl_b32 s8, s8, 8
        s_add_u32 s8, s8, {WS_ST}
        v_lshl_add_u32 v4, v0, 2, s8
        global_store_dword v4, v126, s[40:41]""")
    a.label("L_exit")
    a("s_endpgm")

    body = a.text()
    out = HEADER
    out += f"; @launch grid=(256,1,1) block=(1024,1,1) lds={LDS_BYTES}\n"
    out += '.amdgcn_target "amdgcn-amd-amdhsa--gfx950"\n.text\n'
    out += f".globl {KN}\n.p2align 8\n.type {KN},@function\n{KN}:\n" + body
    out += f""".section .rodata,"a"
.p2align 6
.amdhsa_kernel {KN}
  .amdhsa_next_free_vgpr 128
  .amdhsa_next_free_sgpr 102
  .amdhsa_accum_offset 128
  .amdhsa_group_segment_fixed_size 0
  .amdhsa_kernarg_size 104
  .amdhsa_user_sgpr_count 2
  .amdhsa_user_sgpr_kernarg_segment_ptr 1
  .amdhsa_system_sgpr_workgroup_id_x 1
  .amdhsa_float_denorm_mode_32 3
.end_amdhsa_kernel
"""
    return out

if __name__ == '__main__':
    import json
    P = json.loads(sys.argv[2]) if len(sys.argv) > 2 else {}
    open(sys.argv[1], 'w').write(gen(P))
```

```python
import sys, math
from asmlib import Asm, f2u

KN = "adaLN_cond__gqa_block_cached__dense_activation_silu__decode_kernel"
HEADER = open('adaLN_cond__gqa_block_cached__dense_activation_silu__decode.s.ref').read().split('; Override')[0]

WS_EPOCH = 0
WS_CNT = 0x1000; CNT_STRIDE = 1152
WS_GM = 0x10000
WS_GR = WS_GM + 1280*8
WS_G1 = 0x20000
WS_GQ = 0x30000
WS_G3 = 0x100000
WS_G5 = WS_G3 + 0x40000
WS_G4 = WS_G5 + 48*2560
WS_ST = 0x200000
TAGC = 0x9E3779B9
NUNITS = 2048
HEADB = 16384*384
L_Q = 0
L_FLAG = 512
L_ZERO = 528
L_ROLE = L_FLAG + 12
L_ML = 576
L_ST = 704
L_O = 1024
L_U = 2560
L_WP = 3072
L_X2 = 4096
L_PART = 6912
L_TP = 6912
L_W = 16384
L_W2 = L_W + 40960
LDS_BYTES = L_W + 81920

def gen(P):
    a = Asm()
    NSW = 12
    NB = P.get('nb', 2)
    PW = P.get('pw', 4)
    SLOW = {int(k): v for k, v in P.get('slow', {1: 0, 3: 1}).items()}
    STAMP = P.get('stamp', 0)
    SPIN = P.get('spin', 400000)
    NST = P.get('nst', 10)
    NL = P.get('nl', 1)
    TRIG = P.get('trig', 12)
    W2E = P.get('w2e', 1)
    PDF = P.get('pdf', 2)
    PD = P.get('pd', 1)
    NSTAT = 8*(NSW*(NB+NL+1) + NST)
    LD = 'nt'

    vL, vOFF = 0, 1
    vT = list(range(2, 10))
    vQ = 10
    vM, vLS = 22, 23
    vACC = 24
    vAK, vAV = 48, 60
    vB = [72, 96]
    vU = 120
    vTK = 127

    def stamp(k, cond_wave=None, r=None):
        if not STAMP: return
        a(f"""s_memrealtime s[92:93]
        s_waitcnt lgkmcnt(0)
        v_writelane_b32 v126, s92, {k}""")

    def rbf(d, s):
        a(f"v_cvt_pk_bf16_f32 v{d}, v{s}, v{s}\nv_and_b32 v{d}, s7, v{d}")

    def dpp(op, d, s0, s1, ctl):
        a(f"{op}_dpp v{d}, v{s0}, v{s1} {ctl} row_mask:0xf bank_mask:0xf")

    def red8(op, x):
        dpp(op, x, x, x, "quad_perm:[1,0,3,2]"); dpp(op, x, x, x, "quad_perm:[2,3,0,1]"); dpp(op, x, x, x, "row_half_mirror")
    def red16(op, xs):
        for ctl in ("quad_perm:[1,0,3,2]", "quad_perm:[2,3,0,1]", "row_half_mirror", "row_mirror"):
            for x in xs: dpp(op, x, x, x, ctl)
    def red_hi(op, xs, ts, bits=(4, 5)):
        for b in bits:
            sw = 'v_permlane16_swap_b32' if b == 4 else 'v_permlane32_swap_b32'
            for x, t in zip(xs, ts): a(f"v_mov_b32 v{t}, v{x}")
            for x, t in zip(xs, ts): a(f"{sw} v{x}, v{t}")
            for x, t in zip(xs, ts): a(f"{op} v{x}, v{x}, v{t}")
    def rs_step(bit, pairs):
        sw = 'v_permlane16_swap_b32' if bit == 4 else 'v_permlane32_swap_b32'
        for x, y in pairs: a(f"{sw} v{x}, v{y}")
        for x, y in pairs: a(f"v_add_f32 v{x}, v{x}, v{y}")

    def spin_tail(lab_retry, slp=1):
        done = a.newlabel('GD')
        a(f"""s_cbranch_vccz {done}
        s_add_u32 s67, s67, 1
        s_cmp_gt_u32 s67, {SPIN}
        s_cbranch_scc1 L_end
        s_sleep {slp}
        s_branch {lab_retry}""")
        a.label(done)

    def tile_dots(acc, tile, nrb, chi, clo):
        for rb in range(nrb):
            for d in range(4):
                a(f"v_dot2c_f32_bf16 v{acc+2*d}, v{tile+4*rb+d}, v{clo[rb]}")
                a(f"v_dot2c_f32_bf16 v{acc+2*d+1}, v{tile+4*rb+d}, v{chi[rb]}")
    def tile_reduce8(acc, sel):
        rs_step(5, [(acc+i, acc+4+i) for i in range(4)])
        rs_step(4, [(acc+i, acc+2+i) for i in range(2)])
        dpp('v_add_f32', acc, acc, acc, 'row_ror:8'); dpp('v_add_f32', acc+1, acc+1, acc+1, 'row_ror:8')
        a(f"v_cndmask_b32 v{acc}, v{acc}, v{acc+1}, {sel}")
    def tile_reduce4(acc):
        rs_step(5, [(acc+i, acc+4+i) for i in range(4)])
        rs_step(4, [(acc+i, acc+2+i) for i in range(2)])
        for ctl in ('row_ror:8', 'row_ror:4'):
            dpp('v_add_f32', acc, acc, acc, ctl); dpp('v_add_f32', acc+1, acc+1, acc+1, ctl)

    def loadK(r):
        for j in range(3): a(f"buffer_load_dwordx4 v[{r+4*j}:{r+4*j+3}], v{vOFF}, s[44:47], s62 offen offset:{128*j} {LD}")
    def loadV(r):
        for j in range(3): a(f"buffer_load_dwordx4 v[{r+4*j}:{r+4*j+3}], v{vOFF}, s[48:51], s62 offen offset:{128*j} {LD}")
    def ticket():
        a(f"""s_mov_b64 exec, 1
        global_atomic_add v{vTK}, v{vU+4}, v{vU+5}, s[60:61] sc0
        s_mov_b64 exec, -1""")
    def qk_dots(K):
        t0, t1, t2 = vT[0], vT[1], vT[2]
        a(f"v_mov_b32 v{t0}, 0\nv_mov_b32 v{t1}, 0\nv_mov_b32 v{t2}, 0")
        for r in range(4):
            for j in range(3):
                a(f"v_dot2c_f32_bf16 v{vT[j]}, v{K+4*j+r}, v{vQ+4*j+r}")
    def softmax(last=False):
        t0, t1, t2, t3, p, al = vT[0], vT[1], vT[2], vT[3], vT[4], vT[6]
        a(f"v_add_f32 v{t0}, v{t0}, v{t1}\nv_add_f32 v{t0}, v{t0}, v{t2}")
        red8('v_add_f32', t0)
        rbf(t0, t0)
        a(f"v_mul_f32 v{t0}, s43, v{t0}")
        rbf(t0, t0)
        a(f"v_max_f32 v{t1}, v{vM}, v{t0}")
        if last:
            dpp('v_max_f32', t1, t1, t1, 'row_ror:8')
            red_hi('v_max_f32', [t1], [t2])
        a(f"""v_sub_f32 v{t2}, v{vM}, v{t1}
        v_sub_f32 v{t3}, v{t0}, v{t1}
        v_mul_f32 v{t2}, s42, v{t2}
        v_mul_f32 v{t3}, s42, v{t3}
        v_exp_f32 v{al}, v{t2}
        v_exp_f32 v{p}, v{t3}
        v_mov_b32 v{vM}, v{t1}
        v_fma_f32 v{vLS}, v{vLS}, v{al}, v{p}""")
        if last:
            dpp('v_add_f32', vLS, vLS, vLS, 'row_ror:8')
            red_hi('v_add_f32', [vLS], [t2])
            a(f"""s_lshl_b32 s8, s3, 3
            v_mov_b32 v{t2}, s8
            v_mov_b32 v{t0}, 0
            v_mov_b32 v{t1}, 1
            s_mov_b64 exec, 1
            ds_write_b64 v{t2}, v[{vM}:{vLS}] offset:{L_ML-32}
            ds_add_u32 v{t0}, v{t1} offset:{L_FLAG+4}
            s_mov_b64 exec, -1""")
        for i in range(12):
            r = vACC + 2*i
            a(f"v_pk_mul_f32 v[{r}:{r+1}], v[{r}:{r+1}], v[{al}:{al+1}] op_sel_hi:[1,0]")
    def lds_wait(off, val, lab, slp, cmp='ge', vz=4, vd=5):
        top = a.newlabel('LW'); a.label(top)
        a(f"""ds_read_b32 v{vd}, v{vz} offset:{off}
        s_waitcnt lgkmcnt(0)
        v_readfirstlane_b32 s8, v{vd}
        s_cmp_ge_u32 s8, {val}
        s_cbranch_scc1 {lab}
        s_add_u32 s67, s67, 1
        s_cmp_gt_u32 s67, {SPIN*8}
        s_cbranch_scc1 L_end""")
        if slp: a(f"s_sleep {slp}")
        a(f"s_branch {top}")
    def part_addr():
        a(f"""v_lshrrev_b32 v52, 3, v0
        v_and_b32 v53, 7, v0
        v_mul_u32_u24 v52, 3, v52
        s_mul_i32 s8, s3, 768
        s_add_u32 s8, s8, {L_PART-4*768}
        v_lshl_add_u32 v53, v53, 5, s8
        s_mov_b32 s12, 0xff00ff00
        s_mov_b32 s13, 0xff00ff00""")
        for i in range(3):
            a(f"""v_add_u32 v54, {i}, v52
            v_lshrrev_b32 v55, 3, v54
            v_and_b32 v54, 7, v54
            v_lshl_add_u32 v55, v55, 8, v53
            v_lshl_add_u32 v{48+i}, v54, 2, v55""")
        a("v_mov_b32 v52, 0\nv_mov_b32 v53, 1")
    def part_write():
        for i in range(12): a(f"v_permlane32_swap_b32 v{vACC+i}, v{vACC+12+i}")
        for i in range(0, 12, 2): a(f"v_pk_add_f32 v[{vACC+i}:{vACC+i+1}], v[{vACC+i}:{vACC+i+1}], v[{vACC+12+i}:{vACC+13+i}]")
        for i in range(6): a(f"v_permlane16_swap_b32 v{vACC+i}, v{vACC+6+i}")
        for i in range(0, 6, 2): a(f"v_pk_add_f32 v[{vACC+i}:{vACC+i+1}], v[{vACC+i}:{vACC+i+1}], v[{vACC+6+i}:{vACC+7+i}]")
        for i in range(6): dpp('v_add_f32', vACC+i, vACC+i, vACC+i, 'row_ror:8')
        for i in range(3): a(f"v_cndmask_b32 v{vACC+i}, v{vACC+i}, v{vACC+3+i}, s[12:13]")
        for i in range(3): a(f"ds_write_b32 v{48+i}, v{vACC+i}")
        a(f"""s_mov_b64 exec, 1
        ds_add_u32 v52, v53 offset:{L_FLAG+8}
        s_mov_b64 exec, -1""")
    def nan_retry(regs, raw, lab, tmp, masked=False):
        done = a.newlabel('NR')
        if len(regs) == 1: a(f"v_cmp_u_f32 vcc, v{regs[0]}, v{regs[0]}")
        elif len(regs) == 2: a(f"v_cmp_u_f32 vcc, v{regs[0]}, v{regs[1]}")
        else: a(f"v_add_f32 v{tmp}, v{regs[0]}, v{regs[1]}\nv_cmp_u_f32 vcc, v{tmp}, v{regs[2]}")
        a(f"s_cbranch_vccz {done}")
        if masked: a("s_mov_b64 s[68:69], vcc")
        a(f"""s_add_u32 s67, s67, 1
        s_and_b32 s8, s67, 15
        s_cbranch_scc1 {lab}
        s_cmp_gt_u32 s67, {SPIN}
        s_cbranch_scc1 L_end
        s_cmp_eq_u32 s63, 1
        s_cbranch_scc1 {done}""")
        a(f"v_mov_b32 v{tmp}, v{raw[0]}")
        for i in range(1, len(raw), 2):
            if i+1 < len(raw): a(f"v_max3_u32 v{tmp}, v{tmp}, v{raw[i]}, v{raw[i+1]}")
            else: a(f"v_max_u32 v{tmp}, v{tmp}, v{raw[i]}")
        a(f"""v_cmp_eq_u32 vcc, -1, v{tmp}
        s_cbranch_vccnz {lab}
        s_mov_b32 s63, 1
        s_branch {lab}""")
        a.label(done)
    def pv(V):
        p = vT[4]
        for i in range(12):
            t = vU + 2*(i & 1)
            r = vACC + 2*i
            a(f"""v_lshlrev_b32 v{t}, 16, v{V+i}
            v_and_b32 v{t+1}, s7, v{V+i}
            v_pk_fma_f32 v[{r}:{r+1}], v[{t}:{t+1}], v[{p}:{p+1}], v[{r}:{r+1}] op_sel_hi:[1,0,1]""")

    if STAMP: a("s_memrealtime s[98:99]\nv_mov_b32 v126, 0")
    a(f"""s_cmp_ge_u32 s2, 256
    s_cbranch_scc1 L_exit
    s_load_dwordx16 s[16:31], s[0:1], 0
    s_load_dwordx8 s[32:39], s[0:1], 64
    s_load_dwordx2 s[40:41], s[0:1], 96
    v_lshrrev_b32 v1, 6, v0
    v_readfirstlane_b32 s3, v1
    v_and_b32 v0, 63, v0""")
    if P.get('warm', 0):
        a(f"""s_cmp_ge_u32 s2, {P.get('warmwg', 16)}
        s_cbranch_scc1 L_nowarm
        s_cmp_lg_u32 s3, 15
        s_cbranch_scc1 L_nowarm
        s_getpc_b64 s[52:53]""")
        a.label("L_pc")
        a(f"""s_sub_u32 s52, s52, L_pc-{KN}
        s_subb_u32 s53, s53, 0
        s_mov_b32 s54, L_exit+4-{KN}
        s_mov_b32 s55, 0x20000
        v_lshlrev_b32 v5, 4, v0""")
        for i in range(P.get('warm')):
            a(f"s_mov_b32 s8, {1024*i}\nbuffer_load_dwordx4 v[120:123], v5, s[52:55], s8 offen")
        a.label("L_nowarm")
    a(f"""s_lshr_b32 s4, s2, 3
    s_lshl_b32 s5, s2, 2
    s_add_u32 s4, s4, s5
    s_and_b32 s4, s4, 31
    s_lshr_b32 s5, s2, 5
    s_mov_b32 s7, 0xffff0000
    s_mov_b32 s42, {hex(f2u(math.log2(math.e)))}
    s_mov_b32 s43, {hex(f2u(192 ** -0.5))}
    s_mov_b32 s67, 0
    s_mov_b32 s63, 0
    v_lshrrev_b32 v2, 3, v0
    v_and_b32 v3, 7, v0
    v_mul_u32_u24 v1, 384, v2
    v_lshl_add_u32 v1, v3, 4, v1
    s_mul_i32 s8, s4, {HEADB}
    s_mov_b32 s46, {HEADB}
    s_mov_b32 s47, 0x20000
    s_mov_b32 s50, {HEADB}
    s_mov_b32 s51, 0x20000
    s_mov_b32 s55, 0x20000
    s_mov_b32 s59, 0x20000
    s_mul_i32 s9, s4, {CNT_STRIDE}
    s_add_u32 s9, s9, {WS_CNT}
    v_mov_b32 v4, 0
    v_mov_b32 v5, 0
    v_mov_b32 v6, 0
    v_mov_b32 v7, 0
    ds_write_b128 v4, v[4:7] offset:{L_FLAG}
    ds_write_b128 v4, v[4:7] offset:{L_ZERO}
    s_waitcnt lgkmcnt(0)
    s_barrier""")
    if STAMP: a("v_writelane_b32 v126, s98, 22")
    stamp(23)
    a(f"""s_add_u32 s44, s18, s8
    s_addc_u32 s45, s19, 0
    s_add_u32 s48, s20, s8
    s_addc_u32 s49, s21, 0
    s_add_u32 s60, s40, s9
    s_addc_u32 s61, s41, 0
    s_load_dword s6, s[40:41], {WS_EPOCH}
    s_mov_b32 s12, 0xff00ff00
    s_mov_b32 s13, 0xff00ff00
    s_cmp_lt_u32 s5, 3
    s_cbranch_scc1 L_qtile
    s_cmp_ge_u32 s2, 176
    s_cbranch_scc1 L_roles""")
    TILE = 48; CH = 24; CL = 30; TA = 40
    def tile_loads(stride, n=5):
        a(f"""s_mul_i32 s10, s3, {8*n*stride}
        v_mul_u32_u24 v4, {stride}, v2
        v_lshl_add_u32 v4, v3, 4, v4""")
        for t in range(n):
            a(f"buffer_load_dwordx4 v[{TILE+4*t}:{TILE+4*t+3}], v4, s[52:55], s10 offen {LD}")
            if t < n-1: a(f"s_add_u32 s10, s10, {8*stride}")
    def tile_finish(n=5, nwv=16, join=None):
        tile_dots(TA, TILE, n, [CH+t for t in range(n)], [CL+t for t in range(n)])
        tile_reduce8(TA, 's[12:13]')
        a(f"""ds_write_b32 v5, v{TA} offset:{L_TP}""")
        stamp(20)
        if join: a.label(join)
        a(f"""s_waitcnt vmcnt(0) lgkmcnt(0)
        s_barrier""")
        stamp(21)
        a(f"""s_cmp_lg_u32 s3, 0
        s_cbranch_scc1 L_tilebar
        v_lshlrev_b32 v5, 2, v0
        v_add_u32 v5, {L_TP}, v5""")
        for k in range(nwv//2): a(f"ds_read2st64_b32 v[{24+2*k}:{25+2*k}], v5 offset0:{2*k} offset1:{2*k+1}")
        for k in range(nwv//2):
            a(f"s_waitcnt lgkmcnt({nwv//2-1-k})")
            a(f"v_add_f32 v{24+2*k}, v{24+2*k}, v{25+2*k}")
            if k & 1: a(f"v_add_f32 v{22+2*k}, v{22+2*k}, v{24+2*k}")
        tops = [24+4*k for k in range((nwv//2+1)//2)]
        while len(tops) > 1:
            nxt = []
            for i in range(0, len(tops)-1, 2):
                a(f"v_add_f32 v{tops[i]}, v{tops[i]}, v{tops[i+1]}"); nxt.append(tops[i])
            if len(tops) & 1: nxt.append(tops[-1])
            tops = nxt
    def tile_ldsaddr():
        a(f"""v_lshl_add_u32 v5, v3, 3, v2
        s_lshl_b32 s8, s3, 8
        v_lshl_add_u32 v5, v5, 2, s8""")
        for i in range(8): a(f"v_mov_b32 v{TA+i}, 0")
    a.label("L_modtile")
    a(f"""s_sub_u32 s9, s2, 96
    s_cmp_ge_u32 s3, 10
    s_cbranch_scc1 L_poison
    s_lshr_b32 s11, s9, 2
    s_and_b32 s15, s9, 3
    s_lshl_b32 s14, s11, 7
    s_mul_i32 s8, s15, {160*7680}
    s_add_u32 s14, s14, s8
    s_add_u32 s52, s34, s14
    s_addc_u32 s53, s35, 0
    s_sub_u32 s54, {640*7680}, s14
    s_mul_i32 s14, s15, 320
    s_lshl_b32 s8, s3, 5
    s_add_u32 s14, s14, s8
    v_lshl_add_u32 v7, v2, 1, s14""")
    for t in range(2): a(f"global_load_ushort v{CH+t}, v7, s[32:33] offset:{16*t}")
    tile_loads(7680, 2)
    tile_ldsaddr()
    a(f"""s_mul_i32 s14, s15, 10240
    s_lshl_b32 s8, s11, 9
    s_add_u32 s14, s14, s8
    s_add_u32 s14, s14, {WS_G1}
    v_lshl_add_u32 v6, v0, 3, s14
    s_waitcnt vmcnt(2)""")
    for t in range(2):
        x, u = CH+t, CL+t
        a(f"""v_lshlrev_b32 v{x}, 16, v{x}
        v_mul_f32 v{u}, s42, v{x}
        v_exp_f32 v{u}, -v{u}
        v_add_f32 v{u}, 1.0, v{u}
        v_rcp_f32 v{u}, v{u}
        v_mul_f32 v{x}, v{x}, v{u}""")
        rbf(x, x)
        a(f"v_lshrrev_b32 v{u}, 16, v{x}")
    a("s_waitcnt vmcnt(0)")
    stamp(19)
    tile_finish(2, 10, "L_modjoin")
    a(f"""s_add_u32 s8, s6, {hex(TAGC)}
    v_mov_b32 v25, s8
    global_store_dwordx2 v6, v[24:25], s[40:41] sc1""")
    stamp(6)
    a("s_branch L_tilebar")
    a.label("L_poison")
    a(f"""s_mul_i32 s14, s9, 6
    s_add_u32 s14, s14, s3
    s_lshl_b32 s14, s14, 10
    s_add_u32 s14, s14, {WS_G3 - 10*1024}
    v_lshl_add_u32 v6, v0, 4, s14
    v_mov_b32 v88, -1
    v_mov_b32 v89, -1
    v_mov_b32 v90, -1
    v_mov_b32 v91, -1
    global_store_dwordx4 v6, v[88:91], s[40:41] sc1
    s_cmp_lg_u32 s3, 15
    s_cbranch_scc1 L_modjoin
    s_cmp_ge_u32 s9, 40
    s_cbranch_scc1 L_modjoin
    s_mul_i32 s14, s9, {CNT_STRIDE}
    s_add_u32 s14, s14, {WS_CNT}
    v_mov_b32 v6, s14
    v_mov_b32 v8, 0
    s_mov_b64 exec, 1
    global_store_dword v6, v8, s[40:41] sc1
    s_mov_b64 exec, -1
    s_branch L_modjoin""")
    a.label("L_qtile")
    a(f"""s_mul_i32 s8, s4, 384
    s_lshl_b32 s9, s5, 7
    s_add_u32 s8, s8, s9
    s_add_u32 s52, s22, s8
    s_addc_u32 s53, s23, 0
    s_sub_u32 s54, {640*12288}, s8
    v_lshlrev_b32 v5, 2, v0
    s_mul_i32 s14, s3, 40
    v_add_u32 v8, s14, v3
    v_lshlrev_b32 v7, 1, v8""")
    for t in range(5): a(f"global_load_dword v{70+t}, v5, s[16:17] offset:{256*t}")
    for t in range(5): a(f"global_load_ushort v{CL+t}, v7, s[16:17] offset:{16*t}")
    tile_loads(12288)
    a("s_barrier")
    a(f"""v_lshlrev_b32 v8, 3, v8
    v_and_b32 v9, 3, v2
    v_mul_u32_u24 v9, 10240, v9
    v_add_u32 v8, v8, v9
    v_lshrrev_b32 v9, 5, v0
    v_mul_u32_u24 v9, 5120, v9
    v_add_u32 v8, v8, v9
    v_add_u32 v8, {WS_G1}, v8
    v_lshlrev_b32 v9, 2, v2""")
    tile_ldsaddr()
    a(f"""v_lshrrev_b32 v10, 1, v0
    v_mul_u32_u24 v11, 43, v10
    v_lshrrev_b32 v11, 7, v11
    v_add_u32 v11, v11, v10
    v_lshlrev_b32 v11, 2, v11
    v_lshlrev_b32 v10, 4, v10
    v_add_u32 v10, 12, v10
    v_and_b32 v12, 1, v0
    v_cmp_eq_u32 s[14:15], 1, v12
    s_mul_i32 s8, s4, 768
    s_lshl_b32 s9, s5, 8
    s_add_u32 s8, s8, s9
    s_add_u32 s8, s8, {WS_GQ}
    v_cndmask_b32 v10, v11, v10, s[14:15]
    v_add_u32 v10, s8, v10
    s_waitcnt vmcnt(5)""")
    for t in range(5):
        a(f"v_lshlrev_b32 v{76+2*t}, 16, v{70+t}\nv_and_b32 v{77+2*t}, s7, v{70+t}")
    a("v_add_f32 v70, v76, v77")
    for i in range(2, 10): a(f"v_add_f32 v70, v70, v{76+i}")
    red16('v_add_f32', [70]); red_hi('v_add_f32', [70], [71])
    a(f"v_mul_f32 v70, {hex(f2u(1/640))}, v70")
    a("v_mov_b32 v72, 0")
    for i in range(10): a(f"v_sub_f32 v{76+i}, v{76+i}, v70\nv_fmac_f32 v72, v{76+i}, v{76+i}")
    red16('v_add_f32', [72]); red_hi('v_add_f32', [72], [71])
    a(f"v_mul_f32 v72, {hex(f2u(1/640))}, v72")
    rbf(70, 70); rbf(72, 72)
    a(f"v_add_f32 v72, {hex(f2u(1e-5))}, v72")
    rbf(72, 72)
    a("v_sqrt_f32 v72, v72")
    rbf(72, 72)
    a("v_rcp_f32 v72, v72")
    for t in range(5):
        r = CL+t
        a(f"v_lshlrev_b32 v{r}, 16, v{r}\nv_sub_f32 v{r}, v{r}, v70")
        rbf(r, r)
        a(f"v_mul_f32 v{r}, v{r}, v72")
        rbf(r, r)
    a(f"s_waitcnt lgkmcnt(0)\ns_add_u32 s11, s6, {hex(TAGC)}")
    stamp(2, 0, 108)
    GG = 88
    lab = a.newlabel('GM'); a.label(lab)
    for t in range(5):
        a(f"global_load_dwordx2 v[{GG+2*t}:{GG+2*t+1}], v8, s[40:41] offset:{64*t} sc1")
    a("s_waitcnt vmcnt(0)")
    a(f"v_xor_b32 v70, s11, v{GG+1}")
    for k in range(1, 5): a(f"v_bitop3_b32 v70, v70, v{GG+2*k+1}, s11 bitop3:0xf6")
    a("v_cmp_ne_u32 vcc, 0, v70")
    spin_tail(lab, P.get('gmslp', 2))
    stamp(3)
    xs = [GG+2*t for t in range(5)]; ys = [GG+2*t+1 for t in range(5)]
    for x in xs: dpp('v_add_f32', x, x, x, 'row_ror:8')
    red_hi('v_add_f32', xs, ys, bits=(4,))
    for x in xs: rbf(x, x)
    for x, y in zip(xs, ys): a(f"v_mov_b32 v{y}, v{x}")
    for x, y in zip(xs, ys): a(f"v_permlane32_swap_b32 v{x}, v{y}")
    for y in ys: a(f"v_add_f32 v{y}, 1.0, v{y}")
    for y in ys: rbf(y, y)
    for t in range(5): a(f"v_mul_f32 v{ys[t]}, v{CL+t}, v{ys[t]}")
    for y in ys: rbf(y, y)
    for x, y in zip(xs, ys): a(f"v_add_f32 v{y}, v{y}, v{x}")
    for y in ys: a(f"v_cvt_pk_bf16_f32 v{y}, v{y}, 0")
    for t in range(5): a(f"ds_bpermute_b32 v{CL+t}, v9, v{ys[t]}")
    for t in range(5): a(f"s_waitcnt lgkmcnt({4-t})\nv_lshlrev_b32 v{CH+t}, 16, v{CL+t}")
    tile_finish()
    a(f"""v_mov_b32_dpp v25, v24 quad_perm:[1,0,3,2] row_mask:0xf bank_mask:0xf
    v_mov_b32 v26, s11
    v_cvt_pk_bf16_f32 v24, v24, v25
    v_cndmask_b32 v24, v24, v26, s[14:15]
    s_mov_b32 exec_lo, 0x557fffff
    s_mov_b32 exec_hi, 0x55555555
    global_store_dword v10, v24, s[40:41] sc1
    s_mov_b64 exec, -1""")
    stamp(4, 0, 108)
    a.label("L_tilebar")
    a("s_barrier")
    a.label("L_roles")
    a(f"""s_cmp_lt_u32 s3, 4
    s_cbranch_scc1 L_chain""")
    a(f"""s_mul_i32 s8, s5, {NSW}
    s_add_u32 s8, s8, s3
    s_sub_u32 s8, s8, 4
    s_mul_i32 s62, s8, 3072""")
    stamp(0, 4)

    bufs = [(vAK, vAV)] + [(vB[i], vB[i]+12) for i in range(NB)]
    issued = 0
    for bi, (kr, vr) in enumerate(bufs):
        for which in (0, 1):
            for j in range(3):
                if issued in SLOW: a(f"s_waitcnt vmcnt({SLOW[issued]})")
                elif issued >= PW: a(f"s_waitcnt vmcnt({PW-1})")
                r = (kr if which == 0 else vr) + 4*j
                a(f"buffer_load_dwordx4 v[{r}:{r+3}], v{vOFF}, s[{44+4*which}:{47+4*which}], s62 offen offset:{128*j} {LD}")
                issued += 1
        if bi < NB + NL: a(f"s_add_u32 s62, s62, {96*3072}")
    if NL: a(f"s_sub_u32 s11, s3, 4\ns_mul_i32 s11, s11, {6144*NL}\nv_lshl_add_u32 v9, v0, 4, s11")
    for li in range(NL):
        for which in (0, 1):
            for j in range(3):
                a(f"s_waitcnt vmcnt({PW-1})")
                a(f"s_add_u32 m0, s11, {L_W + 6144*li + 3072*which + 896*j}")
                a(f"buffer_load_dwordx4 v{vOFF}, s[{44+4*which}:{47+4*which}], s62 offen offset:{128*j} {LD} lds")
        if li < NL-1: a(f"s_add_u32 s62, s62, {96*3072}")
    a(f"""s_mul_i32 s8, s5, {NST}
    s_add_u32 s8, s8, s3
    s_add_u32 s8, s8, {96*(NB+NL+1) - 4}
    s_mul_i32 s62, s8, 3072
    v_mov_b32 v4, 0""")
    stamp(1, 4)
    lds_wait(L_FLAG, 3, "L_qready", 1)

    a.label("L_chain")
    a(f"""s_cmp_eq_u32 s3, 3
    s_cbranch_scc1 L_xwave
    s_setprio 2
    s_mul_i32 s8, s4, 768
    s_lshl_b32 s9, s3, 8
    s_add_u32 s8, s8, s9
    s_add_u32 s8, s8, {WS_GQ}
    s_add_u32 s60, s40, s8
    s_addc_u32 s61, s41, 0
    v_lshlrev_b32 v5, 2, v0
    v_lshl_add_u32 v5, s3, 7, v5
    v_mov_b32 v6, 0
    v_mov_b32 v7, 1
    s_waitcnt lgkmcnt(0)
    s_add_u32 s88, s6, {hex(TAGC)}""")
    def qreg(k):
        if k < 16: return 44 + k
        if k < 32: return 68 + k - 16
        if k < 40: return 8 + k - 32
        return 84 + k - 40
    a.label("L_qpoll")
    a(f"""s_load_dwordx16 s[44:59], s[60:61], 0 glc
    s_load_dwordx16 s[68:83], s[60:61], 64 glc
    s_load_dwordx8 s[8:15], s[60:61], 128 glc
    s_load_dwordx4 s[84:87], s[60:61], 160 glc
    s_waitcnt lgkmcnt(0)
    s_xor_b32 s89, s{qreg(3)}, s88""")
    for g in range(1, 11): a(f"s_xor_b32 s90, s{qreg(4*g+3)}, s88\ns_or_b32 s89, s89, s90")
    a(f"""s_cbranch_scc0 L_qgot
    s_add_u32 s67, s67, 1
    s_cmp_gt_u32 s67, {SPIN}
    s_cbranch_scc1 L_end
    s_sleep 2
    s_branch L_qpoll""")
    a.label("L_qgot")
    for i in range(32): a(f"v_writelane_b32 v4, s{qreg(4*(i//3) + i%3)}, {i}")
    a(f"""s_mov_b32 exec_hi, 0
    ds_write_b32 v5, v4 offset:{L_Q}
    s_mov_b64 exec, 1
    ds_add_u32 v6, v7 offset:{L_FLAG}
    s_mov_b64 exec, -1""")
    stamp(5, 0, 44)
    a("s_branch L_tail")

    a.label("L_xwave")
    XT = 48; XG = 88
    a(f"""s_cmp_lt_u32 s2, 216
    s_cbranch_scc1 L_tail
    s_sub_u32 s9, s2, 196""")
    a.label("L_xrest")
    a(f"""v_mul_u32_u24 v4, 7680, v2
    v_lshl_add_u32 v4, v3, 4, v4
    s_lshl_b32 s14, s9, 7
    s_add_u32 s52, s34, s14
    s_addc_u32 s53, s35, 0
    s_sub_u32 s54, {640*7680}, s14
    s_mov_b32 s10, 0
    s_mov_b32 s11, 0
    v_lshlrev_b32 v7, 1, v2
    v_mov_b32 v6, 0""")
    for i in range(8): a(f"v_mov_b32 v{XG+i}, 0")
    lds_wait(L_FLAG, 3, "L_xrloop", 4, vz=6)
    a.label("L_xrloop")
    for rb in range(10): a(f"global_load_ushort v{24+rb}, v7, s[32:33] offset:{16*rb}")
    for rb in range(10):
        a(f"buffer_load_dwordx4 v[{XT+4*rb}:{XT+4*rb+3}], v4, s[52:55], s10 offen {LD}")
        a(f"s_add_u32 s10, s10, {8*7680}")
    a("s_waitcnt vmcnt(10)")
    for rb in range(10):
        x, t = 24+rb, 34+rb
        a(f"""v_lshlrev_b32 v{x}, 16, v{x}
        v_mul_f32 v{t}, s42, v{x}
        v_exp_f32 v{t}, -v{t}
        v_add_f32 v{t}, 1.0, v{t}
        v_rcp_f32 v{t}, v{t}
        v_mul_f32 v{x}, v{x}, v{t}""")
        rbf(x, x)
        a(f"v_lshrrev_b32 v{t}, 16, v{x}")
    a("s_waitcnt vmcnt(0)")
    tile_dots(XG, XT, 10, [24+rb for rb in range(10)], [34+rb for rb in range(10)])
    a(f"""v_add_u32 v7, 160, v7
    s_add_u32 s11, s11, 1
    s_cmp_lt_u32 s11, 8
    s_cbranch_scc1 L_xrloop""")
    tile_reduce8(XG, 's[12:13]')
    rbf(XG, XG)
    a(f"""s_lshl_b32 s9, s9, 9
    s_add_u32 s9, s9, {WS_GM}
    s_add_u32 s8, s6, {hex(TAGC)}
    v_lshl_add_u32 v5, v3, 3, v2
    v_lshl_add_u32 v5, v5, 3, s9
    v_mov_b32 v{XG+1}, s8
    global_store_dwordx2 v5, v[{XG}:{XG+1}], s[40:41] sc1""")
    stamp(7, 3, 44)
    a("s_branch L_tail")

    def read_q_init():
        a(f"""v_lshlrev_b32 v4, 4, v3
        ds_read_b128 v[{vQ}:{vQ+3}], v4 offset:{L_Q}
        ds_read_b128 v[{vQ+4}:{vQ+7}], v4 offset:{L_Q+128}
        ds_read_b128 v[{vQ+8}:{vQ+11}], v4 offset:{L_Q+256}
        v_mov_b32 v{vM}, 0xff7fffff
        v_mov_b32 v{vLS}, 0
        v_mov_b32 v{vU+4}, 0
        v_mov_b32 v{vU+5}, 1""")
        for i in range(24): a(f"v_mov_b32 v{vACC+i}, 0")
        a("s_waitcnt lgkmcnt(0)")

    a.label("L_qready")
    if NL: a(f"v_mov_b32 v{vU+7-1-0}, v9" if False else f"v_mov_b32 v119, v9" if False else "")
    read_q_init()
    stamp(8, 4)
    nrest = 6*(NB+NL)
    a(f"s_cmp_ge_u32 s3, {4+NST}\ns_cbranch_scc1 L_catch2")
    a(f"s_waitcnt vmcnt({3+nrest})")
    qk_dots(vAK)
    ticket(); loadK(vAK)
    softmax()
    a(f"s_waitcnt vmcnt({nrest+4})")
    pv(vAV)
    loadV(vAV)
    def lds_unit(li):
        a(f"s_sub_u32 s11, s3, 4\ns_mul_i32 s11, s11, {6144*NL}\nv_lshl_add_u32 v{vU}, v0, 4, s11")
        for k in range(6): a(f"ds_read_b128 v[{vB[0]+4*k}:{vB[0]+4*k+3}], v{vU} offset:{L_W + 6144*li + 1024*k}")
        a("s_waitcnt lgkmcnt(0)")
    for bi in range(NB):
        left = 6*(NB+NL-bi-1)
        a(f"s_waitcnt vmcnt({3+left+7})")
        qk_dots(vB[bi]); softmax()
        a(f"s_waitcnt vmcnt({left+7})")
        pv(vB[bi]+12)
    for li in range(NL):
        a(f"s_waitcnt vmcnt({6*(NL-li-1)+7})")
        lds_unit(li)
        qk_dots(vB[0]); softmax(); pv(vB[0]+12)
    stamp(9, 4)
    a.label("L_loop")
    a("s_waitcnt vmcnt(3)")
    a(f"v_readfirstlane_b32 s8, v{vTK}")
    qk_dots(vAK)
    a(f"""s_add_u32 s8, s8, {NSTAT}
    s_cmp_ge_u32 s8, {NUNITS}
    s_cbranch_scc1 L_drain
    s_mul_i32 s62, s8, 3072""")
    if STAMP: a("s_memrealtime s[92:93]\ns_lshr_b32 s94, s8, 7\ns_add_u32 m0, s94, 32\ns_waitcnt lgkmcnt(0)\nv_writelane_b32 v126, s92, m0")
    ticket(); loadK(vAK)
    softmax()
    a("s_waitcnt vmcnt(4)")
    pv(vAV)
    loadV(vAV)
    a("s_branch L_loop")

    a.label("L_drain")
    a("s_setprio 3")
    stamp(10)
    softmax(last=True)
    part_addr()
    a("s_waitcnt vmcnt(0)")
    pv(vAV)
    stamp(11)
    part_write()
    a("s_branch L_end")

    a.label("L_catch2")
    a("s_waitcnt vmcnt(0)")
    for bi, (kr, vr) in enumerate(bufs):
        qk_dots(kr); softmax(last=(NL == 0 and bi == len(bufs)-1)); pv(vr)
    for li in range(NL):
        lds_unit(li)
        qk_dots(vB[0]); softmax(last=(li == NL-1)); pv(vB[0]+12)
    part_addr()
    part_write()
    a(f"""s_cmp_eq_u32 s3, 15
    s_cbranch_scc1 L_fwave
    s_cmp_lt_u32 s3, 12
    s_cbranch_scc1 L_end""")
    a(f"""s_sub_u32 s9, s3, 12
    s_lshl_b32 s8, s9, 8
    v_lshl_add_u32 v4, v0, 2, s8
    v_and_b32 v10, 15, v0
    v_min_u32 v11, 11, v10
    v_lshlrev_b32 v11, 3, v11
    v_cmp_gt_u32 s[14:15], 12, v10
    v_add_u32 v12, {L_PART}, v4
    s_lshl_b32 s8, s4, 3
    s_add_u32 s8, s8, s5
    s_lshl_b32 s8, s8, 10
    s_add_u32 s8, s8, {WS_G3}
    v_add_u32 v4, s8, v4""")
    lds_wait(L_FLAG+4, 12, "L_cml", 2, vz=52)
    a.label("L_cml")
    a(f"""ds_read_b64 v[6:7], v11 offset:{L_ML}
    s_waitcnt lgkmcnt(0)
    v_mov_b32 v8, v6
    v_cndmask_b32 v7, 0, v7, s[14:15]""")
    red16('v_max_f32', [8])
    a(f"""v_sub_f32 v6, v6, v8
    v_mul_f32 v6, s42, v6
    v_exp_f32 v6, v6
    v_mov_b32 v40, 0
    v_mov_b32 v41, 0
    v_mul_f32 v9, v7, v6
    s_setprio 3
    s_cmp_lg_u32 s9, 0
    s_cbranch_scc1 L_cwait""")
    red16('v_add_f32', [9])
    a(f"""v_min_u32 v8, -2, v8
    v_min_u32 v9, -2, v9
    s_mov_b64 exec, 1
    global_store_dwordx2 v4, v[8:9], s[40:41] offset:768 sc1
    s_mov_b64 exec, -1""")
    a.label("L_cwait")
    lds_wait(L_FLAG+8, 12, "L_cgo", 0, vz=52)
    a.label("L_cgo")
    for k in range(6): a(f"ds_read2st64_b32 v[{24+2*k}:{25+2*k}], v12 offset0:{6*k} offset1:{6*k+3}")
    for k in range(12):
        if k % 2 == 0: a(f"s_waitcnt lgkmcnt({5-k//2})")
        a(f"v_fmac_f32_dpp v{40+(k&1)}, v6, v{24+k} row_newbcast:{k} row_mask:0xf bank_mask:0xf")
    a(f"""v_add_f32 v40, v40, v41
    v_min_u32 v40, -2, v40
    global_store_dword v4, v40, s[40:41] sc1
    s_mov_b64 exec, 1
    ds_add_u32 v52, v53 offset:{L_FLAG+8}
    s_mov_b64 exec, -1""")
    stamp(12)
    a("s_branch L_end")

    def dma(n, srd, voff, sstep, lbase):
        for t in range(n):
            v = voff[t] if isinstance(voff, list) else voff
            a(f"""s_mov_b32 s10, {t*sstep}
            s_add_u32 m0, s11, {lbase + 1024*t}
            buffer_load_dwordx4 v{v}, s[{srd}:{srd+3}], s10 offen {LD} lds""")
    a.label("L_tail")
    a(f"""s_setprio 0
    v_lshrrev_b32 v2, 4, v0
    v_and_b32 v3, 15, v0
    v_lshrrev_b32 v10, 2, v3
    v_lshl_add_u32 v10, v2, 3, v10
    v_and_b32 v11, 3, v0
    v_mov_b32 v4, 0
    v_lshrrev_b32 v12, 2, v0
    v_and_b32 v13, 31, v0
    v_lshlrev_b32 v13, 2, v13
    s_mov_b32 s14, 0xffff0000
    s_mov_b32 s15, 0xffff0000
    s_mov_b32 s55, 0x20000
    s_mov_b32 s59, 0x20000
    s_cmp_lg_u32 s3, 0
    s_cbranch_scc1 L_rolewait
    s_and_b32 s9, s2, 7
    s_mul_i32 s8, s9, {CNT_STRIDE}
    s_add_u32 s8, s8, {WS_CNT + 32*CNT_STRIDE}
    s_add_u32 s60, s40, s8
    s_addc_u32 s61, s41, 0""")
    lds_wait(L_FLAG+4, TRIG, "L_roleget", 1)
    a.label("L_roleget")
    a(f"""s_mov_b32 s8, 1
    s_atomic_add s8, s[60:61], 0 glc
    s_waitcnt lgkmcnt(0)
    s_lshl_b32 s8, s8, 3
    s_add_u32 s8, s8, s9
    s_add_u32 s8, s8, 1
    v_mov_b32 v5, s8
    ds_write_b32 v4, v5 offset:{L_ROLE}
    s_branch L_rolegot""")
    a.label("L_rolewait")
    lds_wait(L_ROLE, 1, "L_rolegot", 1)
    a.label("L_rolegot")
    if STAMP: a("v_writelane_b32 v126, s8, 26")
    stamp(24)
    a(f"""s_sub_u32 s66, s8, 1
    s_cmp_lt_u32 s66, 48
    s_cbranch_scc1 L_notw
    s_sub_u32 s64, s66, 48
    s_cmp_ge_u32 s64, 160
    s_cbranch_scc1 L_end""")
    BF = 64
    a(f"""s_mul_i32 s65, s64, 205
    s_lshr_b32 s65, s65, 11
    s_mul_i32 s8, s65, 10
    s_sub_u32 s64, s64, s8
    s_lshl_b32 s9, s65, 2
    s_add_u32 s9, s9, s3
    s_mul_i32 s8, s9, {96*1280}
    s_lshl_b32 s10, s64, 7
    s_add_u32 s8, s8, s10
    s_add_u32 s52, s24, s8
    s_addc_u32 s53, s25, 0
    s_sub_u32 s54, {6144*1280}, s8
    v_lshrrev_b32 v14, 3, v0
    v_mul_u32_u24 v14, 1280, v14
    v_and_b32 v16, 7, v0
    v_lshl_add_u32 v14, v16, 4, v14
    s_mul_i32 s11, s3, 12288""")
    dma(12, 52, 14, 8*1280, L_W)
    a(f"""v_lshlrev_b32 v15, 7, v10
    v_lshl_add_u32 v15, v11, 3, v15
    v_add_u32 v15, s11, v15
    s_lshr_b32 s9, s9, 1
    s_lshl_b32 s9, s9, 13
    s_add_u32 s9, s9, {WS_G3}
    v_lshl_add_u32 v16, v16, 10, s9
    s_and_b32 s8, s3, 1
    s_mul_i32 s8, s8, 384
    s_add_u32 s9, s9, s8
    v_lshlrev_b32 v17, 11, v2
    v_lshl_add_u32 v17, v3, 3, v17
    v_add_u32 v17, s9, v17
    s_mul_i32 s8, s3, 384
    v_and_b32 v19, 1, v2
    v_lshl_add_u32 v18, v3, 1, v19
    v_lshl_add_u32 v18, v18, 1, s8
    v_lshrrev_b32 v19, 5, v0
    v_lshl_add_u32 v12, v19, 7, v18
    v_lshl_add_u32 v19, v2, 4, s8
    v_lshlrev_b32 v13, 2, v0
    s_lshl_b32 s8, s3, 8
    v_add_u32 v20, s8, v13
    s_mul_i32 s8, s65, 2560
    s_lshl_b32 s10, s64, 8
    s_add_u32 s8, s8, s10
    s_add_u32 s8, s8, {WS_G4}
    v_add_u32 v21, s8, v13
    s_mov_b32 s12, 0
    s_mov_b32 s13, -1
    s_setprio 2""")
    lab = a.newlabel('ML'); a.label(lab)
    a("""global_load_dwordx2 v[6:7], v16, s[40:41] offset:768 sc1
    s_waitcnt vmcnt(0)
    v_max_u32 v8, v6, v7
    v_cmp_eq_u32 vcc, -1, v8""")
    spin_tail(lab)
    stamp(25)
    for ks in range(3):
        for nt in range(4):
            for hf in range(2):
                r = BF + 16*ks + 4*nt + 2*hf
                a(f"ds_read_b64_tr_b16 v[{r}:{r+1}], v15 offset:{L_W + 4096*ks + 512*hf + 32*nt}")
    a("v_mov_b32 v8, v6")
    red8('v_max_f32', 8)
    a(f"""v_sub_f32 v6, v6, v8
    v_mul_f32 v6, s42, v6
    v_exp_f32 v6, v6
    v_mul_f32 v7, v7, v6""")
    red8('v_add_f32', 7)
    a("v_rcp_f32 v7, v7\nv_mul_f32 v6, v6, v7")
    for r in range(4):
        a(f"v_mov_b32_dpp v8, v6 row_newbcast:{2*r} row_mask:{hex(1<<r)} bank_mask:0xf")
        a(f"v_mov_b32_dpp v22, v6 row_newbcast:{2*r+1} row_mask:{hex(1<<r)} bank_mask:0xf")
    for i in range(12): a(f"v_mov_b32 v{112+i}, -1")
    a("s_mov_b64 s[68:69], -1")
    lab = a.newlabel('G3')
    lds_wait(L_FLAG+8, 15, lab, 1)
    a.label(lab)
    a("s_mov_b64 exec, s[68:69]")
    for t in range(3):
        for b in range(2):
            r = 112 + 4*t + 2*b
            a(f"global_load_dwordx2 v[{r}:{r+1}], v17, s[40:41] offset:{1024*b+128*t} sc1")
    a(f"s_mov_b64 exec, -1\ns_waitcnt vmcnt({6*(PD-1)})")
    for t in range(3):
        a(f"v_pk_mul_f32 v[{48+2*t}:{49+2*t}], v[{112+4*t}:{113+4*t}], v[8:9] op_sel_hi:[1,0]")
    for t in range(3):
        a(f"v_pk_fma_f32 v[{48+2*t}:{49+2*t}], v[{114+4*t}:{115+4*t}], v[22:23], v[{48+2*t}:{49+2*t}] op_sel_hi:[1,0,1]")
    a("v_pk_add_f32 v[56:57], v[48:49], v[50:51]\nv_pk_add_f32 v[56:57], v[56:57], v[52:53]")
    nan_retry([56, 57], list(range(112, 124)), lab, 60, True)
    stamp(13)
    a("""v_mov_b32 v54, v50
    v_mov_b32 v55, v51
    v_permlane32_swap_b32 v48, v52
    v_permlane32_swap_b32 v49, v53
    v_permlane32_swap_b32 v50, v54
    v_permlane32_swap_b32 v51, v55
    v_pk_add_f32 v[48:49], v[48:49], v[52:53]
    v_pk_add_f32 v[50:51], v[50:51], v[54:55]""")
    rs_step(4, [(48, 49), (50, 51)])
    a(f"""v_cvt_pk_bf16_f32 v48, v48, v48
    v_cvt_pk_bf16_f32 v50, v50, v50
    ds_write_b16 v12, v48 offset:{L_O}
    ds_write_b16 v18, v50 offset:{L_O + 64}""")
    for ks in range(3): a(f"ds_read_b128 v[{24+4*ks}:{27+4*ks}], v19 offset:{L_O + 64*ks}")
    for ks in range(3):
        a(f"s_waitcnt lgkmcnt({2-ks})")
        for nt in range(4):
            c = '0' if ks == 0 else f"v[{40+4*nt}:{43+4*nt}]"
            a(f"v_mfma_f32_16x16x32_bf16 v[{40+4*nt}:{43+4*nt}], v[{24+4*ks}:{27+4*ks}], v[{BF+16*ks+4*nt}:{BF+16*ks+4*nt+3}], {c}")
    a(f"""v_cndmask_b32 v56, v40, v44, s[14:15]
    v_cndmask_b32 v57, v48, v52, s[14:15]
    v_cndmask_b32 v56, v56, v57, s[12:13]
    ds_write_b32 v20, v56 offset:{L_WP}
    s_waitcnt lgkmcnt(0)
    s_barrier
    s_cmp_lg_u32 s3, 0
    s_cbranch_scc1 L_end
    ds_read2st64_b32 v[24:25], v13 offset0:{L_WP//256} offset1:{L_WP//256+1}
    ds_read2st64_b32 v[26:27], v13 offset0:{L_WP//256+2} offset1:{L_WP//256+3}
    s_waitcnt lgkmcnt(1)
    v_add_f32 v24, v24, v25
    s_waitcnt lgkmcnt(0)
    v_add_f32 v26, v26, v27
    v_add_f32 v24, v24, v26
    v_min_u32 v24, -2, v24
    global_store_dword v21, v24, s[40:41] sc1""")
    stamp(14)
    a("s_branch L_end")

    a.label("L_notw")

    B1, B2 = 48, 88
    a(f"""s_mul_i32 s8, s3, {160*3072}
    s_lshl_b32 s9, s66, 6
    s_add_u32 s8, s8, s9
    s_add_u32 s52, s28, s8
    s_addc_u32 s53, s29, 0
    s_sub_u32 s54, {640*3072}, s8
    s_mul_i32 s8, s66, {32*1280}
    s_mul_i32 s9, s3, 320
    s_add_u32 s8, s8, s9
    s_add_u32 s56, s30, s8
    s_addc_u32 s57, s31, 0
    s_sub_u32 s58, {1536*1280}, s8
    v_mul_u32_u24 v14, 3072, v12
    v_lshl_add_u32 v14, v11, 4, v14
    s_mul_i32 s11, s3, 10240""")
    dma(10, 52, 14, 16*3072, L_W)
    a(f"""    v_lshlrev_b32 v15, 6, v10
    v_lshl_add_u32 v15, v11, 3, v15
    v_add_u32 v15, s11, v15
    v_mul_u32_u24 v16, 320, v10
    v_lshl_add_u32 v16, v11, 3, v16
    v_add_u32 v16, s11, v16""")
    W2A = 30
    for t in range(10):
        a(f"""v_add_u32 v5, {64*t}, v0
        v_mul_u32_u24 v6, 3277, v5
        v_lshrrev_b32 v6, 16, v6
        v_mul_u32_u24 v7, 960, v6
        v_lshl_add_u32 v{W2A+t}, v5, 4, v7""")
    if W2E: dma(10, 56, [W2A+t for t in range(10)], 0, L_W2)
    a(f"""v_and_b32 v5, 1, v2
    v_lshl_add_u32 v5, v3, 1, v5
    v_lshrrev_b32 v6, 5, v0
    v_lshl_add_u32 v6, v6, 6, v5
    v_add_u32 v7, 128, v5
    s_mul_i32 s8, s3, 160
    v_lshl_add_u32 v17, v6, 1, s9
    v_lshl_add_u32 v18, v7, 1, s9
    v_add_u32 v6, s8, v6
    v_add_u32 v7, s8, v7
    v_lshlrev_b32 v19, 2, v6
    v_lshlrev_b32 v20, 2, v7
    v_lshlrev_b32 v8, 2, v0
    global_load_ushort v40, v17, s[16:17]
    global_load_ushort v41, v17, s[16:17] offset:64
    global_load_ushort v42, v18, s[16:17]""")
    for t in range(5): a(f"global_load_dword v{24+t}, v8, s[16:17] offset:{256*t}")
    a(f"""v_lshlrev_b32 v6, 3, v6
    v_lshlrev_b32 v7, 3, v7
    v_add_u32 v6, {WS_GR}, v6
    v_add_u32 v7, {WS_GR}, v7
    v_add_u32 v8, 5120, v6
    v_add_u32 v9, 5120, v7
    v_add_u32 v21, 10240, v6
    v_add_u32 v22, 10240, v7
    s_waitcnt lgkmcnt(0)
    s_add_u32 s6, s6, {hex(TAGC)}""")
    lab = a.newlabel('GR'); a.label(lab)
    GRB = 88
    srcs = [(6, 0), (6, 256), (7, 0), (8, 0), (8, 256), (9, 0), (21, 0), (21, 256), (22, 0)]
    for i, (v, o) in enumerate(srcs): a(f"global_load_dwordx2 v[{GRB+2*i}:{GRB+2*i+1}], v{v}, s[40:41] offset:{o} sc1")
    a(f"s_waitcnt vmcnt(0)\nv_xor_b32 v5, s6, v{GRB+1}")
    for i in range(1, 9): a(f"v_bitop3_b32 v5, v5, v{GRB+2*i+1}, s6 bitop3:0xf6")
    a("v_cmp_ne_u32 vcc, 0, v5")
    spin_tail(lab, 4)
    for j in range(3):
        a(f"""v_lshlrev_b32 v{40+j}, 16, v{40+j}
        v_mov_b32 v{43+j}, v{GRB+2*j}
        v_mov_b32 v{120+j}, v{GRB+6+2*j}
        v_add_f32 v{123+j}, 1.0, v{GRB+12+2*j}""")
        rbf(123+j, 123+j)
    a("v_mov_b32 v46, 0")
    for t in range(5): a(f"v_lshlrev_b32 v5, 16, v{24+t}\nv_and_b32 v6, s7, v{24+t}\nv_add_f32 v46, v46, v5\nv_add_f32 v46, v46, v6")
    red16('v_add_f32', [46]); red_hi('v_add_f32', [46], [5])
    a(f"""v_mul_f32 v46, {hex(f2u(1/640))}, v46
    v_mul_u32_u24 v21, 10240, v2
    v_lshl_add_u32 v21, v3, 3, v21
    s_mul_i32 s8, s3, 640
    s_add_u32 s9, s8, {WS_G4}
    v_add_u32 v21, s9, v21
    s_mul_i32 s9, s66, 2560
    s_add_u32 s8, s8, s9
    s_add_u32 s8, s8, {WS_G5}
    v_lshl_add_u32 v22, v0, 2, s8
    s_mul_i32 s8, s3, 320
    v_lshl_add_u32 v23, v2, 4, s8
    s_lshl_b32 s8, s3, 7
    v_add_u32 v47, s8, v13
    s_lshl_b32 s8, s3, 3
    v_mov_b32 v9, s8
    s_lshl_b32 s8, s3, 6
    v_lshrrev_b32 v12, 1, v13
    v_add_u32 v12, s8, v12
    s_add_u32 s8, s8, {L_U}
    v_lshl_add_u32 v5, v2, 4, s8
    v_lshrrev_b32 v6, 2, v3
    v_mov_b32 v7, {L_ZERO}""")
    for g in range(4):
        a(f"v_cmp_eq_u32 vcc, {g}, v6\nv_cndmask_b32 v{[2,3,10,11][g]}, v7, v5, vcc")
    if not W2E:
        lds_wait(L_FLAG+8, 15, "L_mgo2", 1)
        a.label("L_mgo2")
        dma(10, 56, [W2A+t for t in range(10)], 0, L_W2)
    a("s_setprio 2\ns_waitcnt vmcnt(10)")
    for ks in range(5):
        for nt in range(2):
            for hf in range(2):
                r = B1 + 8*ks + 4*nt + 2*hf
                a(f"ds_read_b64_tr_b16 v[{r}:{r+1}], v15 offset:{L_W + 2048*ks + 256*hf + 32*nt}")
    B2R = [B2 + 4*nt for nt in range(8)] + [24, 28]
    a("s_waitcnt vmcnt(0)")
    stamp(25)
    XR = [B2 + 2*i for i in range(16)] + [32, 34, 36, 38]
    raw = [r+k for r in XR for k in range(2)]
    a("v_add_u32 v14, 5120, v21")
    for r in raw: a(f"v_mov_b32 v{r}, -1")
    lab = a.newlabel('G4')
    a("s_mov_b64 s[68:69], -1")
    lds_wait(L_FLAG+8, 15, lab, 1)
    a.label(lab)
    a("s_mov_b64 exec, s[68:69]")
    for t in range(5):
        for b in range(4):
            r = XR[4*t+b]
            a(f"global_load_dwordx2 v[{r}:{r+1}], v{21 if b < 2 else 14}, s[40:41] offset:{2560*(b&1)+128*t} sc1")
    a(f"s_mov_b64 exec, -1\ns_waitcnt vmcnt({20*(PD-1)})")
    YR = [24, 28, 26, 30, 4]
    for t in range(5): a(f"v_pk_add_f32 v[{YR[t]}:{YR[t]+1}], v[{XR[4*t]}:{XR[4*t]+1}], v[{XR[4*t+1]}:{XR[4*t+1]+1}]")
    for t in range(5): a(f"v_pk_add_f32 v[{YR[t]}:{YR[t]+1}], v[{YR[t]}:{YR[t]+1}], v[{XR[4*t+2]}:{XR[4*t+2]+1}]")
    for t in range(5): a(f"v_pk_add_f32 v[{YR[t]}:{YR[t]+1}], v[{YR[t]}:{YR[t]+1}], v[{XR[4*t+3]}:{XR[4*t+3]+1}]")
    a("""v_pk_add_f32 v[6:7], v[24:25], v[28:29]
    v_pk_add_f32 v[126:127], v[26:27], v[30:31]
    v_pk_add_f32 v[6:7], v[6:7], v[4:5]
    v_pk_add_f32 v[6:7], v[6:7], v[126:127]""".replace("v[126:127]", "v[44:45]" if False else "v[122:123]") if False else """v_pk_add_f32 v[6:7], v[24:25], v[28:29]
    v_pk_add_f32 v[6:7], v[6:7], v[26:27]
    v_pk_add_f32 v[6:7], v[6:7], v[30:31]
    v_pk_add_f32 v[6:7], v[6:7], v[4:5]""")
    nan_retry([6, 7], raw, lab, 8, True)
    stamp(15)
    a("v_mov_b32 v6, v4\nv_mov_b32 v7, v5")
    for x, y in ((24, 26), (28, 30), (4, 6)):
        a(f"v_permlane32_swap_b32 v{x}, v{y}\nv_permlane32_swap_b32 v{x+1}, v{y+1}")
    for x, y in ((24, 26), (28, 30), (4, 6)): a(f"v_pk_add_f32 v[{x}:{x+1}], v[{x}:{x+1}], v[{y}:{y+1}]")
    rs_step(4, [(24, 25), (28, 29), (4, 5)])
    C3 = [24, 28, 4]
    for c in C3: rbf(c, c)
    for j, c in enumerate(C3): a(f"v_mul_f32 v{c}, v{43+j}, v{c}")
    for c in C3: rbf(c, c)
    for j, c in enumerate(C3): a(f"v_add_f32 v{c}, v{40+j}, v{c}")
    for c in C3: rbf(c, c)
    a(f"""v_sub_f32 v25, v24, v46
    v_sub_f32 v29, v28, v46
    v_sub_f32 v5, v4, v46
    ds_write_b32 v19, v24 offset:{L_X2}
    ds_write_b32 v19, v28 offset:{L_X2+128}
    ds_write_b32 v20, v4 offset:{L_X2}
    v_mul_f32 v26, 0.5, v5
    v_add_f32 v30, v25, v29
    v_mul_f32 v31, v25, v25
    v_add_f32 v30, v30, v26
    v_fmac_f32 v31, v29, v29
    v_fmac_f32 v31, v26, v5""")
    red16('v_add_f32', [30, 31]); red_hi('v_add_f32', [30, 31], [6, 7])
    a(f"""ds_write_b64 v9, v[30:31] offset:{L_ST}
    v_mov_b32 v8, 0
    s_waitcnt vmcnt(0) lgkmcnt(0)
    s_barrier
    ds_read_b128 v[32:35], v8 offset:{L_ST}
    ds_read_b128 v[36:39], v8 offset:{L_ST+16}""")
    for nt in range(8):
        for hf in range(2):
            r = B2R[nt] + 2*hf
            a(f"ds_read_b64_tr_b16 v[{r}:{r+1}], v16 offset:{L_W2 + 1280*hf + 32*nt}")
    a(f"""s_waitcnt lgkmcnt(15)
    v_pk_add_f32 v[32:33], v[32:33], v[34:35]
    v_pk_add_f32 v[36:37], v[36:37], v[38:39]
    v_pk_add_f32 v[32:33], v[32:33], v[36:37]
    v_mul_f32 v32, {hex(f2u(1/640))}, v32
    v_mul_f32 v33, {hex(f2u(1/640))}, v33
    v_fma_f32 v33, -v32, v32, v33
    v_add_f32 v32, v32, v46
    v_max_f32 v33, 0, v33""")
    rbf(32, 32); rbf(33, 33)
    a(f"v_add_f32 v33, {hex(f2u(1e-5))}, v33")
    for c in C3: a(f"v_sub_f32 v{c}, v{c}, v32")
    rbf(33, 33)
    a("v_sqrt_f32 v33, v33")
    for c in C3: rbf(c, c)
    rbf(33, 33)
    a("v_rcp_f32 v33, v33")
    for c in C3: a(f"v_mul_f32 v{c}, v{c}, v33")
    for c in C3: rbf(c, c)
    for j, c in enumerate(C3): a(f"v_mul_f32 v{c}, v{c}, v{123+j}")
    for c in C3: rbf(c, c)
    for j, c in enumerate(C3): a(f"v_add_f32 v{c}, v{c}, v{120+j}")
    for c in C3: a(f"v_cvt_pk_bf16_f32 v{c}, v{c}, v{c}")
    a(f"""ds_write_b16 v17, v24 offset:{L_O}
    ds_write_b16 v17, v28 offset:{L_O+64}
    ds_write_b16 v18, v4 offset:{L_O}""")
    A1 = [24, 28, 32, 36, 40]
    for ks in range(5): a(f"ds_read_b128 v[{A1[ks]}:{A1[ks]+3}], v23 offset:{L_O + 64*ks}")
    D1 = [4, 120]
    for ks in range(5):
        a(f"s_waitcnt lgkmcnt({4-ks})")
        for nt in range(2):
            c = '0' if ks == 0 else f"v[{D1[nt]}:{D1[nt]+3}]"
            a(f"v_mfma_f32_16x16x32_bf16 v[{D1[nt]}:{D1[nt]+3}], v[{A1[ks]}:{A1[ks]+3}], v[{B1+8*ks+4*nt}:{B1+8*ks+4*nt+3}], {c}")
    for nt in range(8, 10):
        for hf in range(2):
            r = B2R[nt] + 2*hf
            a(f"ds_read_b64_tr_b16 v[{r}:{r+1}], v16 offset:{L_W2 + 1280*hf + 32*nt}")
    a(f"""v_cndmask_b32 v8, v4, v120, s[14:15]
    ds_write_b32 v47, v8 offset:{L_WP}
    s_waitcnt lgkmcnt(0)
    s_barrier
    ds_read_b32 v32, v13 offset:{L_WP}
    ds_read_b32 v33, v13 offset:{L_WP+128}
    ds_read_b32 v34, v13 offset:{L_WP+256}
    ds_read_b32 v35, v13 offset:{L_WP+384}
    s_waitcnt lgkmcnt(2)
    v_add_f32 v32, v32, v33
    s_waitcnt lgkmcnt(0)
    v_add_f32 v34, v34, v35
    v_add_f32 v32, v32, v34""")
    rbf(32, 32)
    a(f"""v_mul_f32 v33, s42, v32
    v_exp_f32 v33, -v33
    v_add_f32 v33, 1.0, v33
    v_rcp_f32 v33, v33
    v_mul_f32 v32, v32, v33
    v_cvt_pk_bf16_f32 v32, v32, v32
    ds_write_b16 v12, v32 offset:{L_U}""")
    A2 = [48, 52, 56, 60]
    for g in range(4): a(f"ds_read_b128 v[{A2[g]}:{A2[g]+3}], v{[2,3,10,11][g]}")
    D2 = [64, 68, 72]
    for g in range(4):
        a(f"s_waitcnt lgkmcnt({3-g})")
        for j in range(3):
            nt = 4*j + g
            if nt >= 10: continue
            c = '0' if g == 0 else f"v[{D2[j]}:{D2[j]+3}]"
            a(f"v_mfma_f32_16x16x32_bf16 v[{D2[j]}:{D2[j]+3}], v[{A2[g]}:{A2[g]+3}], v[{B2R[nt]}:{B2R[nt]+3}], {c}")
    a(f"""v_min_u32 v76, -2, v72
    s_mov_b32 exec_hi, 0
    global_store_dword v22, v76, s[40:41] offset:512 sc1
    s_mov_b64 exec, -1
    v_min_u32 v77, -2, v64
    v_min_u32 v78, -2, v68
    global_store_dword v22, v77, s[40:41] sc1
    global_store_dword v22, v78, s[40:41] offset:256 sc1""")
    stamp(16)
    a("s_branch L_end")

    a.label("L_fwave")
    lds_wait(L_ROLE, 1, "L_frole", 4, vz=52)
    a.label("L_frole")
    a(f"""s_sub_u32 s66, s8, 1
    s_cmp_ge_u32 s66, 40
    s_cbranch_scc1 L_end
    v_and_b32 v4, 3, v0
    v_lshrrev_b32 v5, 4, v0
    v_lshl_add_u32 v6, v4, 2, v5
    s_lshl_b32 s8, s66, 4
    v_add_u32 v6, s8, v6
    v_lshlrev_b32 v7, 3, v6
    v_add_u32 v7, {WS_GR + 1920*8}, v7
    s_waitcnt lgkmcnt(0)
    s_add_u32 s6, s6, {hex(TAGC)}""")
    lab = a.newlabel('GF'); a.label(lab)
    a(f"""global_load_dwordx2 v[50:51], v7, s[40:41] sc1
    s_waitcnt vmcnt(0)
    v_cmp_ne_u32 vcc, s6, v51""")
    spin_tail(lab, 4)
    a(f"""v_lshlrev_b32 v8, 2, v6
    v_lshrrev_b32 v7, 2, v0
    v_mul_u32_u24 v7, 2560, v7
    v_lshl_add_u32 v7, v4, 4, v7
    s_lshl_b32 s8, s66, 6
    s_add_u32 s8, s8, {WS_G5}
    v_add_u32 v7, s8, v7
    v_add_u32 v52, {16*2560}, v7
    v_add_u32 v53, {32*2560}, v7
    v_lshlrev_b32 v6, 1, v6
    v_mov_b32 v4, {WS_EPOCH}
    v_mov_b32 v5, s6""")
    for r in range(24, 36): a(f"v_mov_b32 v{r}, -1")
    a(f"""s_barrier
    ds_read_b32 v48, v8 offset:{L_X2}
    s_waitcnt lgkmcnt(0)
    s_barrier""")
    a("s_mov_b64 s[68:69], -1")
    lab = a.newlabel('G5'); a.label(lab)
    a(f"""s_mov_b64 exec, s[68:69]
    global_load_dwordx4 v[24:27], v7, s[40:41] sc1
    global_load_dwordx4 v[28:31], v52, s[40:41] sc1
    global_load_dwordx4 v[32:35], v53, s[40:41] sc1
    s_mov_b64 exec, -1
    s_waitcnt vmcnt({3*(PDF-1)})
    v_pk_add_f32 v[36:37], v[24:25], v[28:29]
    v_pk_add_f32 v[38:39], v[26:27], v[30:31]
    v_pk_add_f32 v[36:37], v[36:37], v[32:33]
    v_pk_add_f32 v[38:39], v[38:39], v[34:35]
    v_pk_add_f32 v[42:43], v[36:37], v[38:39]""")
    nan_retry([42, 43], list(range(24, 36)), lab, 40, True)
    stamp(17)
    rs_step(5, [(36, 38), (37, 39)])
    rs_step(4, [(36, 37)])
    dpp('v_add_f32', 36, 36, 36, 'row_ror:8'); dpp('v_add_f32', 36, 36, 36, 'row_ror:4')
    rbf(36, 36)
    a("v_mul_f32 v36, v50, v36"); rbf(36, 36)
    a(f"""v_add_f32 v36, v48, v36
    v_cvt_pk_bf16_f32 v36, v36, v36
    s_mov_b32 exec_lo, 0x000f000f
    s_mov_b32 exec_hi, 0x000f000f
    global_store_short v6, v36, s[36:37]
    s_cmp_lg_u32 s66, 0
    s_cbranch_scc1 L_fend
    s_mov_b64 exec, 1
    global_store_dword v4, v5, s[40:41] sc1""")
    a.label("L_fend")
    a("s_mov_b64 exec, -1")
    stamp(18)
    a.label("L_end")
    if STAMP:
        a(f"""s_mov_b64 exec, -1
        v_writelane_b32 v126, s67, 27
        v_writelane_b32 v126, s63, 28
        s_lshl_b32 s8, s2, 4
        s_add_u32 s8, s8, s3
        s_lshl_b32 s8, s8, 8
        s_add_u32 s8, s8, {WS_ST}
        v_lshl_add_u32 v4, v0, 2, s8
        global_store_dword v4, v126, s[40:41]""")
    a.label("L_exit")
    a("s_endpgm")

    body = a.text()
    out = HEADER
    out += f"; @launch grid=(256,1,1) block=(1024,1,1) lds={max(LDS_BYTES, L_W + 12*6144*NL)}\n"
    out += '.amdgcn_target "amdgcn-amd-amdhsa--gfx950"\n.text\n'
    out += f".globl {KN}\n.p2align 8\n.type {KN},@function\n{KN}:\n" + body
    out += f""".section .rodata,"a"
.p2align 6
.amdhsa_kernel {KN}
  .amdhsa_next_free_vgpr 128
  .amdhsa_next_free_sgpr 102
  .amdhsa_accum_offset 128
  .amdhsa_group_segment_fixed_size 0
  .amdhsa_kernarg_size 104
  .amdhsa_user_sgpr_count 2
  .amdhsa_user_sgpr_kernarg_segment_ptr 1
  .amdhsa_system_sgpr_workgroup_id_x 1
  .amdhsa_float_denorm_mode_32 3
.end_amdhsa_kernel
"""
    return out

if __name__ == '__main__':
    import json
    P = json.loads(sys.argv[2]) if len(sys.argv) > 2 else {}
    open(sys.argv[1], 'w').write(gen(P))
```

```python
import sys, math
from asmlib import Asm, f2u

KN = "adaLN_cond__gqa_block_cached__dense_activation_silu__decode_kernel"
HEADER = open('adaLN_cond__gqa_block_cached__dense_activation_silu__decode.s.ref').read().split('; Override')[0]

WS_EPOCH = 0
WS_CNT = 0x1000; CNT_STRIDE = 1152
WS_GM = 0x10000
WS_GR = WS_GM + 1280*8
WS_G1 = 0x20000
WS_GQ = 0x30000
WS_G3 = 0x100000
WS_G5 = WS_G3 + 0x40000
WS_G4 = WS_G5 + 48*2560
WS_ST = 0x200000
TAGC = 0x9E3779B9
NUNITS = 2048
HEADB = 16384*384
L_Q = 0
L_FLAG = 512
L_ZERO = 528
L_ROLE = L_FLAG + 12
L_ML = 576
L_ST = 704
L_O = 1024
L_U = 2560
L_WP = 3072
L_X2 = 4096
L_PART = 6912
L_TP = 6912
L_W = 16384
L_W2 = L_W + 40960
LDS_BYTES = L_W + 81920

def gen(P):
    a = Asm()
    NSW = 12
    NB = P.get('nb', 2)
    PW = P.get('pw', 4)
    SLOW = {int(k): v for k, v in P.get('slow', {1: 0, 3: 1}).items()}
    STAMP = P.get('stamp', 0)
    SPIN = P.get('spin', 400000)
    NST = P.get('nst', 10)
    NL = P.get('nl', 1)
    TRIG = P.get('trig', 12)
    W2E = P.get('w2e', 1)
    PDF = P.get('pdf', 2)
    PD = P.get('pd', 1)
    BASE1 = 60*(NB+NL+1); BASE2 = BASE1 + 36
    NSTAT = BASE2 + 8*NST
    LD = P.get('ld', 'nt'); KLD = P.get('kld', LD); VLD = P.get('vld', LD)

    vL, vOFF = 0, 1
    vT = list(range(2, 10))
    vQ = 10
    vM, vLS = 22, 23
    vACC = 24
    vAK, vAV = 48, 60
    vB = [72, 96]
    vU = 120
    vTK = 127

    def stamp(k, cond_wave=None, r=None):
        if not STAMP: return
        a(f"""s_memrealtime s[92:93]
        s_waitcnt lgkmcnt(0)
        v_writelane_b32 v126, s92, {k}""")

    def rbf(d, s):
        a(f"v_cvt_pk_bf16_f32 v{d}, v{s}, v{s}\nv_and_b32 v{d}, s7, v{d}")

    def dpp(op, d, s0, s1, ctl):
        a(f"{op}_dpp v{d}, v{s0}, v{s1} {ctl} row_mask:0xf bank_mask:0xf")

    def red8(op, x):
        dpp(op, x, x, x, "quad_perm:[1,0,3,2]"); dpp(op, x, x, x, "quad_perm:[2,3,0,1]"); dpp(op, x, x, x, "row_half_mirror")
    def red16(op, xs):
        for ctl in ("quad_perm:[1,0,3,2]", "quad_perm:[2,3,0,1]", "row_half_mirror", "row_mirror"):
            for x in xs: dpp(op, x, x, x, ctl)
    def red_hi(op, xs, ts, bits=(4, 5)):
        for b in bits:
            sw = 'v_permlane16_swap_b32' if b == 4 else 'v_permlane32_swap_b32'
            for x, t in zip(xs, ts): a(f"v_mov_b32 v{t}, v{x}")
            for x, t in zip(xs, ts): a(f"{sw} v{x}, v{t}")
            for x, t in zip(xs, ts): a(f"{op} v{x}, v{x}, v{t}")
    def rs_step(bit, pairs):
        sw = 'v_permlane16_swap_b32' if bit == 4 else 'v_permlane32_swap_b32'
        for x, y in pairs: a(f"{sw} v{x}, v{y}")
        for x, y in pairs: a(f"v_add_f32 v{x}, v{x}, v{y}")

    def spin_tail(lab_retry, slp=1):
        done = a.newlabel('GD')
        a(f"""s_cbranch_vccz {done}
        s_add_u32 s67, s67, 1
        s_cmp_gt_u32 s67, {SPIN}
        s_cbranch_scc1 L_end
        s_sleep {slp}
        s_branch {lab_retry}""")
        a.label(done)

    def tile_dots(acc, tile, nrb, chi, clo):
        for rb in range(nrb):
            for d in range(4):
                a(f"v_dot2c_f32_bf16 v{acc+2*d}, v{tile+4*rb+d}, v{clo[rb]}")
                a(f"v_dot2c_f32_bf16 v{acc+2*d+1}, v{tile+4*rb+d}, v{chi[rb]}")
    def tile_reduce8(acc, sel):
        rs_step(5, [(acc+i, acc+4+i) for i in range(4)])
        rs_step(4, [(acc+i, acc+2+i) for i in range(2)])
        dpp('v_add_f32', acc, acc, acc, 'row_ror:8'); dpp('v_add_f32', acc+1, acc+1, acc+1, 'row_ror:8')
        a(f"v_cndmask_b32 v{acc}, v{acc}, v{acc+1}, {sel}")
    def tile_reduce4(acc):
        rs_step(5, [(acc+i, acc+4+i) for i in range(4)])
        rs_step(4, [(acc+i, acc+2+i) for i in range(2)])
        for ctl in ('row_ror:8', 'row_ror:4'):
            dpp('v_add_f32', acc, acc, acc, ctl); dpp('v_add_f32', acc+1, acc+1, acc+1, ctl)

    def loadK(r):
        for j in range(3): a(f"buffer_load_dwordx4 v[{r+4*j}:{r+4*j+3}], v{vOFF}, s[44:47], s62 offen offset:{128*j} {KLD}")
    def loadV(r):
        for j in range(3): a(f"buffer_load_dwordx4 v[{r+4*j}:{r+4*j+3}], v{vOFF}, s[48:51], s62 offen offset:{128*j} {VLD}")
    def ticket():
        a(f"""s_mov_b64 exec, 1
        global_atomic_add v{vTK}, v{vU+4}, v{vU+5}, s[60:61] sc0
        s_mov_b64 exec, -1""")
    def qk_dots(K):
        t0, t1, t2 = vT[0], vT[1], vT[2]
        a(f"v_mov_b32 v{t0}, 0\nv_mov_b32 v{t1}, 0\nv_mov_b32 v{t2}, 0")
        for r in range(4):
            for j in range(3):
                a(f"v_dot2c_f32_bf16 v{vT[j]}, v{K+4*j+r}, v{vQ+4*j+r}")
    def softmax(last=False):
        t0, t1, t2, t3, p, al = vT[0], vT[1], vT[2], vT[3], vT[4], vT[6]
        a(f"v_add_f32 v{t0}, v{t0}, v{t1}\nv_add_f32 v{t0}, v{t0}, v{t2}")
        red8('v_add_f32', t0)
        rbf(t0, t0)
        a(f"v_mul_f32 v{t0}, s43, v{t0}")
        rbf(t0, t0)
        a(f"v_max_f32 v{t1}, v{vM}, v{t0}")
        if last:
            dpp('v_max_f32', t1, t1, t1, 'row_ror:8')
            red_hi('v_max_f32', [t1], [t2])
        a(f"""v_sub_f32 v{t2}, v{vM}, v{t1}
        v_sub_f32 v{t3}, v{t0}, v{t1}
        v_mul_f32 v{t2}, s42, v{t2}
        v_mul_f32 v{t3}, s42, v{t3}
        v_exp_f32 v{al}, v{t2}
        v_exp_f32 v{p}, v{t3}
        v_mov_b32 v{vM}, v{t1}
        v_fma_f32 v{vLS}, v{vLS}, v{al}, v{p}""")
        if last:
            dpp('v_add_f32', vLS, vLS, vLS, 'row_ror:8')
            red_hi('v_add_f32', [vLS], [t2])
            a(f"""s_lshl_b32 s8, s3, 3
            v_mov_b32 v{t2}, s8
            v_mov_b32 v{t0}, 0
            v_mov_b32 v{t1}, 1
            s_mov_b64 exec, 1
            ds_write_b64 v{t2}, v[{vM}:{vLS}] offset:{L_ML-32}
            ds_add_u32 v{t0}, v{t1} offset:{L_FLAG+4}
            s_mov_b64 exec, -1""")
        for i in range(12):
            r = vACC + 2*i
            a(f"v_pk_mul_f32 v[{r}:{r+1}], v[{r}:{r+1}], v[{al}:{al+1}] op_sel_hi:[1,0]")
    def lds_wait(off, val, lab, slp, cmp='ge', vz=4, vd=5):
        top = a.newlabel('LW'); a.label(top)
        a(f"""ds_read_b32 v{vd}, v{vz} offset:{off}
        s_waitcnt lgkmcnt(0)
        v_readfirstlane_b32 s8, v{vd}
        s_cmp_ge_u32 s8, {val}
        s_cbranch_scc1 {lab}
        s_add_u32 s67, s67, 1
        s_cmp_gt_u32 s67, {SPIN*8}
        s_cbranch_scc1 L_end""")
        if slp: a(f"s_sleep {slp}")
        a(f"s_branch {top}")
    def part_addr():
        a(f"""v_lshrrev_b32 v52, 3, v0
        v_and_b32 v53, 7, v0
        v_mul_u32_u24 v52, 3, v52
        s_mul_i32 s8, s3, 768
        s_add_u32 s8, s8, {L_PART-4*768}
        v_lshl_add_u32 v53, v53, 5, s8
        s_mov_b32 s12, 0xff00ff00
        s_mov_b32 s13, 0xff00ff00""")
        for i in range(3):
            a(f"""v_add_u32 v54, {i}, v52
            v_lshrrev_b32 v55, 3, v54
            v_and_b32 v54, 7, v54
            v_lshl_add_u32 v55, v55, 8, v53
            v_lshl_add_u32 v{48+i}, v54, 2, v55""")
        a("v_mov_b32 v52, 0\nv_mov_b32 v53, 1")
    def part_write():
        for i in range(12): a(f"v_permlane32_swap_b32 v{vACC+i}, v{vACC+12+i}")
        for i in range(0, 12, 2): a(f"v_pk_add_f32 v[{vACC+i}:{vACC+i+1}], v[{vACC+i}:{vACC+i+1}], v[{vACC+12+i}:{vACC+13+i}]")
        for i in range(6): a(f"v_permlane16_swap_b32 v{vACC+i}, v{vACC+6+i}")
        for i in range(0, 6, 2): a(f"v_pk_add_f32 v[{vACC+i}:{vACC+i+1}], v[{vACC+i}:{vACC+i+1}], v[{vACC+6+i}:{vACC+7+i}]")
        for i in range(6): dpp('v_add_f32', vACC+i, vACC+i, vACC+i, 'row_ror:8')
        for i in range(3): a(f"v_cndmask_b32 v{vACC+i}, v{vACC+i}, v{vACC+3+i}, s[12:13]")
        for i in range(3): a(f"ds_write_b32 v{48+i}, v{vACC+i}")
        a(f"""s_mov_b64 exec, 1
        ds_add_u32 v52, v53 offset:{L_FLAG+8}
        s_mov_b64 exec, -1""")
    def nan_retry(regs, raw, lab, tmp, masked=False):
        done = a.newlabel('NR')
        if len(regs) == 1: a(f"v_cmp_u_f32 vcc, v{regs[0]}, v{regs[0]}")
        elif len(regs) == 2: a(f"v_cmp_u_f32 vcc, v{regs[0]}, v{regs[1]}")
        else: a(f"v_add_f32 v{tmp}, v{regs[0]}, v{regs[1]}\nv_cmp_u_f32 vcc, v{tmp}, v{regs[2]}")
        a(f"s_cbranch_vccz {done}")
        if masked: a("s_mov_b64 s[68:69], vcc")
        a(f"""s_add_u32 s67, s67, 1
        s_and_b32 s8, s67, 15
        s_cbranch_scc1 {lab}
        s_cmp_gt_u32 s67, {SPIN}
        s_cbranch_scc1 L_end
        s_cmp_eq_u32 s63, 1
        s_cbranch_scc1 {done}""")
        a(f"v_mov_b32 v{tmp}, v{raw[0]}")
        for i in range(1, len(raw), 2):
            if i+1 < len(raw): a(f"v_max3_u32 v{tmp}, v{tmp}, v{raw[i]}, v{raw[i+1]}")
            else: a(f"v_max_u32 v{tmp}, v{tmp}, v{raw[i]}")
        a(f"""v_cmp_eq_u32 vcc, -1, v{tmp}
        s_cbranch_vccnz {lab}
        s_mov_b32 s63, 1
        s_branch {lab}""")
        a.label(done)
    def pv(V):
        p = vT[4]
        for i in range(12):
            t = vU + 2*(i & 1)
            r = vACC + 2*i
            a(f"""v_lshlrev_b32 v{t}, 16, v{V+i}
            v_and_b32 v{t+1}, s7, v{V+i}
            v_pk_fma_f32 v[{r}:{r+1}], v[{t}:{t+1}], v[{p}:{p+1}], v[{r}:{r+1}] op_sel_hi:[1,0,1]""")

    if STAMP: a("s_memrealtime s[98:99]\nv_mov_b32 v126, 0")
    a(f"""s_cmp_ge_u32 s2, 256
    s_cbranch_scc1 L_exit
    s_load_dwordx16 s[16:31], s[0:1], 0
    s_load_dwordx8 s[32:39], s[0:1], 64
    s_load_dwordx2 s[40:41], s[0:1], 96
    v_lshrrev_b32 v1, 6, v0
    v_readfirstlane_b32 s3, v1
    v_and_b32 v0, 63, v0""")
    if P.get('warm', 0):
        a(f"""s_cmp_ge_u32 s2, {P.get('warmwg', 16)}
        s_cbranch_scc1 L_nowarm
        s_cmp_lg_u32 s3, 15
        s_cbranch_scc1 L_nowarm
        s_getpc_b64 s[52:53]""")
        a.label("L_pc")
        a(f"""s_sub_u32 s52, s52, L_pc-{KN}
        s_subb_u32 s53, s53, 0
        s_mov_b32 s54, L_exit+4-{KN}
        s_mov_b32 s55, 0x20000
        v_lshlrev_b32 v5, 4, v0""")
        for i in range(P.get('warm')):
            a(f"s_mov_b32 s8, {1024*i}\nbuffer_load_dwordx4 v[120:123], v5, s[52:55], s8 offen")
        a.label("L_nowarm")
    a(f"""s_lshr_b32 s4, s2, 3
    s_lshl_b32 s5, s2, 2
    s_add_u32 s4, s4, s5
    s_and_b32 s4, s4, 31
    s_lshr_b32 s5, s2, 5
    s_mov_b32 s7, 0xffff0000
    s_mov_b32 s42, {hex(f2u(math.log2(math.e)))}
    s_mov_b32 s43, {hex(f2u(192 ** -0.5))}
    s_mov_b32 s67, 0
    s_mov_b32 s63, 0
    v_lshrrev_b32 v2, 3, v0
    v_and_b32 v3, 7, v0
    v_mul_u32_u24 v1, 384, v2
    v_lshl_add_u32 v1, v3, 4, v1
    s_mul_i32 s8, s4, {HEADB}
    s_mov_b32 s46, {HEADB}
    s_mov_b32 s47, 0x20000
    s_mov_b32 s50, {HEADB}
    s_mov_b32 s51, 0x20000
    s_mov_b32 s55, 0x20000
    s_mov_b32 s59, 0x20000
    s_mul_i32 s9, s4, {CNT_STRIDE}
    s_add_u32 s9, s9, {WS_CNT}
    v_mov_b32 v4, 0
    v_mov_b32 v5, 0
    v_mov_b32 v6, 0
    v_mov_b32 v7, 0
    ds_write_b128 v4, v[4:7] offset:{L_FLAG}
    ds_write_b128 v4, v[4:7] offset:{L_ZERO}
    s_waitcnt lgkmcnt(0)
    s_barrier""")
    if STAMP: a("v_writelane_b32 v126, s98, 22")
    stamp(23)
    a(f"""s_add_u32 s44, s18, s8
    s_addc_u32 s45, s19, 0
    s_add_u32 s48, s20, s8
    s_addc_u32 s49, s21, 0
    s_add_u32 s60, s40, s9
    s_addc_u32 s61, s41, 0
    s_load_dword s6, s[40:41], {WS_EPOCH}
    s_mov_b32 s12, 0xff00ff00
    s_mov_b32 s13, 0xff00ff00
    s_cmp_lt_u32 s5, 3
    s_cbranch_scc1 L_qtile
    s_cmp_ge_u32 s2, 176
    s_cbranch_scc1 L_roles""")
    TILE = 48; CH = 24; CL = 30; TA = 40
    def tile_loads(stride, n=5):
        a(f"""s_mul_i32 s10, s3, {8*n*stride}
        v_mul_u32_u24 v4, {stride}, v2
        v_lshl_add_u32 v4, v3, 4, v4""")
        for t in range(n):
            a(f"buffer_load_dwordx4 v[{TILE+4*t}:{TILE+4*t+3}], v4, s[52:55], s10 offen {LD}")
            if t < n-1: a(f"s_add_u32 s10, s10, {8*stride}")
    def tile_finish(n=5, nwv=16, join=None):
        tile_dots(TA, TILE, n, [CH+t for t in range(n)], [CL+t for t in range(n)])
        tile_reduce8(TA, 's[12:13]')
        a(f"""ds_write_b32 v5, v{TA} offset:{L_TP}""")
        stamp(20)
        if join: a.label(join)
        a(f"""s_waitcnt vmcnt(0) lgkmcnt(0)
        s_barrier""")
        stamp(21)
        a(f"""s_cmp_lg_u32 s3, 0
        s_cbranch_scc1 L_tilebar
        v_lshlrev_b32 v5, 2, v0
        v_add_u32 v5, {L_TP}, v5""")
        for k in range(nwv//2): a(f"ds_read2st64_b32 v[{24+2*k}:{25+2*k}], v5 offset0:{2*k} offset1:{2*k+1}")
        for k in range(nwv//2):
            a(f"s_waitcnt lgkmcnt({nwv//2-1-k})")
            a(f"v_add_f32 v{24+2*k}, v{24+2*k}, v{25+2*k}")
            if k & 1: a(f"v_add_f32 v{22+2*k}, v{22+2*k}, v{24+2*k}")
        tops = [24+4*k for k in range((nwv//2+1)//2)]
        while len(tops) > 1:
            nxt = []
            for i in range(0, len(tops)-1, 2):
                a(f"v_add_f32 v{tops[i]}, v{tops[i]}, v{tops[i+1]}"); nxt.append(tops[i])
            if len(tops) & 1: nxt.append(tops[-1])
            tops = nxt
    def tile_ldsaddr():
        a(f"""v_lshl_add_u32 v5, v3, 3, v2
        s_lshl_b32 s8, s3, 8
        v_lshl_add_u32 v5, v5, 2, s8""")
        for i in range(8): a(f"v_mov_b32 v{TA+i}, 0")
    a.label("L_modtile")
    a(f"""s_sub_u32 s9, s2, 96
    s_cmp_ge_u32 s3, 10
    s_cbranch_scc1 L_poison
    s_lshr_b32 s11, s9, 2
    s_and_b32 s15, s9, 3
    s_lshl_b32 s14, s11, 7
    s_mul_i32 s8, s15, {160*7680}
    s_add_u32 s14, s14, s8
    s_add_u32 s52, s34, s14
    s_addc_u32 s53, s35, 0
    s_sub_u32 s54, {640*7680}, s14
    s_mul_i32 s14, s15, 320
    s_lshl_b32 s8, s3, 5
    s_add_u32 s14, s14, s8
    v_lshl_add_u32 v7, v2, 1, s14""")
    for t in range(2): a(f"global_load_ushort v{CH+t}, v7, s[32:33] offset:{16*t}")
    tile_loads(7680, 2)
    tile_ldsaddr()
    a(f"""s_mul_i32 s14, s15, 10240
    s_lshl_b32 s8, s11, 9
    s_add_u32 s14, s14, s8
    s_add_u32 s14, s14, {WS_G1}
    v_lshl_add_u32 v6, v0, 3, s14
    s_waitcnt vmcnt(2)""")
    for t in range(2):
        x, u = CH+t, CL+t
        a(f"""v_lshlrev_b32 v{x}, 16, v{x}
        v_mul_f32 v{u}, s42, v{x}
        v_exp_f32 v{u}, -v{u}
        v_add_f32 v{u}, 1.0, v{u}
        v_rcp_f32 v{u}, v{u}
        v_mul_f32 v{x}, v{x}, v{u}""")
        rbf(x, x)
        a(f"v_lshrrev_b32 v{u}, 16, v{x}")
    a("s_waitcnt vmcnt(0)")
    stamp(19)
    tile_finish(2, 10, "L_modjoin")
    a(f"""s_add_u32 s8, s6, {hex(TAGC)}
    v_mov_b32 v25, s8
    global_store_dwordx2 v6, v[24:25], s[40:41] sc1""")
    stamp(6)
    a("s_branch L_tilebar")
    a.label("L_poison")
    a(f"""s_mul_i32 s14, s9, 6
    s_add_u32 s14, s14, s3
    s_lshl_b32 s14, s14, 10
    s_add_u32 s14, s14, {WS_G3 - 10*1024}
    v_lshl_add_u32 v6, v0, 4, s14
    v_mov_b32 v88, -1
    v_mov_b32 v89, -1
    v_mov_b32 v90, -1
    v_mov_b32 v91, -1
    global_store_dwordx4 v6, v[88:91], s[40:41] sc1
    s_cmp_lg_u32 s3, 15
    s_cbranch_scc1 L_modjoin
    s_cmp_ge_u32 s9, 40
    s_cbranch_scc1 L_modjoin
    s_mul_i32 s14, s9, {CNT_STRIDE}
    s_add_u32 s14, s14, {WS_CNT}
    v_mov_b32 v6, s14
    v_mov_b32 v8, 0
    s_mov_b64 exec, 1
    global_store_dword v6, v8, s[40:41] sc1
    s_mov_b64 exec, -1
    s_branch L_modjoin""")
    a.label("L_qtile")
    a(f"""s_mul_i32 s8, s4, 384
    s_lshl_b32 s9, s5, 7
    s_add_u32 s8, s8, s9
    s_add_u32 s52, s22, s8
    s_addc_u32 s53, s23, 0
    s_sub_u32 s54, {640*12288}, s8
    v_lshlrev_b32 v5, 2, v0
    s_mul_i32 s14, s3, 40
    v_add_u32 v8, s14, v3
    v_lshlrev_b32 v7, 1, v8""")
    for t in range(5): a(f"global_load_dword v{70+t}, v5, s[16:17] offset:{256*t}")
    for t in range(5): a(f"global_load_ushort v{CL+t}, v7, s[16:17] offset:{16*t}")
    tile_loads(12288)
    a("s_barrier")
    a(f"""v_lshlrev_b32 v8, 3, v8
    v_and_b32 v9, 3, v2
    v_mul_u32_u24 v9, 10240, v9
    v_add_u32 v8, v8, v9
    v_lshrrev_b32 v9, 5, v0
    v_mul_u32_u24 v9, 5120, v9
    v_add_u32 v8, v8, v9
    v_add_u32 v8, {WS_G1}, v8
    v_lshlrev_b32 v9, 2, v2""")
    tile_ldsaddr()
    a(f"""v_lshrrev_b32 v10, 1, v0
    v_mul_u32_u24 v11, 43, v10
    v_lshrrev_b32 v11, 7, v11
    v_add_u32 v11, v11, v10
    v_lshlrev_b32 v11, 2, v11
    v_lshlrev_b32 v10, 4, v10
    v_add_u32 v10, 12, v10
    v_and_b32 v12, 1, v0
    v_cmp_eq_u32 s[14:15], 1, v12
    s_mul_i32 s8, s4, 768
    s_lshl_b32 s9, s5, 8
    s_add_u32 s8, s8, s9
    s_add_u32 s8, s8, {WS_GQ}
    v_cndmask_b32 v10, v11, v10, s[14:15]
    v_add_u32 v10, s8, v10
    s_waitcnt vmcnt(5)""")
    for t in range(5):
        a(f"v_lshlrev_b32 v{76+2*t}, 16, v{70+t}\nv_and_b32 v{77+2*t}, s7, v{70+t}")
    a("v_add_f32 v70, v76, v77")
    for i in range(2, 10): a(f"v_add_f32 v70, v70, v{76+i}")
    red16('v_add_f32', [70]); red_hi('v_add_f32', [70], [71])
    a(f"v_mul_f32 v70, {hex(f2u(1/640))}, v70")
    a("v_mov_b32 v72, 0")
    for i in range(10): a(f"v_sub_f32 v{76+i}, v{76+i}, v70\nv_fmac_f32 v72, v{76+i}, v{76+i}")
    red16('v_add_f32', [72]); red_hi('v_add_f32', [72], [71])
    a(f"v_mul_f32 v72, {hex(f2u(1/640))}, v72")
    rbf(70, 70); rbf(72, 72)
    a(f"v_add_f32 v72, {hex(f2u(1e-5))}, v72")
    rbf(72, 72)
    a("v_sqrt_f32 v72, v72")
    rbf(72, 72)
    a("v_rcp_f32 v72, v72")
    for t in range(5):
        r = CL+t
        a(f"v_lshlrev_b32 v{r}, 16, v{r}\nv_sub_f32 v{r}, v{r}, v70")
        rbf(r, r)
        a(f"v_mul_f32 v{r}, v{r}, v72")
        rbf(r, r)
    a(f"s_waitcnt lgkmcnt(0)\ns_add_u32 s11, s6, {hex(TAGC)}")
    stamp(2, 0, 108)
    GG = 88
    lab = a.newlabel('GM'); a.label(lab)
    for t in range(5):
        a(f"global_load_dwordx2 v[{GG+2*t}:{GG+2*t+1}], v8, s[40:41] offset:{64*t} sc1")
    a("s_waitcnt vmcnt(0)")
    a(f"v_xor_b32 v70, s11, v{GG+1}")
    for k in range(1, 5): a(f"v_bitop3_b32 v70, v70, v{GG+2*k+1}, s11 bitop3:0xf6")
    a("v_cmp_ne_u32 vcc, 0, v70")
    spin_tail(lab, P.get('gmslp', 2))
    stamp(3)
    xs = [GG+2*t for t in range(5)]; ys = [GG+2*t+1 for t in range(5)]
    for x in xs: dpp('v_add_f32', x, x, x, 'row_ror:8')
    red_hi('v_add_f32', xs, ys, bits=(4,))
    for x in xs: rbf(x, x)
    for x, y in zip(xs, ys): a(f"v_mov_b32 v{y}, v{x}")
    for x, y in zip(xs, ys): a(f"v_permlane32_swap_b32 v{x}, v{y}")
    for y in ys: a(f"v_add_f32 v{y}, 1.0, v{y}")
    for y in ys: rbf(y, y)
    for t in range(5): a(f"v_mul_f32 v{ys[t]}, v{CL+t}, v{ys[t]}")
    for y in ys: rbf(y, y)
    for x, y in zip(xs, ys): a(f"v_add_f32 v{y}, v{y}, v{x}")
    for y in ys: a(f"v_cvt_pk_bf16_f32 v{y}, v{y}, 0")
    for t in range(5): a(f"ds_bpermute_b32 v{CL+t}, v9, v{ys[t]}")
    for t in range(5): a(f"s_waitcnt lgkmcnt({4-t})\nv_lshlrev_b32 v{CH+t}, 16, v{CL+t}")
    tile_finish()
    a(f"""v_mov_b32_dpp v25, v24 quad_perm:[1,0,3,2] row_mask:0xf bank_mask:0xf
    v_mov_b32 v26, s11
    v_cvt_pk_bf16_f32 v24, v24, v25
    v_cndmask_b32 v24, v24, v26, s[14:15]
    s_mov_b32 exec_lo, 0x557fffff
    s_mov_b32 exec_hi, 0x55555555
    global_store_dword v10, v24, s[40:41] sc1
    s_mov_b64 exec, -1""")
    stamp(4, 0, 108)
    a.label("L_tilebar")
    a("s_barrier")
    a.label("L_roles")
    a(f"""s_cmp_lt_u32 s3, 4
    s_cbranch_scc1 L_chain""")
    bufs = [(vAK, vAV)] + [(vB[i], vB[i]+12) for i in range(NB)]
    a(f"""s_mul_i32 s8, s5, {NSW}
    s_add_u32 s8, s8, s3
    s_cmp_ge_u32 s5, 3
    s_cbranch_scc1 L_fill
    s_add_u32 s8, s8, {BASE1 - 4}
    s_mul_i32 s62, s8, 3072
    s_cmp_ge_u32 s3, {4+NST}
    s_cbranch_scc1 L_fillq2""")
    loadK(vAK); loadV(vAV)
    a("s_branch L_filled")
    a.label("L_fillq2")
    LASTB = bufs[1] if NL else bufs[-1]
    loadK(LASTB[0]); loadV(LASTB[1])
    a("s_branch L_filled")
    a.label("L_fill")
    a(f"""s_sub_u32 s8, s8, 40
    s_mul_i32 s62, s8, 3072""")
    stamp(0, 4)

    issued = 0
    for bi, (kr, vr) in enumerate(bufs):
        for which in (0, 1):
            for j in range(3):
                if issued in SLOW: a(f"s_waitcnt vmcnt({SLOW[issued]})")
                elif issued >= PW: a(f"s_waitcnt vmcnt({PW-1})")
                r = (kr if which == 0 else vr) + 4*j
                a(f"buffer_load_dwordx4 v[{r}:{r+3}], v{vOFF}, s[{44+4*which}:{47+4*which}], s62 offen offset:{128*j} {VLD if which else KLD}")
                issued += 1
        if bi < NB + NL: a(f"s_add_u32 s62, s62, {60*3072}")
    if NL: a(f"s_sub_u32 s11, s3, 4\ns_mul_i32 s11, s11, {6144*NL}\nv_lshl_add_u32 v9, v0, 4, s11")
    for li in range(NL):
        for which in (0, 1):
            for j in range(3):
                a(f"s_waitcnt vmcnt({PW-1})")
                a(f"s_add_u32 m0, s11, {L_W + 6144*li + 3072*which + 896*j}")
                a(f"buffer_load_dwordx4 v{vOFF}, s[{44+4*which}:{47+4*which}], s62 offen offset:{128*j} {VLD if which else KLD} lds")
        if li < NL-1: a(f"s_add_u32 s62, s62, {60*3072}")
    a.label("L_filled")
    a(f"""s_mul_i32 s8, s5, {NST}
    s_add_u32 s8, s8, s3
    s_add_u32 s8, s8, {BASE2 - 4}
    s_mul_i32 s62, s8, 3072
    v_mov_b32 v4, 0""")
    stamp(1, 4)
    lds_wait(L_FLAG, 3, "L_qready", 1)

    a.label("L_chain")
    a(f"""s_cmp_eq_u32 s3, 3
    s_cbranch_scc1 L_xwave
    s_setprio 2
    s_mul_i32 s8, s4, 768
    s_lshl_b32 s9, s3, 8
    s_add_u32 s8, s8, s9
    s_add_u32 s8, s8, {WS_GQ}
    s_add_u32 s60, s40, s8
    s_addc_u32 s61, s41, 0
    v_lshlrev_b32 v5, 2, v0
    v_lshl_add_u32 v5, s3, 7, v5
    v_mov_b32 v6, 0
    v_mov_b32 v7, 1
    s_waitcnt lgkmcnt(0)
    s_add_u32 s88, s6, {hex(TAGC)}""")
    def qreg(k):
        if k < 16: return 44 + k
        if k < 32: return 68 + k - 16
        if k < 40: return 8 + k - 32
        return 84 + k - 40
    a.label("L_qpoll")
    a(f"""s_load_dwordx16 s[44:59], s[60:61], 0 glc
    s_load_dwordx16 s[68:83], s[60:61], 64 glc
    s_load_dwordx8 s[8:15], s[60:61], 128 glc
    s_load_dwordx4 s[84:87], s[60:61], 160 glc
    s_waitcnt lgkmcnt(0)
    s_xor_b32 s89, s{qreg(3)}, s88""")
    for g in range(1, 11): a(f"s_xor_b32 s90, s{qreg(4*g+3)}, s88\ns_or_b32 s89, s89, s90")
    a(f"""s_cbranch_scc0 L_qgot
    s_add_u32 s67, s67, 1
    s_cmp_gt_u32 s67, {SPIN}
    s_cbranch_scc1 L_end
    s_sleep 2
    s_branch L_qpoll""")
    a.label("L_qgot")
    for i in range(32): a(f"v_writelane_b32 v4, s{qreg(4*(i//3) + i%3)}, {i}")
    a(f"""s_mov_b32 exec_hi, 0
    ds_write_b32 v5, v4 offset:{L_Q}
    s_mov_b64 exec, 1
    ds_add_u32 v6, v7 offset:{L_FLAG}
    s_mov_b64 exec, -1""")
    stamp(5, 0, 44)
    a("s_branch L_tail")

    a.label("L_xwave")
    XT = 48; XG = 88
    a(f"""s_cmp_lt_u32 s2, 216
    s_cbranch_scc1 L_tail
    s_sub_u32 s9, s2, 196""")
    a.label("L_xrest")
    a(f"""v_mul_u32_u24 v4, 7680, v2
    v_lshl_add_u32 v4, v3, 4, v4
    s_lshl_b32 s14, s9, 7
    s_add_u32 s52, s34, s14
    s_addc_u32 s53, s35, 0
    s_sub_u32 s54, {640*7680}, s14
    s_mov_b32 s10, 0
    s_mov_b32 s11, 0
    v_lshlrev_b32 v7, 1, v2
    v_mov_b32 v6, 0""")
    for i in range(8): a(f"v_mov_b32 v{XG+i}, 0")
    lds_wait(L_FLAG, 3, "L_xrloop", 4, vz=6)
    a.label("L_xrloop")
    for rb in range(10): a(f"global_load_ushort v{24+rb}, v7, s[32:33] offset:{16*rb}")
    for rb in range(10):
        a(f"buffer_load_dwordx4 v[{XT+4*rb}:{XT+4*rb+3}], v4, s[52:55], s10 offen {LD}")
        a(f"s_add_u32 s10, s10, {8*7680}")
    a("s_waitcnt vmcnt(10)")
    for rb in range(10):
        x, t = 24+rb, 34+rb
        a(f"""v_lshlrev_b32 v{x}, 16, v{x}
        v_mul_f32 v{t}, s42, v{x}
        v_exp_f32 v{t}, -v{t}
        v_add_f32 v{t}, 1.0, v{t}
        v_rcp_f32 v{t}, v{t}
        v_mul_f32 v{x}, v{x}, v{t}""")
        rbf(x, x)
        a(f"v_lshrrev_b32 v{t}, 16, v{x}")
    a("s_waitcnt vmcnt(0)")
    tile_dots(XG, XT, 10, [24+rb for rb in range(10)], [34+rb for rb in range(10)])
    a(f"""v_add_u32 v7, 160, v7
    s_add_u32 s11, s11, 1
    s_cmp_lt_u32 s11, 8
    s_cbranch_scc1 L_xrloop""")
    tile_reduce8(XG, 's[12:13]')
    rbf(XG, XG)
    a(f"""s_lshl_b32 s9, s9, 9
    s_add_u32 s9, s9, {WS_GM}
    s_add_u32 s8, s6, {hex(TAGC)}
    v_lshl_add_u32 v5, v3, 3, v2
    v_lshl_add_u32 v5, v5, 3, s9
    v_mov_b32 v{XG+1}, s8
    global_store_dwordx2 v5, v[{XG}:{XG+1}], s[40:41] sc1""")
    stamp(7, 3, 44)
    a("s_branch L_tail")

    def read_q_init():
        a(f"""v_lshlrev_b32 v4, 4, v3
        ds_read_b128 v[{vQ}:{vQ+3}], v4 offset:{L_Q}
        ds_read_b128 v[{vQ+4}:{vQ+7}], v4 offset:{L_Q+128}
        ds_read_b128 v[{vQ+8}:{vQ+11}], v4 offset:{L_Q+256}
        v_mov_b32 v{vM}, 0xff7fffff
        v_mov_b32 v{vLS}, 0
        v_mov_b32 v{vU+4}, 0
        v_mov_b32 v{vU+5}, 1""")
        for i in range(24): a(f"v_mov_b32 v{vACC+i}, 0")
        a("s_waitcnt lgkmcnt(0)")

    a.label("L_qready")
    read_q_init()
    stamp(8, 4)
    nrest = 6*(NB+NL)
    a(f"""s_cmp_ge_u32 s3, {4+NST}
    s_cbranch_scc1 L_catch2
    s_setprio {P.get('sprio', 0)}
    s_cmp_ge_u32 s5, 3
    s_cbranch_scc1 L_catch1
    s_waitcnt vmcnt(0)""")
    a.label("L_catch1")
    a(f"s_waitcnt vmcnt({3+nrest})")
    qk_dots(vAK)
    ticket(); loadK(vAK)
    softmax()
    a(f"s_waitcnt vmcnt({nrest+4})")
    pv(vAV)
    loadV(vAV)
    a("s_cmp_lt_u32 s5, 3\ns_cbranch_scc1 L_loop")
    def lds_unit(li):
        a(f"s_sub_u32 s11, s3, 4\ns_mul_i32 s11, s11, {6144*NL}\nv_lshl_add_u32 v{vU}, v0, 4, s11")
        for k in range(6): a(f"ds_read_b128 v[{vB[0]+4*k}:{vB[0]+4*k+3}], v{vU} offset:{L_W + 6144*li + 1024*k}")
        a("s_waitcnt lgkmcnt(0)")
    for bi in range(NB):
        left = 6*(NB+NL-bi-1)
        a(f"s_waitcnt vmcnt({3+left+7})")
        qk_dots(vB[bi]); softmax()
        a(f"s_waitcnt vmcnt({left+7})")
        pv(vB[bi]+12)
    for li in range(NL):
        a(f"s_waitcnt vmcnt({6*(NL-li-1)+7})")
        lds_unit(li)
        qk_dots(vB[0]); softmax(); pv(vB[0]+12)
    stamp(9, 4)
    a.label("L_loop")
    a("s_waitcnt vmcnt(3)")
    a(f"v_readfirstlane_b32 s8, v{vTK}")
    qk_dots(vAK)
    a(f"""s_add_u32 s8, s8, {NSTAT}
    s_cmp_ge_u32 s8, {NUNITS}
    s_cbranch_scc1 L_drain
    s_mul_i32 s62, s8, 3072""")
    if STAMP: a("s_memrealtime s[92:93]\ns_lshr_b32 s94, s8, 7\ns_add_u32 m0, s94, 32\ns_waitcnt lgkmcnt(0)\nv_writelane_b32 v126, s92, m0")
    ticket(); loadK(vAK)
    softmax()
    a("s_waitcnt vmcnt(4)")
    pv(vAV)
    loadV(vAV)
    a("s_branch L_loop")

    a.label("L_drain")
    a("s_setprio 3")
    stamp(10)
    softmax(last=True)
    part_addr()
    a("s_waitcnt vmcnt(0)")
    pv(vAV)
    stamp(11)
    part_write()
    a("s_branch L_end")

    a.label("L_catch2")
    a("s_waitcnt vmcnt(0)\ns_cmp_lt_u32 s5, 3\ns_cbranch_scc1 L_catch3")
    for bi, (kr, vr) in enumerate(bufs):
        if NL == 0 and bi == len(bufs)-1: a.label("L_catch3")
        qk_dots(kr); softmax(last=(NL == 0 and bi == len(bufs)-1)); pv(vr)
    for li in range(NL):
        lds_unit(li)
        if li == NL-1: a.label("L_catch3")
        qk_dots(vB[0]); softmax(last=(li == NL-1)); pv(vB[0]+12)
    part_addr()
    part_write()
    a(f"""s_cmp_eq_u32 s3, 15
    s_cbranch_scc1 L_fwave
    s_cmp_lt_u32 s3, 12
    s_cbranch_scc1 L_end""")
    a(f"""s_sub_u32 s9, s3, 12
    s_lshl_b32 s8, s9, 8
    v_lshl_add_u32 v4, v0, 2, s8
    v_and_b32 v10, 15, v0
    v_min_u32 v11, 11, v10
    v_lshlrev_b32 v11, 3, v11
    v_cmp_gt_u32 s[14:15], 12, v10
    v_add_u32 v12, {L_PART}, v4
    s_lshl_b32 s8, s4, 3
    s_add_u32 s8, s8, s5
    s_lshl_b32 s8, s8, 10
    s_add_u32 s8, s8, {WS_G3}
    v_add_u32 v4, s8, v4""")
    lds_wait(L_FLAG+4, 12, "L_cml", 2, vz=52)
    a.label("L_cml")
    a(f"""ds_read_b64 v[6:7], v11 offset:{L_ML}
    s_waitcnt lgkmcnt(0)
    v_mov_b32 v8, v6
    v_cndmask_b32 v7, 0, v7, s[14:15]""")
    red16('v_max_f32', [8])
    a(f"""v_sub_f32 v6, v6, v8
    v_mul_f32 v6, s42, v6
    v_exp_f32 v6, v6
    v_mov_b32 v40, 0
    v_mov_b32 v41, 0
    v_mul_f32 v9, v7, v6
    s_setprio 3
    s_cmp_lg_u32 s9, 0
    s_cbranch_scc1 L_cwait""")
    red16('v_add_f32', [9])
    a(f"""v_min_u32 v8, -2, v8
    v_min_u32 v9, -2, v9
    s_mov_b64 exec, 1
    global_store_dwordx2 v4, v[8:9], s[40:41] offset:768 sc1
    s_mov_b64 exec, -1""")
    a.label("L_cwait")
    lds_wait(L_FLAG+8, 12, "L_cgo", 0, vz=52)
    a.label("L_cgo")
    for k in range(6): a(f"ds_read2st64_b32 v[{24+2*k}:{25+2*k}], v12 offset0:{6*k} offset1:{6*k+3}")
    for k in range(12):
        if k % 2 == 0: a(f"s_waitcnt lgkmcnt({5-k//2})")
        a(f"v_fmac_f32_dpp v{40+(k&1)}, v6, v{24+k} row_newbcast:{k} row_mask:0xf bank_mask:0xf")
    a(f"""v_add_f32 v40, v40, v41
    v_min_u32 v40, -2, v40
    global_store_dword v4, v40, s[40:41] sc1
    s_mov_b64 exec, 1
    ds_add_u32 v52, v53 offset:{L_FLAG+8}
    s_mov_b64 exec, -1""")
    stamp(12)
    a("s_branch L_end")

    def dma(n, srd, voff, sstep, lbase):
        for t in range(n):
            v = voff[t] if isinstance(voff, list) else voff
            a(f"""s_mov_b32 s10, {t*sstep}
            s_add_u32 m0, s11, {lbase + 1024*t}
            buffer_load_dwordx4 v{v}, s[{srd}:{srd+3}], s10 offen {LD} lds""")
    a.label("L_tail")
    a(f"""s_setprio 0
    v_lshrrev_b32 v2, 4, v0
    v_and_b32 v3, 15, v0
    v_lshrrev_b32 v10, 2, v3
    v_lshl_add_u32 v10, v2, 3, v10
    v_and_b32 v11, 3, v0
    v_mov_b32 v4, 0
    v_lshrrev_b32 v12, 2, v0
    v_and_b32 v13, 31, v0
    v_lshlrev_b32 v13, 2, v13
    s_mov_b32 s14, 0xffff0000
    s_mov_b32 s15, 0xffff0000
    s_mov_b32 s55, 0x20000
    s_mov_b32 s59, 0x20000
    s_cmp_lg_u32 s3, 0
    s_cbranch_scc1 L_rolewait
    s_and_b32 s9, s2, 7
    s_mul_i32 s8, s9, {CNT_STRIDE}
    s_add_u32 s8, s8, {WS_CNT + 32*CNT_STRIDE}
    s_add_u32 s60, s40, s8
    s_addc_u32 s61, s41, 0""")
    lds_wait(L_FLAG+4, TRIG, "L_roleget", 1)
    a.label("L_roleget")
    a(f"""s_mov_b32 s8, 1
    s_atomic_add s8, s[60:61], 0 glc
    s_waitcnt lgkmcnt(0)
    s_lshl_b32 s8, s8, 3
    s_add_u32 s8, s8, s9
    s_add_u32 s8, s8, 1
    v_mov_b32 v5, s8
    ds_write_b32 v4, v5 offset:{L_ROLE}
    s_branch L_rolegot""")
    a.label("L_rolewait")
    lds_wait(L_ROLE, 1, "L_rolegot", 1)
    a.label("L_rolegot")
    if STAMP: a("v_writelane_b32 v126, s8, 26")
    stamp(24)
    a(f"""s_sub_u32 s66, s8, 1
    s_cmp_lt_u32 s66, 48
    s_cbranch_scc1 L_notw
    s_sub_u32 s64, s66, 48
    s_cmp_ge_u32 s64, 160
    s_cbranch_scc1 L_end""")
    BF = 64
    a(f"""s_mul_i32 s65, s64, 205
    s_lshr_b32 s65, s65, 11
    s_mul_i32 s8, s65, 10
    s_sub_u32 s64, s64, s8
    s_lshl_b32 s9, s65, 2
    s_add_u32 s9, s9, s3
    s_mul_i32 s8, s9, {96*1280}
    s_lshl_b32 s10, s64, 7
    s_add_u32 s8, s8, s10
    s_add_u32 s52, s24, s8
    s_addc_u32 s53, s25, 0
    s_sub_u32 s54, {6144*1280}, s8
    v_lshrrev_b32 v14, 3, v0
    v_mul_u32_u24 v14, 1280, v14
    v_and_b32 v16, 7, v0
    v_lshl_add_u32 v14, v16, 4, v14
    s_mul_i32 s11, s3, 12288""")
    dma(12, 52, 14, 8*1280, L_W)
    a(f"""v_lshlrev_b32 v15, 7, v10
    v_lshl_add_u32 v15, v11, 3, v15
    v_add_u32 v15, s11, v15
    s_lshr_b32 s9, s9, 1
    s_lshl_b32 s9, s9, 13
    s_add_u32 s9, s9, {WS_G3}
    v_lshl_add_u32 v16, v16, 10, s9
    s_and_b32 s8, s3, 1
    s_mul_i32 s8, s8, 384
    s_add_u32 s9, s9, s8
    v_lshlrev_b32 v17, 11, v2
    v_lshl_add_u32 v17, v3, 3, v17
    v_add_u32 v17, s9, v17
    s_mul_i32 s8, s3, 384
    v_and_b32 v19, 1, v2
    v_lshl_add_u32 v18, v3, 1, v19
    v_lshl_add_u32 v18, v18, 1, s8
    v_lshrrev_b32 v19, 5, v0
    v_lshl_add_u32 v12, v19, 7, v18
    v_lshl_add_u32 v19, v2, 4, s8
    v_lshlrev_b32 v13, 2, v0
    s_lshl_b32 s8, s3, 8
    v_add_u32 v20, s8, v13
    s_mul_i32 s8, s65, 2560
    s_lshl_b32 s10, s64, 8
    s_add_u32 s8, s8, s10
    s_add_u32 s8, s8, {WS_G4}
    v_add_u32 v21, s8, v13
    s_mov_b32 s12, 0
    s_mov_b32 s13, -1
    s_setprio 2""")
    lab = a.newlabel('ML'); a.label(lab)
    a("""global_load_dwordx2 v[6:7], v16, s[40:41] offset:768 sc1
    s_waitcnt vmcnt(0)
    v_max_u32 v8, v6, v7
    v_cmp_eq_u32 vcc, -1, v8""")
    spin_tail(lab)
    stamp(25)
    for ks in range(3):
        for nt in range(4):
            for hf in range(2):
                r = BF + 16*ks + 4*nt + 2*hf
                a(f"ds_read_b64_tr_b16 v[{r}:{r+1}], v15 offset:{L_W + 4096*ks + 512*hf + 32*nt}")
    a("v_mov_b32 v8, v6")
    red8('v_max_f32', 8)
    a(f"""v_sub_f32 v6, v6, v8
    v_mul_f32 v6, s42, v6
    v_exp_f32 v6, v6
    v_mul_f32 v7, v7, v6""")
    red8('v_add_f32', 7)
    a("v_rcp_f32 v7, v7\nv_mul_f32 v6, v6, v7")
    for r in range(4):
        a(f"v_mov_b32_dpp v8, v6 row_newbcast:{2*r} row_mask:{hex(1<<r)} bank_mask:0xf")
        a(f"v_mov_b32_dpp v22, v6 row_newbcast:{2*r+1} row_mask:{hex(1<<r)} bank_mask:0xf")
    for i in range(12): a(f"v_mov_b32 v{112+i}, -1")
    a("s_mov_b64 s[68:69], -1")
    lab = a.newlabel('G3')
    lds_wait(L_FLAG+8, 15, lab, 1)
    a.label(lab)
    a("s_mov_b64 exec, s[68:69]")
    for t in range(3):
        for b in range(2):
            r = 112 + 4*t + 2*b
            a(f"global_load_dwordx2 v[{r}:{r+1}], v17, s[40:41] offset:{1024*b+128*t} sc1")
    a(f"s_mov_b64 exec, -1\ns_waitcnt vmcnt({6*(PD-1)})")
    for t in range(3):
        a(f"v_pk_mul_f32 v[{48+2*t}:{49+2*t}], v[{112+4*t}:{113+4*t}], v[8:9] op_sel_hi:[1,0]")
    for t in range(3):
        a(f"v_pk_fma_f32 v[{48+2*t}:{49+2*t}], v[{114+4*t}:{115+4*t}], v[22:23], v[{48+2*t}:{49+2*t}] op_sel_hi:[1,0,1]")
    a("v_pk_add_f32 v[56:57], v[48:49], v[50:51]\nv_pk_add_f32 v[56:57], v[56:57], v[52:53]")
    nan_retry([56, 57], list(range(112, 124)), lab, 60, True)
    stamp(13)
    a("""v_mov_b32 v54, v50
    v_mov_b32 v55, v51
    v_permlane32_swap_b32 v48, v52
    v_permlane32_swap_b32 v49, v53
    v_permlane32_swap_b32 v50, v54
    v_permlane32_swap_b32 v51, v55
    v_pk_add_f32 v[48:49], v[48:49], v[52:53]
    v_pk_add_f32 v[50:51], v[50:51], v[54:55]""")
    rs_step(4, [(48, 49), (50, 51)])
    a(f"""v_cvt_pk_bf16_f32 v48, v48, v48
    v_cvt_pk_bf16_f32 v50, v50, v50
    ds_write_b16 v12, v48 offset:{L_O}
    ds_write_b16 v18, v50 offset:{L_O + 64}""")
    for ks in range(3): a(f"ds_read_b128 v[{24+4*ks}:{27+4*ks}], v19 offset:{L_O + 64*ks}")
    for ks in range(3):
        a(f"s_waitcnt lgkmcnt({2-ks})")
        for nt in range(4):
            c = '0' if ks == 0 else f"v[{40+4*nt}:{43+4*nt}]"
            a(f"v_mfma_f32_16x16x32_bf16 v[{40+4*nt}:{43+4*nt}], v[{24+4*ks}:{27+4*ks}], v[{BF+16*ks+4*nt}:{BF+16*ks+4*nt+3}], {c}")
    a(f"""v_cndmask_b32 v56, v40, v44, s[14:15]
    v_cndmask_b32 v57, v48, v52, s[14:15]
    v_cndmask_b32 v56, v56, v57, s[12:13]
    ds_write_b32 v20, v56 offset:{L_WP}
    s_waitcnt lgkmcnt(0)
    s_barrier
    s_cmp_lg_u32 s3, 0
    s_cbranch_scc1 L_end
    ds_read2st64_b32 v[24:25], v13 offset0:{L_WP//256} offset1:{L_WP//256+1}
    ds_read2st64_b32 v[26:27], v13 offset0:{L_WP//256+2} offset1:{L_WP//256+3}
    s_waitcnt lgkmcnt(1)
    v_add_f32 v24, v24, v25
    s_waitcnt lgkmcnt(0)
    v_add_f32 v26, v26, v27
    v_add_f32 v24, v24, v26
    v_min_u32 v24, -2, v24
    global_store_dword v21, v24, s[40:41] sc1""")
    stamp(14)
    a("s_branch L_end")

    a.label("L_notw")

    B1, B2 = 48, 88
    a(f"""s_mul_i32 s8, s3, {160*3072}
    s_lshl_b32 s9, s66, 6
    s_add_u32 s8, s8, s9
    s_add_u32 s52, s28, s8
    s_addc_u32 s53, s29, 0
    s_sub_u32 s54, {640*3072}, s8
    s_mul_i32 s8, s66, {32*1280}
    s_mul_i32 s9, s3, 320
    s_add_u32 s8, s8, s9
    s_add_u32 s56, s30, s8
    s_addc_u32 s57, s31, 0
    s_sub_u32 s58, {1536*1280}, s8
    v_mul_u32_u24 v14, 3072, v12
    v_lshl_add_u32 v14, v11, 4, v14
    s_mul_i32 s11, s3, 10240""")
    dma(10, 52, 14, 16*3072, L_W)
    a(f"""    v_lshlrev_b32 v15, 6, v10
    v_lshl_add_u32 v15, v11, 3, v15
    v_add_u32 v15, s11, v15
    v_mul_u32_u24 v16, 320, v10
    v_lshl_add_u32 v16, v11, 3, v16
    v_add_u32 v16, s11, v16""")
    W2A = 30
    for t in range(10):
        a(f"""v_add_u32 v5, {64*t}, v0
        v_mul_u32_u24 v6, 3277, v5
        v_lshrrev_b32 v6, 16, v6
        v_mul_u32_u24 v7, 960, v6
        v_lshl_add_u32 v{W2A+t}, v5, 4, v7""")
    if W2E: dma(10, 56, [W2A+t for t in range(10)], 0, L_W2)
    a(f"""v_and_b32 v5, 1, v2
    v_lshl_add_u32 v5, v3, 1, v5
    v_lshrrev_b32 v6, 5, v0
    v_lshl_add_u32 v6, v6, 6, v5
    v_add_u32 v7, 128, v5
    s_mul_i32 s8, s3, 160
    v_lshl_add_u32 v17, v6, 1, s9
    v_lshl_add_u32 v18, v7, 1, s9
    v_add_u32 v6, s8, v6
    v_add_u32 v7, s8, v7
    v_lshlrev_b32 v19, 2, v6
    v_lshlrev_b32 v20, 2, v7
    v_lshlrev_b32 v8, 2, v0
    global_load_ushort v40, v17, s[16:17]
    global_load_ushort v41, v17, s[16:17] offset:64
    global_load_ushort v42, v18, s[16:17]""")
    for t in range(5): a(f"global_load_dword v{24+t}, v8, s[16:17] offset:{256*t}")
    a(f"""v_lshlrev_b32 v6, 3, v6
    v_lshlrev_b32 v7, 3, v7
    v_add_u32 v6, {WS_GR}, v6
    v_add_u32 v7, {WS_GR}, v7
    v_add_u32 v8, 5120, v6
    v_add_u32 v9, 5120, v7
    v_add_u32 v21, 10240, v6
    v_add_u32 v22, 10240, v7
    s_waitcnt lgkmcnt(0)
    s_add_u32 s6, s6, {hex(TAGC)}""")
    lab = a.newlabel('GR'); a.label(lab)
    GRB = 88
    srcs = [(6, 0), (6, 256), (7, 0), (8, 0), (8, 256), (9, 0), (21, 0), (21, 256), (22, 0)]
    for i, (v, o) in enumerate(srcs): a(f"global_load_dwordx2 v[{GRB+2*i}:{GRB+2*i+1}], v{v}, s[40:41] offset:{o} sc1")
    a(f"s_waitcnt vmcnt(0)\nv_xor_b32 v5, s6, v{GRB+1}")
    for i in range(1, 9): a(f"v_bitop3_b32 v5, v5, v{GRB+2*i+1}, s6 bitop3:0xf6")
    a("v_cmp_ne_u32 vcc, 0, v5")
    spin_tail(lab, 4)
    for j in range(3):
        a(f"""v_lshlrev_b32 v{40+j}, 16, v{40+j}
        v_mov_b32 v{43+j}, v{GRB+2*j}
        v_mov_b32 v{120+j}, v{GRB+6+2*j}
        v_add_f32 v{123+j}, 1.0, v{GRB+12+2*j}""")
        rbf(123+j, 123+j)
    a("v_mov_b32 v46, 0")
    for t in range(5): a(f"v_lshlrev_b32 v5, 16, v{24+t}\nv_and_b32 v6, s7, v{24+t}\nv_add_f32 v46, v46, v5\nv_add_f32 v46, v46, v6")
    red16('v_add_f32', [46]); red_hi('v_add_f32', [46], [5])
    a(f"""v_mul_f32 v46, {hex(f2u(1/640))}, v46
    v_mul_u32_u24 v21, 10240, v2
    v_lshl_add_u32 v21, v3, 3, v21
    s_mul_i32 s8, s3, 640
    s_add_u32 s9, s8, {WS_G4}
    v_add_u32 v21, s9, v21
    s_mul_i32 s9, s66, 2560
    s_add_u32 s8, s8, s9
    s_add_u32 s8, s8, {WS_G5}
    v_lshl_add_u32 v22, v0, 2, s8
    s_mul_i32 s8, s3, 320
    v_lshl_add_u32 v23, v2, 4, s8
    s_lshl_b32 s8, s3, 7
    v_add_u32 v47, s8, v13
    s_lshl_b32 s8, s3, 3
    v_mov_b32 v9, s8
    s_lshl_b32 s8, s3, 6
    v_lshrrev_b32 v12, 1, v13
    v_add_u32 v12, s8, v12
    s_add_u32 s8, s8, {L_U}
    v_lshl_add_u32 v5, v2, 4, s8
    v_lshrrev_b32 v6, 2, v3
    v_mov_b32 v7, {L_ZERO}""")
    for g in range(4):
        a(f"v_cmp_eq_u32 vcc, {g}, v6\nv_cndmask_b32 v{[2,3,10,11][g]}, v7, v5, vcc")
    if not W2E:
        lds_wait(L_FLAG+8, 15, "L_mgo2", 1)
        a.label("L_mgo2")
        dma(10, 56, [W2A+t for t in range(10)], 0, L_W2)
    a("s_setprio 2\ns_waitcnt vmcnt(10)")
    for ks in range(5):
        for nt in range(2):
            for hf in range(2):
                r = B1 + 8*ks + 4*nt + 2*hf
                a(f"ds_read_b64_tr_b16 v[{r}:{r+1}], v15 offset:{L_W + 2048*ks + 256*hf + 32*nt}")
    B2R = [B2 + 4*nt for nt in range(8)] + [24, 28]
    a("s_waitcnt vmcnt(0)")
    stamp(25)
    XR = [B2 + 2*i for i in range(16)] + [32, 34, 36, 38]
    raw = [r+k for r in XR for k in range(2)]
    a("v_add_u32 v14, 5120, v21")
    for r in raw: a(f"v_mov_b32 v{r}, -1")
    lab = a.newlabel('G4')
    a("s_mov_b64 s[68:69], -1")
    lds_wait(L_FLAG+8, 15, lab, 1)
    a.label(lab)
    a("s_mov_b64 exec, s[68:69]")
    for t in range(5):
        for b in range(4):
            r = XR[4*t+b]
            a(f"global_load_dwordx2 v[{r}:{r+1}], v{21 if b < 2 else 14}, s[40:41] offset:{2560*(b&1)+128*t} sc1")
    a(f"s_mov_b64 exec, -1\ns_waitcnt vmcnt({20*(PD-1)})")
    YR = [24, 28, 26, 30, 4]
    for t in range(5): a(f"v_pk_add_f32 v[{YR[t]}:{YR[t]+1}], v[{XR[4*t]}:{XR[4*t]+1}], v[{XR[4*t+1]}:{XR[4*t+1]+1}]")
    for t in range(5): a(f"v_pk_add_f32 v[{YR[t]}:{YR[t]+1}], v[{YR[t]}:{YR[t]+1}], v[{XR[4*t+2]}:{XR[4*t+2]+1}]")
    for t in range(5): a(f"v_pk_add_f32 v[{YR[t]}:{YR[t]+1}], v[{YR[t]}:{YR[t]+1}], v[{XR[4*t+3]}:{XR[4*t+3]+1}]")
    a("""v_pk_add_f32 v[6:7], v[24:25], v[28:29]
    v_pk_add_f32 v[126:127], v[26:27], v[30:31]
    v_pk_add_f32 v[6:7], v[6:7], v[4:5]
    v_pk_add_f32 v[6:7], v[6:7], v[126:127]""".replace("v[126:127]", "v[44:45]" if False else "v[122:123]") if False else """v_pk_add_f32 v[6:7], v[24:25], v[28:29]
    v_pk_add_f32 v[6:7], v[6:7], v[26:27]
    v_pk_add_f32 v[6:7], v[6:7], v[30:31]
    v_pk_add_f32 v[6:7], v[6:7], v[4:5]""")
    nan_retry([6, 7], raw, lab, 8, True)
    stamp(15)
    a("v_mov_b32 v6, v4\nv_mov_b32 v7, v5")
    for x, y in ((24, 26), (28, 30), (4, 6)):
        a(f"v_permlane32_swap_b32 v{x}, v{y}\nv_permlane32_swap_b32 v{x+1}, v{y+1}")
    for x, y in ((24, 26), (28, 30), (4, 6)): a(f"v_pk_add_f32 v[{x}:{x+1}], v[{x}:{x+1}], v[{y}:{y+1}]")
    rs_step(4, [(24, 25), (28, 29), (4, 5)])
    C3 = [24, 28, 4]
    for c in C3: rbf(c, c)
    for j, c in enumerate(C3): a(f"v_mul_f32 v{c}, v{43+j}, v{c}")
    for c in C3: rbf(c, c)
    for j, c in enumerate(C3): a(f"v_add_f32 v{c}, v{40+j}, v{c}")
    for c in C3: rbf(c, c)
    a(f"""v_sub_f32 v25, v24, v46
    v_sub_f32 v29, v28, v46
    v_sub_f32 v5, v4, v46
    ds_write_b32 v19, v24 offset:{L_X2}
    ds_write_b32 v19, v28 offset:{L_X2+128}
    ds_write_b32 v20, v4 offset:{L_X2}
    v_mul_f32 v26, 0.5, v5
    v_add_f32 v30, v25, v29
    v_mul_f32 v31, v25, v25
    v_add_f32 v30, v30, v26
    v_fmac_f32 v31, v29, v29
    v_fmac_f32 v31, v26, v5""")
    red16('v_add_f32', [30, 31]); red_hi('v_add_f32', [30, 31], [6, 7])
    a(f"""ds_write_b64 v9, v[30:31] offset:{L_ST}
    v_mov_b32 v8, 0
    s_waitcnt vmcnt(0) lgkmcnt(0)
    s_barrier
    ds_read_b128 v[32:35], v8 offset:{L_ST}
    ds_read_b128 v[36:39], v8 offset:{L_ST+16}""")
    for nt in range(8):
        for hf in range(2):
            r = B2R[nt] + 2*hf
            a(f"ds_read_b64_tr_b16 v[{r}:{r+1}], v16 offset:{L_W2 + 1280*hf + 32*nt}")
    a(f"""s_waitcnt lgkmcnt(15)
    v_pk_add_f32 v[32:33], v[32:33], v[34:35]
    v_pk_add_f32 v[36:37], v[36:37], v[38:39]
    v_pk_add_f32 v[32:33], v[32:33], v[36:37]
    v_mul_f32 v32, {hex(f2u(1/640))}, v32
    v_mul_f32 v33, {hex(f2u(1/640))}, v33
    v_fma_f32 v33, -v32, v32, v33
    v_add_f32 v32, v32, v46
    v_max_f32 v33, 0, v33""")
    rbf(32, 32); rbf(33, 33)
    a(f"v_add_f32 v33, {hex(f2u(1e-5))}, v33")
    for c in C3: a(f"v_sub_f32 v{c}, v{c}, v32")
    rbf(33, 33)
    a("v_sqrt_f32 v33, v33")
    for c in C3: rbf(c, c)
    rbf(33, 33)
    a("v_rcp_f32 v33, v33")
    for c in C3: a(f"v_mul_f32 v{c}, v{c}, v33")
    for c in C3: rbf(c, c)
    for j, c in enumerate(C3): a(f"v_mul_f32 v{c}, v{c}, v{123+j}")
    for c in C3: rbf(c, c)
    for j, c in enumerate(C3): a(f"v_add_f32 v{c}, v{c}, v{120+j}")
    for c in C3: a(f"v_cvt_pk_bf16_f32 v{c}, v{c}, v{c}")
    a(f"""ds_write_b16 v17, v24 offset:{L_O}
    ds_write_b16 v17, v28 offset:{L_O+64}
    ds_write_b16 v18, v4 offset:{L_O}""")
    A1 = [24, 28, 32, 36, 40]
    for ks in range(5): a(f"ds_read_b128 v[{A1[ks]}:{A1[ks]+3}], v23 offset:{L_O + 64*ks}")
    D1 = [4, 120]
    for ks in range(5):
        a(f"s_waitcnt lgkmcnt({4-ks})")
        for nt in range(2):
            c = '0' if ks == 0 else f"v[{D1[nt]}:{D1[nt]+3}]"
            a(f"v_mfma_f32_16x16x32_bf16 v[{D1[nt]}:{D1[nt]+3}], v[{A1[ks]}:{A1[ks]+3}], v[{B1+8*ks+4*nt}:{B1+8*ks+4*nt+3}], {c}")
    for nt in range(8, 10):
        for hf in range(2):
            r = B2R[nt] + 2*hf
            a(f"ds_read_b64_tr_b16 v[{r}:{r+1}], v16 offset:{L_W2 + 1280*hf + 32*nt}")
    a(f"""v_cndmask_b32 v8, v4, v120, s[14:15]
    ds_write_b32 v47, v8 offset:{L_WP}
    s_waitcnt lgkmcnt(0)
    s_barrier
    ds_read_b32 v32, v13 offset:{L_WP}
    ds_read_b32 v33, v13 offset:{L_WP+128}
    ds_read_b32 v34, v13 offset:{L_WP+256}
    ds_read_b32 v35, v13 offset:{L_WP+384}
    s_waitcnt lgkmcnt(2)
    v_add_f32 v32, v32, v33
    s_waitcnt lgkmcnt(0)
    v_add_f32 v34, v34, v35
    v_add_f32 v32, v32, v34""")
    rbf(32, 32)
    a(f"""v_mul_f32 v33, s42, v32
    v_exp_f32 v33, -v33
    v_add_f32 v33, 1.0, v33
    v_rcp_f32 v33, v33
    v_mul_f32 v32, v32, v33
    v_cvt_pk_bf16_f32 v32, v32, v32
    ds_write_b16 v12, v32 offset:{L_U}""")
    A2 = [48, 52, 56, 60]
    for g in range(4): a(f"ds_read_b128 v[{A2[g]}:{A2[g]+3}], v{[2,3,10,11][g]}")
    D2 = [64, 68, 72]
    for g in range(4):
        a(f"s_waitcnt lgkmcnt({3-g})")
        for j in range(3):
            nt = 4*j + g
            if nt >= 10: continue
            c = '0' if g == 0 else f"v[{D2[j]}:{D2[j]+3}]"
            a(f"v_mfma_f32_16x16x32_bf16 v[{D2[j]}:{D2[j]+3}], v[{A2[g]}:{A2[g]+3}], v[{B2R[nt]}:{B2R[nt]+3}], {c}")
    a(f"""v_min_u32 v76, -2, v72
    s_mov_b32 exec_hi, 0
    global_store_dword v22, v76, s[40:41] offset:512 sc1
    s_mov_b64 exec, -1
    v_min_u32 v77, -2, v64
    v_min_u32 v78, -2, v68
    global_store_dword v22, v77, s[40:41] sc1
    global_store_dword v22, v78, s[40:41] offset:256 sc1""")
    stamp(16)
    a("s_branch L_end")

    a.label("L_fwave")
    lds_wait(L_ROLE, 1, "L_frole", 4, vz=52)
    a.label("L_frole")
    a(f"""s_sub_u32 s66, s8, 1
    s_cmp_ge_u32 s66, 40
    s_cbranch_scc1 L_end
    v_and_b32 v4, 3, v0
    v_lshrrev_b32 v5, 4, v0
    v_lshl_add_u32 v6, v4, 2, v5
    s_lshl_b32 s8, s66, 4
    v_add_u32 v6, s8, v6
    v_lshlrev_b32 v7, 3, v6
    v_add_u32 v7, {WS_GR + 1920*8}, v7
    s_waitcnt lgkmcnt(0)
    s_add_u32 s6, s6, {hex(TAGC)}""")
    lab = a.newlabel('GF'); a.label(lab)
    a(f"""global_load_dwordx2 v[50:51], v7, s[40:41] sc1
    s_waitcnt vmcnt(0)
    v_cmp_ne_u32 vcc, s6, v51""")
    spin_tail(lab, 4)
    a(f"""v_lshlrev_b32 v8, 2, v6
    v_lshrrev_b32 v7, 2, v0
    v_mul_u32_u24 v7, 2560, v7
    v_lshl_add_u32 v7, v4, 4, v7
    s_lshl_b32 s8, s66, 6
    s_add_u32 s8, s8, {WS_G5}
    v_add_u32 v7, s8, v7
    v_add_u32 v52, {16*2560}, v7
    v_add_u32 v53, {32*2560}, v7
    v_lshlrev_b32 v6, 1, v6
    v_mov_b32 v4, {WS_EPOCH}
    v_mov_b32 v5, s6""")
    for r in range(24, 36): a(f"v_mov_b32 v{r}, -1")
    a(f"""s_barrier
    ds_read_b32 v48, v8 offset:{L_X2}
    s_waitcnt lgkmcnt(0)
    s_barrier""")
    a("s_mov_b64 s[68:69], -1")
    lab = a.newlabel('G5'); a.label(lab)
    a(f"""s_mov_b64 exec, s[68:69]
    global_load_dwordx4 v[24:27], v7, s[40:41] sc1
    global_load_dwordx4 v[28:31], v52, s[40:41] sc1
    global_load_dwordx4 v[32:35], v53, s[40:41] sc1
    s_mov_b64 exec, -1
    s_waitcnt vmcnt({3*(PDF-1)})
    v_pk_add_f32 v[36:37], v[24:25], v[28:29]
    v_pk_add_f32 v[38:39], v[26:27], v[30:31]
    v_pk_add_f32 v[36:37], v[36:37], v[32:33]
    v_pk_add_f32 v[38:39], v[38:39], v[34:35]
    v_pk_add_f32 v[42:43], v[36:37], v[38:39]""")
    nan_retry([42, 43], list(range(24, 36)), lab, 40, True)
    stamp(17)
    rs_step(5, [(36, 38), (37, 39)])
    rs_step(4, [(36, 37)])
    dpp('v_add_f32', 36, 36, 36, 'row_ror:8'); dpp('v_add_f32', 36, 36, 36, 'row_ror:4')
    rbf(36, 36)
    a("v_mul_f32 v36, v50, v36"); rbf(36, 36)
    a(f"""v_add_f32 v36, v48, v36
    v_cvt_pk_bf16_f32 v36, v36, v36
    s_mov_b32 exec_lo, 0x000f000f
    s_mov_b32 exec_hi, 0x000f000f
    global_store_short v6, v36, s[36:37]
    s_cmp_lg_u32 s66, 0
    s_cbranch_scc1 L_fend
    s_mov_b64 exec, 1
    global_store_dword v4, v5, s[40:41] sc1""")
    a.label("L_fend")
    a("s_mov_b64 exec, -1")
    stamp(18)
    a.label("L_end")
    if STAMP:
        a(f"""s_mov_b64 exec, -1
        v_writelane_b32 v126, s67, 27
        v_writelane_b32 v126, s63, 28
        s_lshl_b32 s8, s2, 4
        s_add_u32 s8, s8, s3
        s_lshl_b32 s8, s8, 8
        s_add_u32 s8, s8, {WS_ST}
        v_lshl_add_u32 v4, v0, 2, s8
        global_store_dword v4, v126, s[40:41]""")
    a.label("L_exit")
    a("s_endpgm")

    body = a.text()
    out = HEADER
    out += f"; @launch grid=(256,1,1) block=(1024,1,1) lds={max(LDS_BYTES, L_W + 12*6144*NL)}\n"
    out += '.amdgcn_target "amdgcn-amd-amdhsa--gfx950"\n.text\n'
    out += f".globl {KN}\n.p2align 8\n.type {KN},@function\n{KN}:\n" + body
    out += f""".section .rodata,"a"
.p2align 6
.amdhsa_kernel {KN}
  .amdhsa_next_free_vgpr 128
  .amdhsa_next_free_sgpr 102
  .amdhsa_accum_offset 128
  .amdhsa_group_segment_fixed_size 0
  .amdhsa_kernarg_size 104
  .amdhsa_user_sgpr_count 2
  .amdhsa_user_sgpr_kernarg_segment_ptr 1
  .amdhsa_system_sgpr_workgroup_id_x 1
  .amdhsa_float_denorm_mode_32 3
.end_amdhsa_kernel
"""
    return out

if __name__ == '__main__':
    import json
    P = json.loads(sys.argv[2]) if len(sys.argv) > 2 else {}
    open(sys.argv[1], 'w').write(gen(P))
```

```python
import sys, math
from asmlib import Asm, f2u

KN = "adaLN_cond__gqa_block_cached__dense_activation_silu__decode_kernel"
HEADER = open('adaLN_cond__gqa_block_cached__dense_activation_silu__decode.s.ref').read().split('; Override')[0]

WS_EPOCH = 0
WS_CNT = 0x1000; CNT_STRIDE = 1152
WS_BOARD = 0xC000
WS_GM = 0x10000
WS_GR = WS_GM + 1280*8
WS_G1 = 0x20000
WS_GQ = 0x30000
WS_G3 = 0x100000
WS_G5 = WS_G3 + 0x40000
WS_G4 = WS_G5 + 48*2560
WS_ST = 0x200000
TAGC = 0x9E3779B9
NUNITS = 2048
HEADB = 16384*384
L_Q = 0
L_FLAG = 512
L_ZERO = 528
L_ROLE = L_FLAG + 12
L_PROG = 544
L_ML = 576
L_ST = 704
L_O = 1024
L_U = 2560
L_WP = 3072
L_X2 = 4096
L_PART = 6912
L_TP = 6912
L_W = 16384
L_W2 = L_W + 40960
LDS_BYTES = L_W + 81920

def gen(P):
    a = Asm()
    NSW = 12
    NB = P.get('nb', 2)
    PW = P.get('pw', 4)
    SLOW = {int(k): v for k, v in P.get('slow', {1: 0, 3: 1}).items()}
    STAMP = P.get('stamp', 0)
    SPIN = P.get('spin', 400000)
    NST = P.get('nst', 10)
    NL = P.get('nl', 1)
    TRIG = P.get('trig', 12)
    MTRIG = P.get('mtrig', TRIG)
    RTRIG = P.get('rtrig', 12)
    JIT = P.get('jit', 0); HN = P.get('hn', 0); HD = P.get('hd', 6); HS = P.get('hs', 8); HK = P.get('hk', 5)
    W2E = P.get('w2e', 1)
    IND = P.get('ind', 0); MST = P.get('mst', 0)
    PDF = P.get('pdf', 2)
    PD = P.get('pd', 1)
    BASE1 = 60*(NB+NL+1); BASE2 = BASE1 + 36
    NSTAT = BASE2 + 8*NST
    LD = P.get('ld', 'nt'); TLD = P.get('tld', LD); XLD = P.get('xld', LD); KLD = P.get('kld', LD); VLD = P.get('vld', LD)

    vL, vOFF = 0, 1
    vT = list(range(2, 10))
    vQ = 10
    vM, vLS = 22, 23
    vACC = 24
    vAK, vAV = 48, 60
    vB = [72, 96]
    vU = 120
    vTK = 127

    def stamp(k, cond_wave=None, r=None):
        if not STAMP: return
        a(f"""s_memrealtime s[92:93]
        s_waitcnt lgkmcnt(0)
        v_writelane_b32 v126, s92, {k}""")

    def rbf(d, s):
        a(f"v_cvt_pk_bf16_f32 v{d}, v{s}, v{s}\nv_and_b32 v{d}, s7, v{d}")

    def dpp(op, d, s0, s1, ctl):
        a(f"{op}_dpp v{d}, v{s0}, v{s1} {ctl} row_mask:0xf bank_mask:0xf")

    def red8(op, x):
        dpp(op, x, x, x, "quad_perm:[1,0,3,2]"); dpp(op, x, x, x, "quad_perm:[2,3,0,1]"); dpp(op, x, x, x, "row_half_mirror")
    def red16(op, xs):
        for ctl in ("quad_perm:[1,0,3,2]", "quad_perm:[2,3,0,1]", "row_half_mirror", "row_mirror"):
            for x in xs: dpp(op, x, x, x, ctl)
    def red_hi(op, xs, ts, bits=(4, 5)):
        for b in bits:
            sw = 'v_permlane16_swap_b32' if b == 4 else 'v_permlane32_swap_b32'
            for x, t in zip(xs, ts): a(f"v_mov_b32 v{t}, v{x}")
            for x, t in zip(xs, ts): a(f"{sw} v{x}, v{t}")
            for x, t in zip(xs, ts): a(f"{op} v{x}, v{x}, v{t}")
    def rs_step(bit, pairs):
        sw = 'v_permlane16_swap_b32' if bit == 4 else 'v_permlane32_swap_b32'
        for x, y in pairs: a(f"{sw} v{x}, v{y}")
        for x, y in pairs: a(f"v_add_f32 v{x}, v{x}, v{y}")

    def spin_tail(lab_retry, slp=1):
        done = a.newlabel('GD')
        a(f"""s_cbranch_vccz {done}
        s_add_u32 s67, s67, 1
        s_cmp_gt_u32 s67, {SPIN}
        s_cbranch_scc1 L_end
        s_sleep {slp}
        s_branch {lab_retry}""")
        a.label(done)

    def tile_dots(acc, tile, nrb, chi, clo):
        for rb in range(nrb):
            for d in range(4):
                a(f"v_dot2c_f32_bf16 v{acc+2*d}, v{tile+4*rb+d}, v{clo[rb]}")
                a(f"v_dot2c_f32_bf16 v{acc+2*d+1}, v{tile+4*rb+d}, v{chi[rb]}")
    def tile_reduce8(acc, sel):
        rs_step(5, [(acc+i, acc+4+i) for i in range(4)])
        rs_step(4, [(acc+i, acc+2+i) for i in range(2)])
        dpp('v_add_f32', acc, acc, acc, 'row_ror:8'); dpp('v_add_f32', acc+1, acc+1, acc+1, 'row_ror:8')
        a(f"v_cndmask_b32 v{acc}, v{acc}, v{acc+1}, {sel}")
    def tile_reduce4(acc):
        rs_step(5, [(acc+i, acc+4+i) for i in range(4)])
        rs_step(4, [(acc+i, acc+2+i) for i in range(2)])
        for ctl in ('row_ror:8', 'row_ror:4'):
            dpp('v_add_f32', acc, acc, acc, ctl); dpp('v_add_f32', acc+1, acc+1, acc+1, ctl)

    def loadK(r):
        for j in range(3): a(f"buffer_load_dwordx4 v[{r+4*j}:{r+4*j+3}], v{vOFF}, s[44:47], s62 offen offset:{128*j} {KLD}")
    def loadV(r):
        for j in range(3): a(f"buffer_load_dwordx4 v[{r+4*j}:{r+4*j+3}], v{vOFF}, s[48:51], s62 offen offset:{128*j} {VLD}")
    def ticket(prog=False):
        if JIT: return
        a("s_mov_b64 exec, 1")
        if prog and HN: a(f"ds_max_u32 v{vU+4}, v{vTK} offset:{L_PROG}")
        a(f"""global_atomic_add v{vTK}, v{vU+4}, v{vU+5}, s[60:61] sc0
        s_mov_b64 exec, -1""")
    def qk_dots(K):
        t0, t1, t2 = vT[0], vT[1], vT[2]
        a(f"v_mov_b32 v{t0}, 0\nv_mov_b32 v{t1}, 0\nv_mov_b32 v{t2}, 0")
        for r in range(4):
            for j in range(3):
                a(f"v_dot2c_f32_bf16 v{vT[j]}, v{K+4*j+r}, v{vQ+4*j+r}")
    def softmax(last=False):
        t0, t1, t2, t3, p, al = vT[0], vT[1], vT[2], vT[3], vT[4], vT[6]
        a(f"v_add_f32 v{t0}, v{t0}, v{t1}\nv_add_f32 v{t0}, v{t0}, v{t2}")
        red8('v_add_f32', t0)
        rbf(t0, t0)
        a(f"v_mul_f32 v{t0}, s43, v{t0}")
        rbf(t0, t0)
        a(f"v_max_f32 v{t1}, v{vM}, v{t0}")
        if last:
            dpp('v_max_f32', t1, t1, t1, 'row_ror:8')
            red_hi('v_max_f32', [t1], [t2])
        a(f"""v_sub_f32 v{t2}, v{vM}, v{t1}
        v_sub_f32 v{t3}, v{t0}, v{t1}
        v_mul_f32 v{t2}, s42, v{t2}
        v_mul_f32 v{t3}, s42, v{t3}
        v_exp_f32 v{al}, v{t2}
        v_exp_f32 v{p}, v{t3}
        v_mov_b32 v{vM}, v{t1}
        v_fma_f32 v{vLS}, v{vLS}, v{al}, v{p}""")
        if last:
            dpp('v_add_f32', vLS, vLS, vLS, 'row_ror:8')
            red_hi('v_add_f32', [vLS], [t2])
            a(f"""s_lshl_b32 s8, s3, 3
            v_mov_b32 v{t2}, s8
            v_mov_b32 v{t0}, 0
            v_mov_b32 v{t1}, 1
            s_mov_b64 exec, 1
            ds_write_b64 v{t2}, v[{vM}:{vLS}] offset:{L_ML-32}
            ds_add_u32 v{t0}, v{t1} offset:{L_FLAG+4}
            s_mov_b64 exec, -1""")
        for i in range(12):
            r = vACC + 2*i
            a(f"v_pk_mul_f32 v[{r}:{r+1}], v[{r}:{r+1}], v[{al}:{al+1}] op_sel_hi:[1,0]")
    def lds_wait(off, val, lab, slp, cmp='ge', vz=4, vd=5):
        top = a.newlabel('LW'); a.label(top)
        a(f"""ds_read_b32 v{vd}, v{vz} offset:{off}
        s_waitcnt lgkmcnt(0)
        v_readfirstlane_b32 s8, v{vd}
        s_cmp_ge_u32 s8, {val}
        s_cbranch_scc1 {lab}
        s_add_u32 s67, s67, 1
        s_cmp_gt_u32 s67, {SPIN*8}
        s_cbranch_scc1 L_end""")
        if slp: a(f"s_sleep {slp}")
        a(f"s_branch {top}")
    def part_addr():
        a(f"""v_lshrrev_b32 v52, 3, v0
        v_and_b32 v53, 7, v0
        v_mul_u32_u24 v52, 3, v52
        s_mul_i32 s8, s3, 768
        s_add_u32 s8, s8, {L_PART-4*768}
        v_lshl_add_u32 v53, v53, 5, s8
        s_mov_b32 s12, 0xff00ff00
        s_mov_b32 s13, 0xff00ff00""")
        for i in range(3):
            a(f"""v_add_u32 v54, {i}, v52
            v_lshrrev_b32 v55, 3, v54
            v_and_b32 v54, 7, v54
            v_lshl_add_u32 v55, v55, 8, v53
            v_lshl_add_u32 v{48+i}, v54, 2, v55""")
        a("v_mov_b32 v52, 0\nv_mov_b32 v53, 1")
    def part_write():
        for i in range(12): a(f"v_permlane32_swap_b32 v{vACC+i}, v{vACC+12+i}")
        for i in range(0, 12, 2): a(f"v_pk_add_f32 v[{vACC+i}:{vACC+i+1}], v[{vACC+i}:{vACC+i+1}], v[{vACC+12+i}:{vACC+13+i}]")
        for i in range(6): a(f"v_permlane16_swap_b32 v{vACC+i}, v{vACC+6+i}")
        for i in range(0, 6, 2): a(f"v_pk_add_f32 v[{vACC+i}:{vACC+i+1}], v[{vACC+i}:{vACC+i+1}], v[{vACC+6+i}:{vACC+7+i}]")
        for i in range(6): dpp('v_add_f32', vACC+i, vACC+i, vACC+i, 'row_ror:8')
        for i in range(3): a(f"v_cndmask_b32 v{vACC+i}, v{vACC+i}, v{vACC+3+i}, s[12:13]")
        for i in range(3): a(f"ds_write_b32 v{48+i}, v{vACC+i}")
        a(f"""s_mov_b64 exec, 1
        ds_add_u32 v52, v53 offset:{L_FLAG+8}
        s_mov_b64 exec, -1""")
    def nan_retry(regs, raw, lab, tmp, masked=False):
        done = a.newlabel('NR')
        if len(regs) == 1: a(f"v_cmp_u_f32 vcc, v{regs[0]}, v{regs[0]}")
        elif len(regs) == 2: a(f"v_cmp_u_f32 vcc, v{regs[0]}, v{regs[1]}")
        else: a(f"v_add_f32 v{tmp}, v{regs[0]}, v{regs[1]}\nv_cmp_u_f32 vcc, v{tmp}, v{regs[2]}")
        a(f"s_cbranch_vccz {done}")
        if masked: a("s_mov_b64 s[68:69], vcc")
        a(f"""s_add_u32 s67, s67, 1
        s_and_b32 s8, s67, 15
        s_cbranch_scc1 {lab}
        s_cmp_gt_u32 s67, {SPIN}
        s_cbranch_scc1 L_end
        s_cmp_eq_u32 s63, 1
        s_cbranch_scc1 {done}""")
        a(f"v_mov_b32 v{tmp}, v{raw[0]}")
        for i in range(1, len(raw), 2):
            if i+1 < len(raw): a(f"v_max3_u32 v{tmp}, v{tmp}, v{raw[i]}, v{raw[i+1]}")
            else: a(f"v_max_u32 v{tmp}, v{tmp}, v{raw[i]}")
        a(f"""v_cmp_eq_u32 vcc, -1, v{tmp}
        s_cbranch_vccnz {lab}
        s_mov_b32 s63, 1
        s_branch {lab}""")
        a.label(done)
    def pv(V):
        p = vT[4]
        for i in range(12):
            t = vU + 2*(i & 1)
            r = vACC + 2*i
            a(f"""v_lshlrev_b32 v{t}, 16, v{V+i}
            v_and_b32 v{t+1}, s7, v{V+i}
            v_pk_fma_f32 v[{r}:{r+1}], v[{t}:{t+1}], v[{p}:{p+1}], v[{r}:{r+1}] op_sel_hi:[1,0,1]""")

    if STAMP: a("s_memrealtime s[98:99]\nv_mov_b32 v126, 0\ns_mov_b32 s95, 0")
    a(f"""s_cmp_ge_u32 s2, 256
    s_cbranch_scc1 L_exit
    s_load_dwordx16 s[16:31], s[0:1], 0
    s_load_dwordx8 s[32:39], s[0:1], 64
    s_load_dwordx2 s[40:41], s[0:1], 96
    v_lshrrev_b32 v1, 6, v0
    v_readfirstlane_b32 s3, v1
    v_and_b32 v0, 63, v0""")
    if P.get('warm', 0):
        a(f"""s_cmp_ge_u32 s2, {P.get('warmwg', 16)}
        s_cbranch_scc1 L_nowarm
        s_cmp_lg_u32 s3, 15
        s_cbranch_scc1 L_nowarm
        s_getpc_b64 s[52:53]""")
        a.label("L_pc")
        a(f"""s_sub_u32 s52, s52, L_pc-{KN}
        s_subb_u32 s53, s53, 0
        s_mov_b32 s54, L_exit+4-{KN}
        s_mov_b32 s55, 0x20000
        v_lshlrev_b32 v5, 4, v0""")
        for i in range(P.get('warm')):
            a(f"s_mov_b32 s8, {1024*i}\nbuffer_load_dwordx4 v[120:123], v5, s[52:55], s8 offen")
        a.label("L_nowarm")
    a(f"""s_lshr_b32 s4, s2, 3
    s_lshl_b32 s5, s2, 2
    s_add_u32 s4, s4, s5
    s_and_b32 s4, s4, 31
    s_lshr_b32 s5, s2, 5
    s_mov_b32 s7, 0xffff0000
    s_mov_b32 s42, {hex(f2u(math.log2(math.e)))}
    s_mov_b32 s43, {hex(f2u(192 ** -0.5))}
    s_mov_b32 s67, 0
    s_mov_b32 s63, 0
    v_lshrrev_b32 v2, 3, v0
    v_and_b32 v3, 7, v0
    v_mul_u32_u24 v1, 384, v2
    v_lshl_add_u32 v1, v3, 4, v1
    s_mul_i32 s8, s4, {HEADB}
    s_mov_b32 s46, {HEADB}
    s_mov_b32 s47, 0x20000
    s_mov_b32 s50, {HEADB}
    s_mov_b32 s51, 0x20000
    s_mov_b32 s55, 0x20000
    s_mov_b32 s59, 0x20000
    s_mul_i32 s9, s4, {CNT_STRIDE}
    s_add_u32 s9, s9, {WS_CNT}
    v_mov_b32 v4, 0
    v_mov_b32 v5, 0
    v_mov_b32 v6, 0
    v_mov_b32 v7, 0
    ds_write_b128 v4, v[4:7] offset:{L_FLAG}
    ds_write_b128 v4, v[4:7] offset:{L_ZERO}
    ds_write_b32 v4, v4 offset:{L_PROG}
    s_waitcnt lgkmcnt(0)
    s_barrier""")
    if STAMP: a("v_writelane_b32 v126, s98, 22")
    stamp(23)
    a(f"""s_add_u32 s44, s18, s8
    s_addc_u32 s45, s19, 0
    s_add_u32 s48, s20, s8
    s_addc_u32 s49, s21, 0
    s_add_u32 s60, s40, s9
    s_addc_u32 s61, s41, 0
    s_load_dword s6, s[40:41], {WS_EPOCH}
    s_mov_b32 s12, 0xff00ff00
    s_mov_b32 s13, 0xff00ff00
    s_cmp_lt_u32 s5, 3
    s_cbranch_scc1 L_qtile
    s_lshr_b32 s9, s2, 3
    s_and_b32 s8, s9, 3
    s_cmp_eq_u32 s8, 3
    s_cbranch_scc1 L_roles
    s_sub_u32 s9, s5, 3
    s_mul_i32 s9, s9, 3
    s_add_u32 s9, s9, s8
    s_cmp_ge_u32 s9, 10
    s_cbranch_scc1 L_roles""")
    TILE = 48; CH = 24; CL = 30; TA = 40
    def tile_loads(stride, n=5):
        a(f"""s_mul_i32 s10, s3, {8*n*stride}
        v_mul_u32_u24 v4, {stride}, v2
        v_lshl_add_u32 v4, v3, 4, v4""")
        for t in range(n):
            a(f"buffer_load_dwordx4 v[{TILE+4*t}:{TILE+4*t+3}], v4, s[52:55], s10 offen {LD}")
            if t < n-1: a(f"s_add_u32 s10, s10, {8*stride}")
    def tile_finish(n=5, nwv=16, join=None):
        tile_dots(TA, TILE, n, [CH+t for t in range(n)], [CL+t for t in range(n)])
        tile_reduce8(TA, 's[12:13]')
        a(f"""ds_write_b32 v5, v{TA} offset:{L_TP}""")
        stamp(20)
        if join: a.label(join)
        a(f"""s_waitcnt vmcnt(0) lgkmcnt(0)
        s_barrier""")
        stamp(21)
        a(f"""s_cmp_lg_u32 s3, 0
        s_cbranch_scc1 L_tilebar
        v_lshlrev_b32 v5, 2, v0
        v_add_u32 v5, {L_TP}, v5""")
        for k in range(nwv//2): a(f"ds_read2st64_b32 v[{24+2*k}:{25+2*k}], v5 offset0:{2*k} offset1:{2*k+1}")
        for k in range(nwv//2):
            a(f"s_waitcnt lgkmcnt({nwv//2-1-k})")
            a(f"v_add_f32 v{24+2*k}, v{24+2*k}, v{25+2*k}")
            if k & 1: a(f"v_add_f32 v{22+2*k}, v{22+2*k}, v{24+2*k}")
        tops = [24+4*k for k in range((nwv//2+1)//2)]
        while len(tops) > 1:
            nxt = []
            for i in range(0, len(tops)-1, 2):
                a(f"v_add_f32 v{tops[i]}, v{tops[i]}, v{tops[i+1]}"); nxt.append(tops[i])
            if len(tops) & 1: nxt.append(tops[-1])
            tops = nxt
    def tile_ldsaddr():
        a(f"""v_lshl_add_u32 v5, v3, 3, v2
        s_lshl_b32 s8, s3, 8
        v_lshl_add_u32 v5, v5, 2, s8""")
        for i in range(8): a(f"v_mov_b32 v{TA+i}, 0")
    a.label("L_modtile")
    a(f"""s_lshl_b32 s9, s9, 3
    s_and_b32 s8, s2, 7
    s_add_u32 s9, s9, s8
    s_cmp_ge_u32 s3, 10
    s_cbranch_scc1 L_poison
    s_lshr_b32 s11, s9, 2
    s_and_b32 s15, s9, 3
    s_lshl_b32 s14, s11, 7
    s_mul_i32 s8, s15, {160*7680}
    s_add_u32 s14, s14, s8
    s_add_u32 s52, s34, s14
    s_addc_u32 s53, s35, 0
    s_sub_u32 s54, {640*7680}, s14
    s_mul_i32 s14, s15, 320
    s_lshl_b32 s8, s3, 5
    s_add_u32 s14, s14, s8
    v_lshl_add_u32 v7, v2, 1, s14""")
    for t in range(2): a(f"global_load_ushort v{CH+t}, v7, s[32:33] offset:{16*t}")
    tile_loads(7680, 2)
    tile_ldsaddr()
    a(f"""s_mul_i32 s14, s15, 10240
    s_lshl_b32 s8, s11, 9
    s_add_u32 s14, s14, s8
    s_add_u32 s14, s14, {WS_G1}
    v_lshl_add_u32 v6, v0, 3, s14
    s_waitcnt vmcnt(2)""")
    for t in range(2):
        x, u = CH+t, CL+t
        a(f"""v_lshlrev_b32 v{x}, 16, v{x}
        v_mul_f32 v{u}, s42, v{x}
        v_exp_f32 v{u}, -v{u}
        v_add_f32 v{u}, 1.0, v{u}
        v_rcp_f32 v{u}, v{u}
        v_mul_f32 v{x}, v{x}, v{u}""")
        rbf(x, x)
        a(f"v_lshrrev_b32 v{u}, 16, v{x}")
    a("s_waitcnt vmcnt(0)")
    stamp(19)
    tile_finish(2, 10, "L_modjoin")
    a(f"""s_add_u32 s8, s6, {hex(TAGC)}
    v_mov_b32 v25, s8
    global_store_dwordx2 v6, v[24:25], s[40:41] sc1""")
    stamp(6)
    a("s_branch L_tilebar")
    a.label("L_poison")
    a(f"""s_mul_i32 s14, s9, 6
    s_add_u32 s14, s14, s3
    s_lshl_b32 s14, s14, 10
    s_add_u32 s14, s14, {WS_G3 - 10*1024}
    v_lshl_add_u32 v6, v0, 4, s14
    v_mov_b32 v88, -1
    v_mov_b32 v89, -1
    v_mov_b32 v90, -1
    v_mov_b32 v91, -1
    global_store_dwordx4 v6, v[88:91], s[40:41] sc1
    s_cmp_lg_u32 s3, 15
    s_cbranch_scc1 L_modjoin
    s_cmp_lg_u32 s9, 40
    s_cbranch_scc1 L_noboard
    v_lshlrev_b32 v6, 8, v0
    v_add_u32 v6, {WS_BOARD}, v6
    v_mov_b32 v8, 0
    global_store_dword v6, v8, s[40:41] sc1""")
    a.label("L_noboard")
    a(f"""s_cmp_ge_u32 s9, 40
    s_cbranch_scc1 L_modjoin
    s_mul_i32 s14, s9, {CNT_STRIDE}
    s_add_u32 s14, s14, {WS_CNT}
    v_mov_b32 v6, s14
    v_mov_b32 v8, 0
    s_mov_b64 exec, 1
    global_store_dword v6, v8, s[40:41] sc1
    s_mov_b64 exec, -1
    s_branch L_modjoin""")
    a.label("L_qtile")
    a(f"""s_mul_i32 s8, s4, 384
    s_lshl_b32 s9, s5, 7
    s_add_u32 s8, s8, s9
    s_add_u32 s52, s22, s8
    s_addc_u32 s53, s23, 0
    s_sub_u32 s54, {640*12288}, s8
    v_lshlrev_b32 v5, 2, v0
    s_mul_i32 s14, s3, 40
    v_add_u32 v8, s14, v3
    v_lshlrev_b32 v7, 1, v8""")
    for t in range(5): a(f"global_load_dword v{70+t}, v5, s[16:17] offset:{256*t}")
    for t in range(5): a(f"global_load_ushort v{CL+t}, v7, s[16:17] offset:{16*t}")
    tile_loads(12288)
    a("s_barrier")
    a(f"""v_lshlrev_b32 v8, 3, v8
    v_and_b32 v9, 3, v2
    v_mul_u32_u24 v9, 10240, v9
    v_add_u32 v8, v8, v9
    v_lshrrev_b32 v9, 5, v0
    v_mul_u32_u24 v9, 5120, v9
    v_add_u32 v8, v8, v9
    v_add_u32 v8, {WS_G1}, v8
    v_lshlrev_b32 v9, 2, v2""")
    tile_ldsaddr()
    a(f"""v_lshrrev_b32 v10, 1, v0
    v_mul_u32_u24 v11, 43, v10
    v_lshrrev_b32 v11, 7, v11
    v_add_u32 v11, v11, v10
    v_lshlrev_b32 v11, 2, v11
    v_lshlrev_b32 v10, 4, v10
    v_add_u32 v10, 12, v10
    v_and_b32 v12, 1, v0
    v_cmp_eq_u32 s[14:15], 1, v12
    s_mul_i32 s8, s4, 768
    s_lshl_b32 s9, s5, 8
    s_add_u32 s8, s8, s9
    s_add_u32 s8, s8, {WS_GQ}
    v_cndmask_b32 v10, v11, v10, s[14:15]
    v_add_u32 v10, s8, v10
    s_waitcnt vmcnt(5)""")
    for t in range(5):
        a(f"v_lshlrev_b32 v{76+2*t}, 16, v{70+t}\nv_and_b32 v{77+2*t}, s7, v{70+t}")
    a("v_add_f32 v70, v76, v77")
    for i in range(2, 10): a(f"v_add_f32 v70, v70, v{76+i}")
    red16('v_add_f32', [70]); red_hi('v_add_f32', [70], [71])
    a(f"v_mul_f32 v70, {hex(f2u(1/640))}, v70")
    a("v_mov_b32 v72, 0")
    for i in range(10): a(f"v_sub_f32 v{76+i}, v{76+i}, v70\nv_fmac_f32 v72, v{76+i}, v{76+i}")
    red16('v_add_f32', [72]); red_hi('v_add_f32', [72], [71])
    a(f"v_mul_f32 v72, {hex(f2u(1/640))}, v72")
    rbf(70, 70); rbf(72, 72)
    a(f"v_add_f32 v72, {hex(f2u(1e-5))}, v72")
    rbf(72, 72)
    a("v_sqrt_f32 v72, v72")
    rbf(72, 72)
    a("v_rcp_f32 v72, v72")
    for t in range(5):
        r = CL+t
        a(f"v_lshlrev_b32 v{r}, 16, v{r}\nv_sub_f32 v{r}, v{r}, v70")
        rbf(r, r)
        a(f"v_mul_f32 v{r}, v{r}, v72")
        rbf(r, r)
    a(f"s_waitcnt lgkmcnt(0)\ns_add_u32 s11, s6, {hex(TAGC)}")
    stamp(2, 0, 108)
    GG = 88
    lab = a.newlabel('GM'); a.label(lab)
    for t in range(5):
        a(f"global_load_dwordx2 v[{GG+2*t}:{GG+2*t+1}], v8, s[40:41] offset:{64*t} sc1")
    a("s_waitcnt vmcnt(0)")
    a(f"v_xor_b32 v70, s11, v{GG+1}")
    for k in range(1, 5): a(f"v_bitop3_b32 v70, v70, v{GG+2*k+1}, s11 bitop3:0xf6")
    a("v_cmp_ne_u32 vcc, 0, v70")
    spin_tail(lab, P.get('gmslp', 2))
    stamp(3)
    xs = [GG+2*t for t in range(5)]; ys = [GG+2*t+1 for t in range(5)]
    for x in xs: dpp('v_add_f32', x, x, x, 'row_ror:8')
    red_hi('v_add_f32', xs, ys, bits=(4,))
    for x in xs: rbf(x, x)
    for x, y in zip(xs, ys): a(f"v_mov_b32 v{y}, v{x}")
    for x, y in zip(xs, ys): a(f"v_permlane32_swap_b32 v{x}, v{y}")
    for y in ys: a(f"v_add_f32 v{y}, 1.0, v{y}")
    for y in ys: rbf(y, y)
    for t in range(5): a(f"v_mul_f32 v{ys[t]}, v{CL+t}, v{ys[t]}")
    for y in ys: rbf(y, y)
    for x, y in zip(xs, ys): a(f"v_add_f32 v{y}, v{y}, v{x}")
    for y in ys: a(f"v_cvt_pk_bf16_f32 v{y}, v{y}, 0")
    for t in range(5): a(f"ds_bpermute_b32 v{CL+t}, v9, v{ys[t]}")
    for t in range(5): a(f"s_waitcnt lgkmcnt({4-t})\nv_lshlrev_b32 v{CH+t}, 16, v{CL+t}")
    tile_finish()
    a(f"""v_mov_b32_dpp v25, v24 quad_perm:[1,0,3,2] row_mask:0xf bank_mask:0xf
    v_mov_b32 v26, s11
    v_cvt_pk_bf16_f32 v24, v24, v25
    v_cndmask_b32 v24, v24, v26, s[14:15]
    s_mov_b32 exec_lo, 0x557fffff
    s_mov_b32 exec_hi, 0x55555555
    global_store_dword v10, v24, s[40:41] sc1
    s_mov_b64 exec, -1""")
    stamp(4, 0, 108)
    a.label("L_tilebar")
    a("s_barrier")
    a.label("L_roles")
    a(f"""s_cmp_lt_u32 s3, 4
    s_cbranch_scc1 L_chain""")
    bufs = [(vAK, vAV)] + [(vB[i], vB[i]+12) for i in range(NB)]
    a(f"""s_mul_i32 s8, s5, {NSW}
    s_add_u32 s8, s8, s3
    s_cmp_ge_u32 s5, 3
    s_cbranch_scc1 L_fill
    s_add_u32 s8, s8, {BASE1 - 4}
    s_mul_i32 s62, s8, 3072
    s_cmp_ge_u32 s3, {4+NST}
    s_cbranch_scc1 L_fillq2""")
    loadK(vAK); loadV(vAV)
    a("s_branch L_filled")
    a.label("L_fillq2")
    LASTB = bufs[1] if NL else bufs[-1]
    loadK(LASTB[0]); loadV(LASTB[1])
    a("s_branch L_filled")
    a.label("L_fill")
    a(f"""s_sub_u32 s8, s8, 40
    s_mul_i32 s62, s8, 3072""")
    stamp(0, 4)

    issued = 0
    for bi, (kr, vr) in enumerate(bufs):
        for which in (0, 1):
            for j in range(3):
                if issued in SLOW: a(f"s_waitcnt vmcnt({SLOW[issued]})")
                elif issued >= PW: a(f"s_waitcnt vmcnt({PW-1})")
                r = (kr if which == 0 else vr) + 4*j
                a(f"buffer_load_dwordx4 v[{r}:{r+3}], v{vOFF}, s[{44+4*which}:{47+4*which}], s62 offen offset:{128*j} {VLD if which else KLD}")
                issued += 1
        if bi < NB + NL: a(f"s_add_u32 s62, s62, {60*3072}")
    if NL: a(f"s_sub_u32 s11, s3, 4\ns_mul_i32 s11, s11, {6144*NL}\nv_lshl_add_u32 v9, v0, 4, s11")
    for li in range(NL):
        for which in (0, 1):
            for j in range(3):
                a(f"s_waitcnt vmcnt({PW-1})")
                a(f"s_add_u32 m0, s11, {L_W + 6144*li + 3072*which + 896*j}")
                a(f"buffer_load_dwordx4 v{vOFF}, s[{44+4*which}:{47+4*which}], s62 offen offset:{128*j} {VLD if which else KLD} lds")
        if li < NL-1: a(f"s_add_u32 s62, s62, {60*3072}")
    a.label("L_filled")
    a(f"""s_mul_i32 s8, s5, {NST}
    s_add_u32 s8, s8, s3
    s_add_u32 s8, s8, {BASE2 - 4}
    s_mul_i32 s62, s8, 3072
    v_mov_b32 v4, 0""")
    stamp(1, 4)
    lds_wait(L_FLAG, 3, "L_qready", 1)

    a.label("L_chain")
    a(f"""s_cmp_eq_u32 s3, 3
    s_cbranch_scc1 L_xwave
    s_setprio 2
    s_mul_i32 s8, s4, 768
    s_lshl_b32 s9, s3, 8
    s_add_u32 s8, s8, s9
    s_add_u32 s8, s8, {WS_GQ}
    s_add_u32 s60, s40, s8
    s_addc_u32 s61, s41, 0
    v_lshlrev_b32 v5, 2, v0
    v_lshl_add_u32 v5, s3, 7, v5
    v_mov_b32 v6, 0
    v_mov_b32 v7, 1
    s_waitcnt lgkmcnt(0)
    s_add_u32 s88, s6, {hex(TAGC)}""")
    def qreg(k):
        if k < 16: return 44 + k
        if k < 32: return 68 + k - 16
        if k < 40: return 8 + k - 32
        return 84 + k - 40
    a.label("L_qpoll")
    a(f"""s_load_dwordx16 s[44:59], s[60:61], 0 glc
    s_load_dwordx16 s[68:83], s[60:61], 64 glc
    s_load_dwordx8 s[8:15], s[60:61], 128 glc
    s_load_dwordx4 s[84:87], s[60:61], 160 glc
    s_waitcnt lgkmcnt(0)
    s_xor_b32 s89, s{qreg(3)}, s88""")
    for g in range(1, 11): a(f"s_xor_b32 s90, s{qreg(4*g+3)}, s88\ns_or_b32 s89, s89, s90")
    a(f"""s_cbranch_scc0 L_qgot
    s_add_u32 s67, s67, 1
    s_cmp_gt_u32 s67, {SPIN}
    s_cbranch_scc1 L_end
    s_sleep 2
    s_branch L_qpoll""")
    a.label("L_qgot")
    for i in range(32): a(f"v_writelane_b32 v4, s{qreg(4*(i//3) + i%3)}, {i}")
    a(f"""s_mov_b32 exec_hi, 0
    ds_write_b32 v5, v4 offset:{L_Q}
    s_mov_b64 exec, 1
    ds_add_u32 v6, v7 offset:{L_FLAG}
    s_mov_b64 exec, -1""")
    stamp(5, 0, 44)
    a("s_branch L_tail")

    a.label("L_xwave")
    XT = 48; XG = 88
    a(f"""s_cmp_lt_u32 s2, 216
    s_cbranch_scc1 L_tail
    s_sub_u32 s9, s2, 196""")
    a.label("L_xrest")
    a(f"""v_mul_u32_u24 v4, 7680, v2
    v_lshl_add_u32 v4, v3, 4, v4
    s_lshl_b32 s14, s9, 7
    s_add_u32 s52, s34, s14
    s_addc_u32 s53, s35, 0
    s_sub_u32 s54, {640*7680}, s14
    s_mov_b32 s10, 0
    s_mov_b32 s11, 0
    v_lshlrev_b32 v7, 1, v2
    v_mov_b32 v6, 0""")
    for i in range(8): a(f"v_mov_b32 v{XG+i}, 0")
    lds_wait(L_FLAG, 3, "L_xrloop", 4, vz=6)
    a.label("L_xrloop")
    for rb in range(10): a(f"global_load_ushort v{24+rb}, v7, s[32:33] offset:{16*rb}")
    for rb in range(10):
        a(f"buffer_load_dwordx4 v[{XT+4*rb}:{XT+4*rb+3}], v4, s[52:55], s10 offen {XLD}")
        a(f"s_add_u32 s10, s10, {8*7680}")
    a("s_waitcnt vmcnt(10)")
    for rb in range(10):
        x, t = 24+rb, 34+rb
        a(f"""v_lshlrev_b32 v{x}, 16, v{x}
        v_mul_f32 v{t}, s42, v{x}
        v_exp_f32 v{t}, -v{t}
        v_add_f32 v{t}, 1.0, v{t}
        v_rcp_f32 v{t}, v{t}
        v_mul_f32 v{x}, v{x}, v{t}""")
        rbf(x, x)
        a(f"v_lshrrev_b32 v{t}, 16, v{x}")
    a("s_waitcnt vmcnt(0)")
    tile_dots(XG, XT, 10, [24+rb for rb in range(10)], [34+rb for rb in range(10)])
    a(f"""v_add_u32 v7, 160, v7
    s_add_u32 s11, s11, 1
    s_cmp_lt_u32 s11, 8
    s_cbranch_scc1 L_xrloop""")
    tile_reduce8(XG, 's[12:13]')
    rbf(XG, XG)
    a(f"""s_lshl_b32 s9, s9, 9
    s_add_u32 s9, s9, {WS_GM}
    s_add_u32 s8, s6, {hex(TAGC)}
    v_lshl_add_u32 v5, v3, 3, v2
    v_lshl_add_u32 v5, v5, 3, s9
    v_mov_b32 v{XG+1}, s8
    global_store_dwordx2 v5, v[{XG}:{XG+1}], s[40:41] sc1""")
    stamp(7, 3, 44)
    a("s_branch L_tail")

    def read_q_init():
        a(f"""v_lshlrev_b32 v4, 4, v3
        ds_read_b128 v[{vQ}:{vQ+3}], v4 offset:{L_Q}
        ds_read_b128 v[{vQ+4}:{vQ+7}], v4 offset:{L_Q+128}
        ds_read_b128 v[{vQ+8}:{vQ+11}], v4 offset:{L_Q+256}
        v_mov_b32 v{vM}, 0xff7fffff
        v_mov_b32 v{vLS}, 0
        v_mov_b32 v{vU+4}, 0
        v_mov_b32 v{vU+5}, 1""")
        for i in range(24): a(f"v_mov_b32 v{vACC+i}, 0")
        a("s_waitcnt lgkmcnt(0)")

    a.label("L_qready")
    read_q_init()
    stamp(8, 4)
    nrest = 6*(NB+NL)
    a(f"""s_cmp_ge_u32 s3, {4+NST}
    s_cbranch_scc1 L_catch2
    s_setprio {P.get('sprio', 0)}
    s_cmp_ge_u32 s5, 3
    s_cbranch_scc1 L_catch1
    s_waitcnt vmcnt(0)""")
    a.label("L_catch1")
    a(f"s_waitcnt vmcnt({3+nrest})")
    qk_dots(vAK)
    ticket(); loadK(vAK)
    softmax()
    TK = 0 if JIT else 1
    a(f"s_waitcnt vmcnt({nrest+3+TK})")
    pv(vAV)
    loadV(vAV)
    a("s_cmp_lt_u32 s5, 3\ns_cbranch_scc1 L_loop")
    def lds_unit(li):
        a(f"s_sub_u32 s11, s3, 4\ns_mul_i32 s11, s11, {6144*NL}\nv_lshl_add_u32 v{vU}, v0, 4, s11")
        for k in range(6): a(f"ds_read_b128 v[{vB[0]+4*k}:{vB[0]+4*k+3}], v{vU} offset:{L_W + 6144*li + 1024*k}")
        a("s_waitcnt lgkmcnt(0)")
    for bi in range(NB):
        left = 6*(NB+NL-bi-1)
        a(f"s_waitcnt vmcnt({3+left+6+TK})")
        qk_dots(vB[bi]); softmax()
        a(f"s_waitcnt vmcnt({left+6+TK})")
        pv(vB[bi]+12)
    for li in range(NL):
        a(f"s_waitcnt vmcnt({6*(NL-li-1)+6+TK})")
        lds_unit(li)
        qk_dots(vB[0]); softmax(); pv(vB[0]+12)
    stamp(9, 4)
    a.label("L_loop")
    if JIT == 2: a("s_waitcnt vmcnt(5)\ns_mov_b32 s8, 1\ns_atomic_add s8, s[60:61], 0 glc")
    a("s_waitcnt vmcnt(3)")
    if JIT == 1: a("s_mov_b32 s8, 1\ns_atomic_add s8, s[60:61], 0 glc")
    if not JIT: a(f"v_readfirstlane_b32 s8, v{vTK}")
    qk_dots(vAK)
    if JIT: a("s_waitcnt lgkmcnt(0)")
    a(f"""s_add_u32 s8, s8, {NSTAT}
    s_cmp_ge_u32 s8, {NUNITS}
    s_cbranch_scc1 L_drain
    s_mul_i32 s62, s8, 3072""")
    if STAMP: a("s_memrealtime s[92:93]\ns_lshr_b32 s94, s8, 7\ns_add_u32 m0, s94, 32\ns_waitcnt lgkmcnt(0)\nv_writelane_b32 v126, s92, m0")
    ticket(True); loadK(vAK)
    softmax()
    a(f"s_waitcnt vmcnt({3+TK})")
    pv(vAV)
    loadV(vAV)
    a("s_branch L_loop")

    a.label("L_drain")
    a("s_setprio 3")
    stamp(10)
    softmax(last=True)
    part_addr()
    a("s_waitcnt vmcnt(0)")
    pv(vAV)
    stamp(11)
    part_write()
    a("s_branch L_end")

    a.label("L_catch2")
    a("s_waitcnt vmcnt(0)\ns_cmp_lt_u32 s5, 3\ns_cbranch_scc1 L_catch3")
    for bi, (kr, vr) in enumerate(bufs):
        if NL == 0 and bi == len(bufs)-1: a.label("L_catch3")
        qk_dots(kr); softmax(); pv(vr)
    for li in range(NL):
        lds_unit(li)
        if li == NL-1: a.label("L_catch3")
        qk_dots(vB[0]); softmax(); pv(vB[0]+12)
    if HN:
        a(f"""s_sub_u32 s9, s3, 12
        s_cmp_ge_u32 s9, {HN}
        s_cbranch_scc1 L_hfin
        s_mul_i32 s8, s5, {HN}
        s_add_u32 s8, s8, s9
        s_mul_i32 s8, s8, {32 // (8*HN) if HN <= 2 else 1}
        s_min_u32 s8, s8, 30
        s_add_u32 s8, s8, s4
        s_add_u32 s8, s8, 1
        s_and_b32 s8, s8, 31
        s_lshl_b32 s8, s8, 8
        s_add_u32 s8, s8, {WS_BOARD}
        s_add_u32 s74, s40, s8
        s_addc_u32 s75, s41, 0
        s_lshl_b32 s73, s5, 2
        s_add_u32 s73, s73, s9
        s_lshl_b32 s8, s4, 8
        s_add_u32 s8, s8, {WS_BOARD}
        s_add_u32 s76, s40, s8
        s_addc_u32 s77, s41, 0
        v_mov_b32 v101, s8""")
        def board_store():
            lab = a.newlabel('HB')
            a(f"""s_cmp_lg_u32 s73, 0
            s_cbranch_scc1 {lab}
            ds_read_b32 v5, v{vU+4} offset:{L_PROG}
            s_mov_b64 exec, 1
            s_waitcnt lgkmcnt(0)
            global_store_dword v101, v5, s[40:41] sc1
            s_mov_b64 exec, -1""")
            a.label(lab)
        a.label("L_help")
        board_store()
        a(f"""s_load_dword s71, s[74:75], 0 glc
        s_load_dword s70, s[76:77], 0 glc
        s_waitcnt lgkmcnt(0)
        s_add_u32 s70, s70, {HD}
        s_cmp_lt_u32 s70, s71
        s_cbranch_scc1 L_hgo
        s_add_u32 s67, s67, 1
        s_cmp_gt_u32 s67, {SPIN}
        s_cbranch_scc1 L_end
        s_mov_b32 s9, {HK}""")
        a.label("L_hdoze")
        a(f"""s_sleep {HS}
        ds_read_b32 v5, v{vU+4} offset:{L_FLAG+4}
        s_waitcnt lgkmcnt(0)
        v_readfirstlane_b32 s8, v5
        s_cmp_ge_u32 s8, {12 - NST - HN + 1}
        s_cbranch_scc1 L_hfin
        s_sub_u32 s9, s9, 1
        s_cmp_lg_u32 s9, 0
        s_cbranch_scc1 L_hdoze
        s_branch L_help""")
        a.label("L_hgo")
        a(f"""s_mov_b32 s8, 1
        s_atomic_add s8, s[60:61], 0 glc
        s_waitcnt lgkmcnt(0)
        s_add_u32 s8, s8, {NSTAT}
        s_cmp_ge_u32 s8, {NUNITS}
        s_cbranch_scc1 L_hfin
        s_mul_i32 s62, s8, 3072""")
        if STAMP: a("s_add_u32 s95, s95, 1")
        loadK(vAK); loadV(vAV)
        a("s_waitcnt vmcnt(3)")
        qk_dots(vAK); softmax()
        a("s_waitcnt vmcnt(0)")
        pv(vAV)
        a("s_branch L_help")
        a.label("L_hfin")
        a("s_setprio 3")
    dpp('v_max_f32', 3, vM, vM, 'row_ror:8')
    red_hi('v_max_f32', [3], [4])
    a(f"""v_sub_f32 v4, v{vM}, v3
    v_mul_f32 v4, s42, v4
    v_exp_f32 v8, v4
    v_mov_b32 v{vM}, v3
    v_mul_f32 v{vLS}, v{vLS}, v8""")
    dpp('v_add_f32', vLS, vLS, vLS, 'row_ror:8')
    red_hi('v_add_f32', [vLS], [4])
    a(f"""s_lshl_b32 s8, s3, 3
    v_mov_b32 v4, s8
    s_mov_b64 exec, 1
    ds_write_b64 v4, v[{vM}:{vLS}] offset:{L_ML-32}
    ds_add_u32 v{vU+4}, v{vU+5} offset:{L_FLAG+4}
    s_mov_b64 exec, -1""")
    for i in range(12):
        r = vACC + 2*i
        a(f"v_pk_mul_f32 v[{r}:{r+1}], v[{r}:{r+1}], v[8:9] op_sel_hi:[1,0]")
    part_addr()
    part_write()
    a(f"""s_cmp_eq_u32 s3, 15
    s_cbranch_scc1 L_fwave
    s_cmp_lt_u32 s3, 12
    s_cbranch_scc1 L_end""")
    a(f"""s_sub_u32 s9, s3, 12
    s_lshl_b32 s8, s9, 8
    v_lshl_add_u32 v4, v0, 2, s8
    v_and_b32 v10, 15, v0
    v_min_u32 v11, 11, v10
    v_lshlrev_b32 v11, 3, v11
    v_cmp_gt_u32 s[14:15], 12, v10
    v_add_u32 v12, {L_PART}, v4
    s_lshl_b32 s8, s4, 3
    s_add_u32 s8, s8, s5
    s_lshl_b32 s8, s8, 10
    s_add_u32 s8, s8, {WS_G3}
    v_add_u32 v4, s8, v4""")
    lds_wait(L_FLAG+4, 12, "L_cml", 2, vz=52)
    a.label("L_cml")
    a(f"""ds_read_b64 v[6:7], v11 offset:{L_ML}
    s_waitcnt lgkmcnt(0)
    v_mov_b32 v8, v6
    v_cndmask_b32 v7, 0, v7, s[14:15]""")
    red16('v_max_f32', [8])
    a(f"""v_sub_f32 v6, v6, v8
    v_mul_f32 v6, s42, v6
    v_exp_f32 v6, v6
    v_mov_b32 v40, 0
    v_mov_b32 v41, 0
    v_mul_f32 v9, v7, v6
    s_setprio 3
    s_cmp_lg_u32 s9, 0
    s_cbranch_scc1 L_cwait""")
    red16('v_add_f32', [9])
    a(f"""v_min_u32 v8, -2, v8
    v_min_u32 v9, -2, v9
    s_mov_b64 exec, 1
    global_store_dwordx2 v4, v[8:9], s[40:41] offset:768 sc1
    s_mov_b64 exec, -1""")
    a.label("L_cwait")
    lds_wait(L_FLAG+8, 12, "L_cgo", 0, vz=52)
    a.label("L_cgo")
    for k in range(6): a(f"ds_read2st64_b32 v[{24+2*k}:{25+2*k}], v12 offset0:{6*k} offset1:{6*k+3}")
    for k in range(12):
        if k % 2 == 0: a(f"s_waitcnt lgkmcnt({5-k//2})")
        a(f"v_fmac_f32_dpp v{40+(k&1)}, v6, v{24+k} row_newbcast:{k} row_mask:0xf bank_mask:0xf")
    a(f"""v_add_f32 v40, v40, v41
    v_min_u32 v40, -2, v40
    global_store_dword v4, v40, s[40:41] sc1
    s_mov_b64 exec, 1
    ds_add_u32 v52, v53 offset:{L_FLAG+8}
    s_mov_b64 exec, -1""")
    stamp(12)
    a("s_branch L_end")

    def dma(n, srd, voff, sstep, lbase):
        for t in range(n):
            v = voff[t] if isinstance(voff, list) else voff
            a(f"""s_mov_b32 s10, {t*sstep}
            s_add_u32 m0, s11, {lbase + 1024*t}
            buffer_load_dwordx4 v{v}, s[{srd}:{srd+3}], s10 offen {TLD} lds""")
    a.label("L_tail")
    a(f"""s_setprio 0
    v_lshrrev_b32 v2, 4, v0
    v_and_b32 v3, 15, v0
    v_lshrrev_b32 v10, 2, v3
    v_lshl_add_u32 v10, v2, 3, v10
    v_and_b32 v11, 3, v0
    v_mov_b32 v4, 0
    v_lshrrev_b32 v12, 2, v0
    v_and_b32 v13, 31, v0
    v_lshlrev_b32 v13, 2, v13
    s_mov_b32 s14, 0xffff0000
    s_mov_b32 s15, 0xffff0000
    s_mov_b32 s55, 0x20000
    s_mov_b32 s59, 0x20000""")
    lds_wait(L_FLAG+4, 12 - NST - HN + 1, "L_near", 4)
    a.label("L_near")
    a(f"""s_cmp_lg_u32 s3, 0
    s_cbranch_scc1 L_rolewait
    s_and_b32 s9, s2, 7
    s_mul_i32 s8, s9, {CNT_STRIDE}
    s_add_u32 s8, s8, {WS_CNT + 32*CNT_STRIDE}
    s_add_u32 s60, s40, s8
    s_addc_u32 s61, s41, 0""")
    lds_wait(L_FLAG+4, RTRIG, "L_roleget", 0)
    a.label("L_roleget")
    a(f"""s_mov_b32 s8, 1
    s_atomic_add s8, s[60:61], 0 glc
    s_waitcnt lgkmcnt(0)
    s_lshl_b32 s8, s8, 3
    s_add_u32 s8, s8, s9
    s_add_u32 s8, s8, 1
    v_mov_b32 v5, s8
    ds_write_b32 v4, v5 offset:{L_ROLE}
    s_branch L_rolegot""")
    a.label("L_rolewait")
    lds_wait(L_ROLE, 1, "L_rolegot", 0)
    a.label("L_rolegot")
    if STAMP: a("v_writelane_b32 v126, s8, 26")
    a(f"""s_sub_u32 s66, s8, 1
    s_cmp_lt_u32 s66, 48
    s_cbranch_scc1 L_notw
    s_sub_u32 s64, s66, 48
    s_cmp_ge_u32 s64, 160
    s_cbranch_scc1 L_end""")
    BF = 64
    a(f"""s_mul_i32 s65, s64, 205
    s_lshr_b32 s65, s65, 11
    s_mul_i32 s8, s65, 10
    s_sub_u32 s64, s64, s8
    s_lshl_b32 s9, s65, 2
    s_add_u32 s9, s9, s3
    s_mul_i32 s8, s9, {96*1280}
    s_lshl_b32 s10, s64, 7
    s_add_u32 s8, s8, s10
    s_add_u32 s52, s24, s8
    s_addc_u32 s53, s25, 0
    s_sub_u32 s54, {6144*1280}, s8
    v_lshrrev_b32 v14, 3, v0
    v_mul_u32_u24 v14, 1280, v14
    v_and_b32 v16, 7, v0
    v_lshl_add_u32 v14, v16, 4, v14
    s_mul_i32 s11, s3, 12288""")
    if RTRIG >= TRIG:
        dma(12, 52, 14, 8*1280, L_W)
        stamp(24)
    a(f"""v_lshlrev_b32 v15, 7, v10
    v_lshl_add_u32 v15, v11, 3, v15
    v_add_u32 v15, s11, v15
    s_lshr_b32 s9, s9, 1
    s_lshl_b32 s9, s9, 13
    s_add_u32 s9, s9, {WS_G3}
    v_lshl_add_u32 v16, v16, 10, s9
    s_and_b32 s8, s3, 1
    s_mul_i32 s8, s8, 384
    s_add_u32 s9, s9, s8
    v_lshlrev_b32 v17, 11, v2
    v_lshl_add_u32 v17, v3, 3, v17
    v_add_u32 v17, s9, v17
    s_mul_i32 s8, s3, 384
    v_and_b32 v19, 1, v2
    v_lshl_add_u32 v18, v3, 1, v19
    v_lshl_add_u32 v18, v18, 1, s8
    v_lshrrev_b32 v19, 5, v0
    v_lshl_add_u32 v12, v19, 7, v18
    v_lshl_add_u32 v19, v2, 4, s8
    v_lshlrev_b32 v13, 2, v0
    s_lshl_b32 s8, s3, 8
    v_add_u32 v20, s8, v13
    s_mul_i32 s8, s65, 2560
    s_lshl_b32 s10, s64, 8
    s_add_u32 s8, s8, s10
    s_add_u32 s8, s8, {WS_G4}
    v_add_u32 v21, s8, v13
    s_mov_b32 s12, 0
    s_mov_b32 s13, -1
    s_setprio 2""")
    def g3_loads():
        for t in range(3):
            for b in range(2):
                r = 112 + 4*t + 2*b
                a(f"global_load_dwordx2 v[{r}:{r+1}], v17, s[40:41] offset:{1024*b+128*t} sc1")
    if RTRIG < TRIG:
        lds_wait(L_FLAG+4, TRIG, "L_wgo", 0)
        a.label("L_wgo")
        dma(12, 52, 14, 8*1280, L_W)
        stamp(24)
    lab = a.newlabel('ML'); a.label(lab)
    a("global_load_dwordx2 v[6:7], v16, s[40:41] offset:768 sc1")
    g3_loads()
    a("""s_waitcnt vmcnt(0)
    v_max_u32 v8, v6, v7
    v_cmp_eq_u32 vcc, -1, v8""")
    spin_tail(lab)
    stamp(25)
    for ks in range(3):
        for nt in range(4):
            for hf in range(2):
                r = BF + 16*ks + 4*nt + 2*hf
                a(f"ds_read_b64_tr_b16 v[{r}:{r+1}], v15 offset:{L_W + 4096*ks + 512*hf + 32*nt}")
    a("v_mov_b32 v8, v6")
    red8('v_max_f32', 8)
    a(f"""v_sub_f32 v6, v6, v8
    v_mul_f32 v6, s42, v6
    v_exp_f32 v6, v6
    v_mul_f32 v7, v7, v6""")
    red8('v_add_f32', 7)
    a("v_rcp_f32 v7, v7\nv_mul_f32 v6, v6, v7")
    for r in range(4):
        a(f"v_mov_b32_dpp v8, v6 row_newbcast:{2*r} row_mask:{hex(1<<r)} bank_mask:0xf")
        a(f"v_mov_b32_dpp v22, v6 row_newbcast:{2*r+1} row_mask:{hex(1<<r)} bank_mask:0xf")
    a("s_mov_b32 s70, 0\ns_waitcnt lgkmcnt(0)\ns_branch L_g3chk")
    lab = a.newlabel('G3'); a.label(lab)
    a("s_cmp_lg_u32 s70, 0\ns_cbranch_scc1 L_g3ld\ns_mov_b32 s70, 1")
    lds_wait(L_FLAG+8, 15, "L_g3ld", 1)
    a.label("L_g3ld")
    stamp(30)
    a("s_mov_b64 exec, s[68:69]")
    g3_loads()
    a("s_mov_b64 exec, -1")
    a.label("L_g3chk")
    a("s_waitcnt vmcnt(0)")
    for t in range(3):
        a(f"v_pk_mul_f32 v[{48+2*t}:{49+2*t}], v[{112+4*t}:{113+4*t}], v[8:9] op_sel_hi:[1,0]")
    for t in range(3):
        a(f"v_pk_fma_f32 v[{48+2*t}:{49+2*t}], v[{114+4*t}:{115+4*t}], v[22:23], v[{48+2*t}:{49+2*t}] op_sel_hi:[1,0,1]")
    a("v_pk_add_f32 v[56:57], v[48:49], v[50:51]\nv_pk_add_f32 v[56:57], v[56:57], v[52:53]")
    nan_retry([56, 57], list(range(112, 124)), lab, 60, True)
    stamp(13)
    a("""v_mov_b32 v54, v50
    v_mov_b32 v55, v51
    v_permlane32_swap_b32 v48, v52
    v_permlane32_swap_b32 v49, v53
    v_permlane32_swap_b32 v50, v54
    v_permlane32_swap_b32 v51, v55
    v_pk_add_f32 v[48:49], v[48:49], v[52:53]
    v_pk_add_f32 v[50:51], v[50:51], v[54:55]""")
    rs_step(4, [(48, 49), (50, 51)])
    a(f"""v_cvt_pk_bf16_f32 v48, v48, v48
    v_cvt_pk_bf16_f32 v50, v50, v50
    ds_write_b16 v12, v48 offset:{L_O}
    ds_write_b16 v18, v50 offset:{L_O + 64}""")
    for ks in range(3): a(f"ds_read_b128 v[{24+4*ks}:{27+4*ks}], v19 offset:{L_O + 64*ks}")
    for ks in range(3):
        a(f"s_waitcnt lgkmcnt({2-ks})")
        for nt in range(4):
            c = '0' if ks == 0 else f"v[{40+4*nt}:{43+4*nt}]"
            a(f"v_mfma_f32_16x16x32_bf16 v[{40+4*nt}:{43+4*nt}], v[{24+4*ks}:{27+4*ks}], v[{BF+16*ks+4*nt}:{BF+16*ks+4*nt+3}], {c}")
    a(f"""v_cndmask_b32 v56, v40, v44, s[14:15]
    v_cndmask_b32 v57, v48, v52, s[14:15]
    v_cndmask_b32 v56, v56, v57, s[12:13]
    ds_write_b32 v20, v56 offset:{L_WP}
    s_waitcnt lgkmcnt(0)
    s_barrier
    s_cmp_lg_u32 s3, 0
    s_cbranch_scc1 L_end
    ds_read2st64_b32 v[24:25], v13 offset0:{L_WP//256} offset1:{L_WP//256+1}
    ds_read2st64_b32 v[26:27], v13 offset0:{L_WP//256+2} offset1:{L_WP//256+3}
    s_waitcnt lgkmcnt(1)
    v_add_f32 v24, v24, v25
    s_waitcnt lgkmcnt(0)
    v_add_f32 v26, v26, v27
    v_add_f32 v24, v24, v26
    v_min_u32 v24, -2, v24
    global_store_dword v21, v24, s[40:41] sc1""")
    stamp(14)
    a("s_branch L_end")

    a.label("L_notw")

    B1, B2 = 48, 88
    a(f"""s_mul_i32 s8, s3, {160*3072}
    s_lshl_b32 s9, s66, 6
    s_add_u32 s8, s8, s9
    s_add_u32 s52, s28, s8
    s_addc_u32 s53, s29, 0
    s_sub_u32 s54, {640*3072}, s8
    s_mul_i32 s8, s66, {32*1280}
    s_mul_i32 s9, s3, 320
    s_add_u32 s8, s8, s9
    s_add_u32 s56, s30, s8
    s_addc_u32 s57, s31, 0
    s_sub_u32 s58, {1536*1280}, s8
    v_mul_u32_u24 v14, 3072, v12
    v_lshl_add_u32 v14, v11, 4, v14
    s_mul_i32 s11, s3, 10240""")
    dma(10, 52, 14, 16*3072, L_W)
    a(f"""    v_lshlrev_b32 v15, 6, v10
    v_lshl_add_u32 v15, v11, 3, v15
    v_add_u32 v15, s11, v15
    v_mul_u32_u24 v16, 320, v10
    v_lshl_add_u32 v16, v11, 3, v16
    v_add_u32 v16, s11, v16""")
    W2A = 30
    for t in range(10):
        a(f"""v_add_u32 v5, {64*t}, v0
        v_mul_u32_u24 v6, 3277, v5
        v_lshrrev_b32 v6, 16, v6
        v_mul_u32_u24 v7, 960, v6
        v_lshl_add_u32 v{W2A+t}, v5, 4, v7""")
    if RTRIG < MTRIG:
        lds_wait(L_FLAG+4, MTRIG, "L_mgo", 0)
        a.label("L_mgo")
        dma(10, 52, 14, 16*3072, L_W)
        stamp(24)
    if W2E: dma(10, 56, [W2A+t for t in range(10)], 0, L_W2)
    a(f"""v_and_b32 v5, 1, v2
    v_lshl_add_u32 v5, v3, 1, v5
    v_lshrrev_b32 v6, 5, v0
    v_lshl_add_u32 v6, v6, 6, v5
    v_add_u32 v7, 128, v5
    s_mul_i32 s8, s3, 160
    v_lshl_add_u32 v17, v6, 1, s9
    v_lshl_add_u32 v18, v7, 1, s9
    v_add_u32 v6, s8, v6
    v_add_u32 v7, s8, v7
    v_lshlrev_b32 v19, 2, v6
    v_lshlrev_b32 v20, 2, v7
    v_lshlrev_b32 v8, 2, v0
    global_load_ushort v40, v17, s[16:17]
    global_load_ushort v41, v17, s[16:17] offset:64
    global_load_ushort v42, v18, s[16:17]""")
    for t in range(5): a(f"global_load_dword v{24+t}, v8, s[16:17] offset:{256*t}")
    a(f"""v_lshlrev_b32 v6, 3, v6
    v_lshlrev_b32 v7, 3, v7
    v_add_u32 v6, {WS_GR}, v6
    v_add_u32 v7, {WS_GR}, v7
    v_add_u32 v8, 5120, v6
    v_add_u32 v9, 5120, v7
    v_add_u32 v21, 10240, v6
    v_add_u32 v22, 10240, v7
    s_waitcnt lgkmcnt(0)
    s_add_u32 s6, s6, {hex(TAGC)}""")
    lab = a.newlabel('GR'); a.label(lab)
    GRB = 88
    srcs = [(6, 0), (6, 256), (7, 0), (8, 0), (8, 256), (9, 0), (21, 0), (21, 256), (22, 0)]
    for i, (v, o) in enumerate(srcs): a(f"global_load_dwordx2 v[{GRB+2*i}:{GRB+2*i+1}], v{v}, s[40:41] offset:{o} sc1")
    a(f"s_waitcnt vmcnt(0)\nv_xor_b32 v5, s6, v{GRB+1}")
    for i in range(1, 9): a(f"v_bitop3_b32 v5, v5, v{GRB+2*i+1}, s6 bitop3:0xf6")
    a("v_cmp_ne_u32 vcc, 0, v5")
    spin_tail(lab, 4)
    for j in range(3):
        a(f"""v_lshlrev_b32 v{40+j}, 16, v{40+j}
        v_mov_b32 v{43+j}, v{GRB+2*j}
        v_mov_b32 v{120+j}, v{GRB+6+2*j}
        v_add_f32 v{123+j}, 1.0, v{GRB+12+2*j}""")
        rbf(123+j, 123+j)
    a("v_mov_b32 v46, 0")
    for t in range(5): a(f"v_lshlrev_b32 v5, 16, v{24+t}\nv_and_b32 v6, s7, v{24+t}\nv_add_f32 v46, v46, v5\nv_add_f32 v46, v46, v6")
    red16('v_add_f32', [46]); red_hi('v_add_f32', [46], [5])
    a(f"""v_mul_f32 v46, {hex(f2u(1/640))}, v46
    v_mul_u32_u24 v21, 10240, v2
    v_lshl_add_u32 v21, v3, 3, v21
    s_mul_i32 s8, s3, 640
    s_add_u32 s9, s8, {WS_G4}
    v_add_u32 v21, s9, v21
    s_mul_i32 s9, s66, 2560
    s_add_u32 s8, s8, s9
    s_add_u32 s8, s8, {WS_G5}
    v_lshl_add_u32 v22, v0, 2, s8
    s_mul_i32 s8, s3, 320
    v_lshl_add_u32 v23, v2, 4, s8
    s_lshl_b32 s8, s3, 7
    v_add_u32 v47, s8, v13
    s_lshl_b32 s8, s3, 3
    v_mov_b32 v9, s8
    s_lshl_b32 s8, s3, 6
    v_lshrrev_b32 v12, 1, v13
    v_add_u32 v12, s8, v12
    s_add_u32 s8, s8, {L_U}
    v_lshl_add_u32 v5, v2, 4, s8
    v_lshrrev_b32 v6, 2, v3
    v_mov_b32 v7, {L_ZERO}""")
    for g in range(4):
        a(f"v_cmp_eq_u32 vcc, {g}, v6\nv_cndmask_b32 v{[2,3,10,11][g]}, v7, v5, vcc")
    if not W2E:
        lds_wait(L_FLAG+8, 15, "L_mgo2", 1)
        a.label("L_mgo2")
        dma(10, 56, [W2A+t for t in range(10)], 0, L_W2)
    a("s_setprio 2\ns_waitcnt vmcnt(10)")
    for ks in range(5):
        for nt in range(2):
            for hf in range(2):
                r = B1 + 8*ks + 4*nt + 2*hf
                a(f"ds_read_b64_tr_b16 v[{r}:{r+1}], v15 offset:{L_W + 2048*ks + 256*hf + 32*nt}")
    B2R = [B2 + 4*nt for nt in range(8)] + [24, 28]
    a("s_waitcnt vmcnt(0)")
    stamp(25)
    XR = [B2 + 2*i for i in range(16)] + [32, 34, 36, 38]
    raw = [r+k for r in XR for k in range(2)]
    a("v_add_u32 v14, 5120, v21")
    for r in raw: a(f"v_mov_b32 v{r}, -1")
    lab = a.newlabel('G4')
    a("s_mov_b64 s[68:69], -1")
    if IND:
        a(f"""v_mul_u32_u24 v6, 52, v0
        v_lshrrev_b32 v6, 8, v6
        v_mul_u32_u24 v7, {2560 - 640}, v6
        v_lshl_add_u32 v7, v0, 7, v7
        s_mul_i32 s8, s3, 640
        s_add_u32 s8, s8, {WS_G4 + 124}
        v_add_u32 v7, s8, v7
        v_add_u32 v8, {8*2560}, v7""")
        lds_wait(L_FLAG+8, 15, "L_ind0", 1)
        a.label("L_ind0")
        a("s_mov_b32 exec_hi, 0xff")
        a.label("L_ind")
        a(f"""global_load_dword v5, v7, s[40:41] sc1
        global_load_dword v6, v8, s[40:41] sc1
        s_add_u32 s67, s67, 1
        s_cmp_gt_u32 s67, {SPIN}
        s_cbranch_scc1 L_end
        s_waitcnt vmcnt(0)
        v_max_u32 v5, v5, v6
        v_cmp_eq_u32 vcc, -1, v5
        s_cbranch_vccnz L_ind""")
    else:
        lds_wait(L_FLAG+8, 15, lab, 1)
    a.label(lab)
    stamp(30)
    a("s_mov_b64 exec, s[68:69]")
    for t in range(5):
        for b in range(4):
            r = XR[4*t+b]
            a(f"global_load_dwordx2 v[{r}:{r+1}], v{21 if b < 2 else 14}, s[40:41] offset:{2560*(b&1)+128*t} sc1")
    a(f"s_mov_b64 exec, -1\ns_waitcnt vmcnt({20*(PD-1)})")
    YR = [24, 28, 26, 30, 4]
    for t in range(5): a(f"v_pk_add_f32 v[{YR[t]}:{YR[t]+1}], v[{XR[4*t]}:{XR[4*t]+1}], v[{XR[4*t+1]}:{XR[4*t+1]+1}]")
    for t in range(5): a(f"v_pk_add_f32 v[{YR[t]}:{YR[t]+1}], v[{YR[t]}:{YR[t]+1}], v[{XR[4*t+2]}:{XR[4*t+2]+1}]")
    for t in range(5): a(f"v_pk_add_f32 v[{YR[t]}:{YR[t]+1}], v[{YR[t]}:{YR[t]+1}], v[{XR[4*t+3]}:{XR[4*t+3]+1}]")
    a("""v_pk_add_f32 v[6:7], v[24:25], v[28:29]
    v_pk_add_f32 v[126:127], v[26:27], v[30:31]
    v_pk_add_f32 v[6:7], v[6:7], v[4:5]
    v_pk_add_f32 v[6:7], v[6:7], v[126:127]""".replace("v[126:127]", "v[44:45]" if False else "v[122:123]") if False else """v_pk_add_f32 v[6:7], v[24:25], v[28:29]
    v_pk_add_f32 v[6:7], v[6:7], v[26:27]
    v_pk_add_f32 v[6:7], v[6:7], v[30:31]
    v_pk_add_f32 v[6:7], v[6:7], v[4:5]""")
    nan_retry([6, 7], raw, lab, 8, True)
    stamp(15)
    a("v_mov_b32 v6, v4\nv_mov_b32 v7, v5")
    for x, y in ((24, 26), (28, 30), (4, 6)):
        a(f"v_permlane32_swap_b32 v{x}, v{y}\nv_permlane32_swap_b32 v{x+1}, v{y+1}")
    for x, y in ((24, 26), (28, 30), (4, 6)): a(f"v_pk_add_f32 v[{x}:{x+1}], v[{x}:{x+1}], v[{y}:{y+1}]")
    rs_step(4, [(24, 25), (28, 29), (4, 5)])
    C3 = [24, 28, 4]
    for c in C3: rbf(c, c)
    for j, c in enumerate(C3): a(f"v_mul_f32 v{c}, v{43+j}, v{c}")
    for c in C3: rbf(c, c)
    for j, c in enumerate(C3): a(f"v_add_f32 v{c}, v{40+j}, v{c}")
    for c in C3: rbf(c, c)
    a(f"""v_sub_f32 v25, v24, v46
    v_sub_f32 v29, v28, v46
    v_sub_f32 v5, v4, v46
    ds_write_b32 v19, v24 offset:{L_X2}
    ds_write_b32 v19, v28 offset:{L_X2+128}
    ds_write_b32 v20, v4 offset:{L_X2}
    v_mul_f32 v26, 0.5, v5
    v_add_f32 v30, v25, v29
    v_mul_f32 v31, v25, v25
    v_add_f32 v30, v30, v26
    v_fmac_f32 v31, v29, v29
    v_fmac_f32 v31, v26, v5""")
    red16('v_add_f32', [30, 31]); red_hi('v_add_f32', [30, 31], [6, 7])
    a(f"""ds_write_b64 v9, v[30:31] offset:{L_ST}
    v_mov_b32 v8, 0
    s_waitcnt vmcnt(0) lgkmcnt(0)""")
    if MST: stamp(48)
    a(f"""
    s_barrier
    ds_read_b128 v[32:35], v8 offset:{L_ST}
    ds_read_b128 v[36:39], v8 offset:{L_ST+16}""")
    if MST: stamp(49)
    a(f"""""")
    a(f"""s_waitcnt lgkmcnt(0)
    v_pk_add_f32 v[32:33], v[32:33], v[34:35]
    v_pk_add_f32 v[36:37], v[36:37], v[38:39]
    v_pk_add_f32 v[32:33], v[32:33], v[36:37]
    v_mul_f32 v32, {hex(f2u(1/640))}, v32
    v_mul_f32 v33, {hex(f2u(1/640))}, v33
    v_fma_f32 v33, -v32, v32, v33
    v_add_f32 v32, v32, v46
    v_max_f32 v33, 0, v33""")
    rbf(32, 32); rbf(33, 33)
    a(f"v_add_f32 v33, {hex(f2u(1e-5))}, v33")
    for c in C3: a(f"v_sub_f32 v{c}, v{c}, v32")
    rbf(33, 33)
    a("v_sqrt_f32 v33, v33")
    for c in C3: rbf(c, c)
    rbf(33, 33)
    a("v_rcp_f32 v33, v33")
    for c in C3: a(f"v_mul_f32 v{c}, v{c}, v33")
    for c in C3: rbf(c, c)
    for j, c in enumerate(C3): a(f"v_mul_f32 v{c}, v{c}, v{123+j}")
    for c in C3: rbf(c, c)
    for j, c in enumerate(C3): a(f"v_add_f32 v{c}, v{c}, v{120+j}")
    for c in C3: a(f"v_cvt_pk_bf16_f32 v{c}, v{c}, v{c}")
    a(f"""ds_write_b16 v17, v24 offset:{L_O}
    ds_write_b16 v17, v28 offset:{L_O+64}
    ds_write_b16 v18, v4 offset:{L_O}""")
    if MST: stamp(50)
    a(f"""""")
    A1 = [24, 28, 32, 36, 40]
    for ks in range(5): a(f"ds_read_b128 v[{A1[ks]}:{A1[ks]+3}], v23 offset:{L_O + 64*ks}")
    D1 = [4, 120]
    for ks in range(5):
        a(f"s_waitcnt lgkmcnt({4-ks})")
        for nt in range(2):
            c = '0' if ks == 0 else f"v[{D1[nt]}:{D1[nt]+3}]"
            a(f"v_mfma_f32_16x16x32_bf16 v[{D1[nt]}:{D1[nt]+3}], v[{A1[ks]}:{A1[ks]+3}], v[{B1+8*ks+4*nt}:{B1+8*ks+4*nt+3}], {c}")
    for nt in range(10):
        for hf in range(2):
            r = B2R[nt] + 2*hf
            a(f"ds_read_b64_tr_b16 v[{r}:{r+1}], v16 offset:{L_W2 + 1280*hf + 32*nt}")
    a(f"""v_cndmask_b32 v8, v4, v120, s[14:15]
    ds_write_b32 v47, v8 offset:{L_WP}
    s_waitcnt lgkmcnt(0)""")
    if MST: stamp(51)
    a(f"""
    s_barrier
    ds_read_b32 v32, v13 offset:{L_WP}
    ds_read_b32 v33, v13 offset:{L_WP+128}
    ds_read_b32 v34, v13 offset:{L_WP+256}
    ds_read_b32 v35, v13 offset:{L_WP+384}""")
    if MST: stamp(52)
    a(f"""
    s_waitcnt lgkmcnt(2)
    v_add_f32 v32, v32, v33
    s_waitcnt lgkmcnt(0)
    v_add_f32 v34, v34, v35
    v_add_f32 v32, v32, v34""")
    rbf(32, 32)
    a(f"""v_mul_f32 v33, s42, v32
    v_exp_f32 v33, -v33
    v_add_f32 v33, 1.0, v33
    v_rcp_f32 v33, v33
    v_mul_f32 v32, v32, v33
    v_cvt_pk_bf16_f32 v32, v32, v32
    ds_write_b16 v12, v32 offset:{L_U}""")
    if MST: stamp(53)
    a(f"""""")
    A2 = [48, 52, 56, 60]
    for g in range(4): a(f"ds_read_b128 v[{A2[g]}:{A2[g]+3}], v{[2,3,10,11][g]}")
    D2 = [64, 68, 72]
    for g in range(4):
        a(f"s_waitcnt lgkmcnt({3-g})")
        for j in range(3):
            nt = 4*j + g
            if nt >= 10: continue
            c = '0' if g == 0 else f"v[{D2[j]}:{D2[j]+3}]"
            a(f"v_mfma_f32_16x16x32_bf16 v[{D2[j]}:{D2[j]+3}], v[{A2[g]}:{A2[g]+3}], v[{B2R[nt]}:{B2R[nt]+3}], {c}")
    a(f"""v_min_u32 v76, -2, v72
    s_mov_b32 exec_hi, 0
    global_store_dword v22, v76, s[40:41] offset:512 sc1
    s_mov_b64 exec, -1
    v_min_u32 v77, -2, v64
    v_min_u32 v78, -2, v68
    global_store_dword v22, v77, s[40:41] sc1
    global_store_dword v22, v78, s[40:41] offset:256 sc1""")
    stamp(16)
    a("s_branch L_end")

    a.label("L_fwave")
    lds_wait(L_ROLE, 1, "L_frole", 4, vz=52)
    a.label("L_frole")
    a(f"""s_sub_u32 s66, s8, 1
    s_cmp_ge_u32 s66, 40
    s_cbranch_scc1 L_end
    v_and_b32 v4, 3, v0
    v_lshrrev_b32 v5, 4, v0
    v_lshl_add_u32 v6, v4, 2, v5
    s_lshl_b32 s8, s66, 4
    v_add_u32 v6, s8, v6
    v_lshlrev_b32 v7, 3, v6
    v_add_u32 v7, {WS_GR + 1920*8}, v7
    s_waitcnt lgkmcnt(0)
    s_add_u32 s6, s6, {hex(TAGC)}""")
    lab = a.newlabel('GF'); a.label(lab)
    a(f"""global_load_dwordx2 v[50:51], v7, s[40:41] sc1
    s_waitcnt vmcnt(0)
    v_cmp_ne_u32 vcc, s6, v51""")
    spin_tail(lab, 4)
    a(f"""v_lshlrev_b32 v8, 2, v6
    v_lshrrev_b32 v7, 2, v0
    v_mul_u32_u24 v7, 2560, v7
    v_lshl_add_u32 v7, v4, 4, v7
    s_lshl_b32 s8, s66, 6
    s_add_u32 s8, s8, {WS_G5}
    v_add_u32 v7, s8, v7
    v_add_u32 v52, {16*2560}, v7
    v_add_u32 v53, {32*2560}, v7
    v_lshlrev_b32 v6, 1, v6
    v_mov_b32 v4, {WS_EPOCH}
    v_mov_b32 v5, s6""")
    for r in range(24, 36): a(f"v_mov_b32 v{r}, -1")
    a(f"""s_barrier
    ds_read_b32 v48, v8 offset:{L_X2}
    s_waitcnt lgkmcnt(0)
    s_barrier""")
    a("s_mov_b64 s[68:69], -1")
    lab = a.newlabel('G5'); a.label(lab)
    stamp(30)
    a(f"""s_mov_b64 exec, s[68:69]
    global_load_dwordx4 v[24:27], v7, s[40:41] sc1
    global_load_dwordx4 v[28:31], v52, s[40:41] sc1
    global_load_dwordx4 v[32:35], v53, s[40:41] sc1
    s_mov_b64 exec, -1
    s_waitcnt vmcnt({3*(PDF-1)})
    v_pk_add_f32 v[36:37], v[24:25], v[28:29]
    v_pk_add_f32 v[38:39], v[26:27], v[30:31]
    v_pk_add_f32 v[36:37], v[36:37], v[32:33]
    v_pk_add_f32 v[38:39], v[38:39], v[34:35]
    v_pk_add_f32 v[42:43], v[36:37], v[38:39]""")
    nan_retry([42, 43], list(range(24, 36)), lab, 40, True)
    stamp(17)
    rs_step(5, [(36, 38), (37, 39)])
    rs_step(4, [(36, 37)])
    dpp('v_add_f32', 36, 36, 36, 'row_ror:8'); dpp('v_add_f32', 36, 36, 36, 'row_ror:4')
    rbf(36, 36)
    a("v_mul_f32 v36, v50, v36"); rbf(36, 36)
    a(f"""v_add_f32 v36, v48, v36
    v_cvt_pk_bf16_f32 v36, v36, v36
    s_mov_b32 exec_lo, 0x000f000f
    s_mov_b32 exec_hi, 0x000f000f
    global_store_short v6, v36, s[36:37]
    s_cmp_lg_u32 s66, 0
    s_cbranch_scc1 L_fend
    s_mov_b64 exec, 1
    global_store_dword v4, v5, s[40:41] sc1""")
    a.label("L_fend")
    a("s_mov_b64 exec, -1")
    stamp(18)
    a.label("L_end")
    if STAMP:
        a(f"""s_mov_b64 exec, -1
        v_writelane_b32 v126, s67, 27
        v_writelane_b32 v126, s63, 28
        v_writelane_b32 v126, s95, 29
        s_lshl_b32 s8, s2, 4
        s_add_u32 s8, s8, s3
        s_lshl_b32 s8, s8, 8
        s_add_u32 s8, s8, {WS_ST}
        v_lshl_add_u32 v4, v0, 2, s8
        global_store_dword v4, v126, s[40:41]""")
    a.label("L_exit")
    a("s_endpgm")

    body = a.text()
    out = HEADER
    out += f"; @launch grid=(256,1,1) block=(1024,1,1) lds={max(LDS_BYTES, L_W + 12*6144*NL)}\n"
    out += '.amdgcn_target "amdgcn-amd-amdhsa--gfx950"\n.text\n'
    out += f".globl {KN}\n.p2align 8\n.type {KN},@function\n{KN}:\n" + body
    out += f""".section .rodata,"a"
.p2align 6
.amdhsa_kernel {KN}
  .amdhsa_next_free_vgpr 128
  .amdhsa_next_free_sgpr 102
  .amdhsa_accum_offset 128
  .amdhsa_group_segment_fixed_size 0
  .amdhsa_kernarg_size 104
  .amdhsa_user_sgpr_count 2
  .amdhsa_user_sgpr_kernarg_segment_ptr 1
  .amdhsa_system_sgpr_workgroup_id_x 1
  .amdhsa_float_denorm_mode_32 3
.end_amdhsa_kernel
"""
    return out

if __name__ == '__main__':
    import json
    P = json.loads(sys.argv[2]) if len(sys.argv) > 2 else {}
    open(sys.argv[1], 'w').write(gen(P))
```

```python
import sys, math
from asmlib import Asm, f2u

KN = "adaLN_cond__gqa_block_cached__dense_activation_silu__decode_kernel"
HEADER = open('adaLN_cond__gqa_block_cached__dense_activation_silu__decode.s.ref').read().split('; Override')[0]

WS_EPOCH = 0
WS_CNT = 0x1000; CNT_STRIDE = 1152
WS_BOARD = 0xC000
WS_GM = 0x10000
WS_GR = WS_GM + 1280*8
WS_G1 = 0x20000
WS_GQ = 0x30000
WS_G3 = 0x100000
WS_G5 = WS_G3 + 0x40000
WS_G4 = WS_G5 + 48*2560
WS_ST = 0x200000
TAGC = 0x9E3779B9
NUNITS = 2048
HEADB = 16384*384
L_Q = 0
L_FLAG = 512
L_ZERO = 528
L_ROLE = L_FLAG + 12
L_PROG = 544
L_ML = 576
L_ST = 704
L_O = 1024
L_U = 2560
L_WP = 3072
L_X2 = 4096
L_PART = 6912
L_TP = 6912
L_W = 16384
L_W2 = L_W + 40960
LDS_BYTES = L_W + 81920

def gen(P):
    a = Asm()
    NSW = 12
    NB = P.get('nb', 2)
    PW = P.get('pw', 4)
    SLOW = {int(k): v for k, v in P.get('slow', {1: 0, 3: 1}).items()}
    STAMP = P.get('stamp', 0)
    SPIN = P.get('spin', 400000)
    NST = P.get('nst', 10)
    NL = P.get('nl', 1)
    TRIG = P.get('trig', 12)
    MTRIG = P.get('mtrig', TRIG)
    RTRIG = P.get('rtrig', 12)
    JIT = P.get('jit', 0); HN = P.get('hn', 0); HD = P.get('hd', 6); HS = P.get('hs', 8); HK = P.get('hk', 5)
    W2E = P.get('w2e', 1)
    IND = P.get('ind', 0); MST = P.get('mst', 0)
    PDF = P.get('pdf', 2)
    PD = P.get('pd', 1)
    BASE1 = 60*(NB+NL+1); BASE2 = BASE1 + 36
    NSTAT = BASE2 + 8*NST
    LD = P.get('ld', 'nt'); TLD = P.get('tld', LD); XLD = P.get('xld', LD); KLD = P.get('kld', LD); VLD = P.get('vld', LD)

    vL, vOFF = 0, 1
    vT = list(range(2, 10))
    vQ = 10
    vM, vLS = 22, 23
    vACC = 24
    vAK, vAV = 48, 60
    vB = [72, 96]
    vU = 120
    vTK = 127

    def stamp(k, cond_wave=None, r=None):
        if not STAMP: return
        a(f"""s_memrealtime s[92:93]
        s_waitcnt lgkmcnt(0)
        v_writelane_b32 v126, s92, {k}""")

    def rbf(d, s):
        a(f"v_cvt_pk_bf16_f32 v{d}, v{s}, v{s}\nv_and_b32 v{d}, s7, v{d}")

    def dpp(op, d, s0, s1, ctl):
        a(f"{op}_dpp v{d}, v{s0}, v{s1} {ctl} row_mask:0xf bank_mask:0xf")

    def red8(op, x):
        dpp(op, x, x, x, "quad_perm:[1,0,3,2]"); dpp(op, x, x, x, "quad_perm:[2,3,0,1]"); dpp(op, x, x, x, "row_half_mirror")
    def red16(op, xs):
        for ctl in ("quad_perm:[1,0,3,2]", "quad_perm:[2,3,0,1]", "row_half_mirror", "row_mirror"):
            for x in xs: dpp(op, x, x, x, ctl)
    def red_hi(op, xs, ts, bits=(4, 5)):
        for b in bits:
            sw = 'v_permlane16_swap_b32' if b == 4 else 'v_permlane32_swap_b32'
            for x, t in zip(xs, ts): a(f"v_mov_b32 v{t}, v{x}")
            for x, t in zip(xs, ts): a(f"{sw} v{x}, v{t}")
            for x, t in zip(xs, ts): a(f"{op} v{x}, v{x}, v{t}")
    def rs_step(bit, pairs):
        sw = 'v_permlane16_swap_b32' if bit == 4 else 'v_permlane32_swap_b32'
        for x, y in pairs: a(f"{sw} v{x}, v{y}")
        for x, y in pairs: a(f"v_add_f32 v{x}, v{x}, v{y}")

    def spin_tail(lab_retry, slp=1):
        done = a.newlabel('GD')
        a(f"""s_cbranch_vccz {done}
        s_add_u32 s67, s67, 1
        s_cmp_gt_u32 s67, {SPIN}
        s_cbranch_scc1 L_end
        s_sleep {slp}
        s_branch {lab_retry}""")
        a.label(done)

    def tile_dots(acc, tile, nrb, chi, clo):
        for rb in range(nrb):
            for d in range(4):
                a(f"v_dot2c_f32_bf16 v{acc+2*d}, v{tile+4*rb+d}, v{clo[rb]}")
                a(f"v_dot2c_f32_bf16 v{acc+2*d+1}, v{tile+4*rb+d}, v{chi[rb]}")
    def tile_reduce8(acc, sel):
        rs_step(5, [(acc+i, acc+4+i) for i in range(4)])
        rs_step(4, [(acc+i, acc+2+i) for i in range(2)])
        dpp('v_add_f32', acc, acc, acc, 'row_ror:8'); dpp('v_add_f32', acc+1, acc+1, acc+1, 'row_ror:8')
        a(f"v_cndmask_b32 v{acc}, v{acc}, v{acc+1}, {sel}")
    def tile_reduce4(acc):
        rs_step(5, [(acc+i, acc+4+i) for i in range(4)])
        rs_step(4, [(acc+i, acc+2+i) for i in range(2)])
        for ctl in ('row_ror:8', 'row_ror:4'):
            dpp('v_add_f32', acc, acc, acc, ctl); dpp('v_add_f32', acc+1, acc+1, acc+1, ctl)

    def loadK(r):
        for j in range(3): a(f"buffer_load_dwordx4 v[{r+4*j}:{r+4*j+3}], v{vOFF}, s[44:47], s62 offen offset:{128*j} {KLD}")
    def loadV(r):
        for j in range(3): a(f"buffer_load_dwordx4 v[{r+4*j}:{r+4*j+3}], v{vOFF}, s[48:51], s62 offen offset:{128*j} {VLD}")
    def ticket(prog=False):
        if JIT: return
        a("s_mov_b64 exec, 1")
        if prog and HN: a(f"ds_max_u32 v{vU+4}, v{vTK} offset:{L_PROG}")
        a(f"""global_atomic_add v{vTK}, v{vU+4}, v{vU+5}, s[60:61] sc0
        s_mov_b64 exec, -1""")
    def qk_dots(K):
        t0, t1, t2 = vT[0], vT[1], vT[2]
        a(f"v_mov_b32 v{t0}, 0\nv_mov_b32 v{t1}, 0\nv_mov_b32 v{t2}, 0")
        for r in range(4):
            for j in range(3):
                a(f"v_dot2c_f32_bf16 v{vT[j]}, v{K+4*j+r}, v{vQ+4*j+r}")
    def softmax(last=False):
        t0, t1, t2, t3, p, al = vT[0], vT[1], vT[2], vT[3], vT[4], vT[6]
        a(f"v_add_f32 v{t0}, v{t0}, v{t1}\nv_add_f32 v{t0}, v{t0}, v{t2}")
        red8('v_add_f32', t0)
        rbf(t0, t0)
        a(f"v_mul_f32 v{t0}, s43, v{t0}")
        rbf(t0, t0)
        a(f"v_max_f32 v{t1}, v{vM}, v{t0}")
        if last:
            dpp('v_max_f32', t1, t1, t1, 'row_ror:8')
            red_hi('v_max_f32', [t1], [t2])
        a(f"""v_sub_f32 v{t2}, v{vM}, v{t1}
        v_sub_f32 v{t3}, v{t0}, v{t1}
        v_mul_f32 v{t2}, s42, v{t2}
        v_mul_f32 v{t3}, s42, v{t3}
        v_exp_f32 v{al}, v{t2}
        v_exp_f32 v{p}, v{t3}
        v_mov_b32 v{vM}, v{t1}
        v_fma_f32 v{vLS}, v{vLS}, v{al}, v{p}""")
        if last:
            dpp('v_add_f32', vLS, vLS, vLS, 'row_ror:8')
            red_hi('v_add_f32', [vLS], [t2])
            a(f"""s_lshl_b32 s8, s3, 3
            v_mov_b32 v{t2}, s8
            v_mov_b32 v{t0}, 0
            v_mov_b32 v{t1}, 1
            s_mov_b64 exec, 1
            ds_write_b64 v{t2}, v[{vM}:{vLS}] offset:{L_ML-32}
            ds_add_u32 v{t0}, v{t1} offset:{L_FLAG+4}
            s_mov_b64 exec, -1""")
        for i in range(12):
            r = vACC + 2*i
            a(f"v_pk_mul_f32 v[{r}:{r+1}], v[{r}:{r+1}], v[{al}:{al+1}] op_sel_hi:[1,0]")
    def lds_wait(off, val, lab, slp, cmp='ge', vz=4, vd=5):
        top = a.newlabel('LW'); a.label(top)
        a(f"""ds_read_b32 v{vd}, v{vz} offset:{off}
        s_waitcnt lgkmcnt(0)
        v_readfirstlane_b32 s8, v{vd}
        s_cmp_ge_u32 s8, {val}
        s_cbranch_scc1 {lab}
        s_add_u32 s67, s67, 1
        s_cmp_gt_u32 s67, {SPIN*8}
        s_cbranch_scc1 L_end""")
        if slp: a(f"s_sleep {slp}")
        a(f"s_branch {top}")
    def part_addr():
        a(f"""v_lshrrev_b32 v52, 3, v0
        v_and_b32 v53, 7, v0
        v_mul_u32_u24 v52, 3, v52
        s_mul_i32 s8, s3, 768
        s_add_u32 s8, s8, {L_PART-4*768}
        v_lshl_add_u32 v53, v53, 5, s8
        s_mov_b32 s12, 0xff00ff00
        s_mov_b32 s13, 0xff00ff00""")
        for i in range(3):
            a(f"""v_add_u32 v54, {i}, v52
            v_lshrrev_b32 v55, 3, v54
            v_and_b32 v54, 7, v54
            v_lshl_add_u32 v55, v55, 8, v53
            v_lshl_add_u32 v{48+i}, v54, 2, v55""")
        a("v_mov_b32 v52, 0\nv_mov_b32 v53, 1")
    def part_write():
        for i in range(12): a(f"v_permlane32_swap_b32 v{vACC+i}, v{vACC+12+i}")
        for i in range(0, 12, 2): a(f"v_pk_add_f32 v[{vACC+i}:{vACC+i+1}], v[{vACC+i}:{vACC+i+1}], v[{vACC+12+i}:{vACC+13+i}]")
        for i in range(6): a(f"v_permlane16_swap_b32 v{vACC+i}, v{vACC+6+i}")
        for i in range(0, 6, 2): a(f"v_pk_add_f32 v[{vACC+i}:{vACC+i+1}], v[{vACC+i}:{vACC+i+1}], v[{vACC+6+i}:{vACC+7+i}]")
        for i in range(6): dpp('v_add_f32', vACC+i, vACC+i, vACC+i, 'row_ror:8')
        for i in range(3): a(f"v_cndmask_b32 v{vACC+i}, v{vACC+i}, v{vACC+3+i}, s[12:13]")
        for i in range(3): a(f"ds_write_b32 v{48+i}, v{vACC+i}")
        a(f"""s_mov_b64 exec, 1
        ds_add_u32 v52, v53 offset:{L_FLAG+8}
        s_mov_b64 exec, -1""")
    def nan_retry(regs, raw, lab, tmp, masked=False):
        done = a.newlabel('NR')
        if len(regs) == 1: a(f"v_cmp_u_f32 vcc, v{regs[0]}, v{regs[0]}")
        elif len(regs) == 2: a(f"v_cmp_u_f32 vcc, v{regs[0]}, v{regs[1]}")
        else: a(f"v_add_f32 v{tmp}, v{regs[0]}, v{regs[1]}\nv_cmp_u_f32 vcc, v{tmp}, v{regs[2]}")
        a(f"s_cbranch_vccz {done}")
        if masked: a("s_mov_b64 s[68:69], vcc")
        a(f"""s_add_u32 s67, s67, 1
        s_and_b32 s8, s67, 15
        s_cbranch_scc1 {lab}
        s_cmp_gt_u32 s67, {SPIN}
        s_cbranch_scc1 L_end
        s_cmp_eq_u32 s63, 1
        s_cbranch_scc1 {done}""")
        a(f"v_mov_b32 v{tmp}, v{raw[0]}")
        for i in range(1, len(raw), 2):
            if i+1 < len(raw): a(f"v_max3_u32 v{tmp}, v{tmp}, v{raw[i]}, v{raw[i+1]}")
            else: a(f"v_max_u32 v{tmp}, v{tmp}, v{raw[i]}")
        a(f"""v_cmp_eq_u32 vcc, -1, v{tmp}
        s_cbranch_vccnz {lab}
        s_mov_b32 s63, 1
        s_branch {lab}""")
        a.label(done)
    def pv(V):
        p = vT[4]
        for i in range(12):
            t = vU + 2*(i & 1)
            r = vACC + 2*i
            a(f"""v_lshlrev_b32 v{t}, 16, v{V+i}
            v_and_b32 v{t+1}, s7, v{V+i}
            v_pk_fma_f32 v[{r}:{r+1}], v[{t}:{t+1}], v[{p}:{p+1}], v[{r}:{r+1}] op_sel_hi:[1,0,1]""")

    if STAMP: a("s_memrealtime s[98:99]\nv_mov_b32 v126, 0\ns_mov_b32 s95, 0")
    if P.get('dbgt'): a("s_memrealtime s[98:99]")
    a(f"""s_cmp_ge_u32 s2, 256
    s_cbranch_scc1 L_exit
    s_load_dwordx16 s[16:31], s[0:1], 0
    s_load_dwordx8 s[32:39], s[0:1], 64
    s_load_dwordx2 s[40:41], s[0:1], 96
    v_lshrrev_b32 v1, 6, v0
    v_readfirstlane_b32 s3, v1
    v_and_b32 v0, 63, v0""")
    if P.get('warm', 0):
        a(f"""s_cmp_ge_u32 s2, {P.get('warmwg', 16)}
        s_cbranch_scc1 L_nowarm
        s_cmp_lg_u32 s3, 15
        s_cbranch_scc1 L_nowarm
        s_getpc_b64 s[52:53]""")
        a.label("L_pc")
        a(f"""s_sub_u32 s52, s52, L_pc-{KN}
        s_subb_u32 s53, s53, 0
        s_mov_b32 s54, L_exit+4-{KN}
        s_mov_b32 s55, 0x20000
        v_lshlrev_b32 v5, 4, v0""")
        for i in range(P.get('warm')):
            a(f"s_mov_b32 s8, {1024*i}\nbuffer_load_dwordx4 v[120:123], v5, s[52:55], s8 offen")
        a.label("L_nowarm")
    a(f"""s_lshr_b32 s4, s2, 3
    s_lshl_b32 s5, s2, 2
    s_add_u32 s4, s4, s5
    s_and_b32 s4, s4, 31
    s_lshr_b32 s5, s2, 5
    s_mov_b32 s7, 0xffff0000
    s_mov_b32 s42, {hex(f2u(math.log2(math.e)))}
    s_mov_b32 s43, {hex(f2u(192 ** -0.5))}
    s_mov_b32 s67, 0
    s_mov_b32 s63, 0
    v_lshrrev_b32 v2, 3, v0
    v_and_b32 v3, 7, v0
    v_mul_u32_u24 v1, 384, v2
    v_lshl_add_u32 v1, v3, 4, v1
    s_mul_i32 s8, s4, {HEADB}
    s_mov_b32 s46, {HEADB}
    s_mov_b32 s47, 0x20000
    s_mov_b32 s50, {HEADB}
    s_mov_b32 s51, 0x20000
    s_mov_b32 s55, 0x20000
    s_mov_b32 s59, 0x20000
    s_mul_i32 s9, s4, {CNT_STRIDE}
    s_add_u32 s9, s9, {WS_CNT}
    v_mov_b32 v4, 0
    v_mov_b32 v5, 0
    v_mov_b32 v6, 0
    v_mov_b32 v7, 0
    ds_write_b128 v4, v[4:7] offset:{L_FLAG}
    ds_write_b128 v4, v[4:7] offset:{L_ZERO}
    ds_write_b32 v4, v4 offset:{L_PROG}
    s_waitcnt lgkmcnt(0)
    s_barrier""")
    if STAMP: a("v_writelane_b32 v126, s98, 22")
    stamp(23)
    a(f"""s_add_u32 s44, s18, s8
    s_addc_u32 s45, s19, 0
    s_add_u32 s48, s20, s8
    s_addc_u32 s49, s21, 0
    s_add_u32 s60, s40, s9
    s_addc_u32 s61, s41, 0
    s_load_dword s6, s[40:41], {WS_EPOCH}
    s_mov_b32 s12, 0xff00ff00
    s_mov_b32 s13, 0xff00ff00
    s_cmp_lt_u32 s5, 3
    s_cbranch_scc1 L_qtile
    s_lshr_b32 s9, s2, 3
    s_and_b32 s8, s9, 3
    s_cmp_eq_u32 s8, 3
    s_cbranch_scc1 L_roles
    s_sub_u32 s9, s5, 3
    s_mul_i32 s9, s9, 3
    s_add_u32 s9, s9, s8
    s_cmp_ge_u32 s9, 10
    s_cbranch_scc1 L_roles""")
    TILE = 48; CH = 24; CL = 30; TA = 40
    def tile_loads(stride, n=5):
        a(f"""s_mul_i32 s10, s3, {8*n*stride}
        v_mul_u32_u24 v4, {stride}, v2
        v_lshl_add_u32 v4, v3, 4, v4""")
        for t in range(n):
            a(f"buffer_load_dwordx4 v[{TILE+4*t}:{TILE+4*t+3}], v4, s[52:55], s10 offen {LD}")
            if t < n-1: a(f"s_add_u32 s10, s10, {8*stride}")
    def tile_finish(n=5, nwv=16, join=None):
        tile_dots(TA, TILE, n, [CH+t for t in range(n)], [CL+t for t in range(n)])
        tile_reduce8(TA, 's[12:13]')
        a(f"""ds_write_b32 v5, v{TA} offset:{L_TP}""")
        stamp(20)
        if join: a.label(join)
        a(f"""s_waitcnt vmcnt(0) lgkmcnt(0)
        s_barrier""")
        stamp(21)
        a(f"""s_cmp_lg_u32 s3, 0
        s_cbranch_scc1 L_tilebar
        v_lshlrev_b32 v5, 2, v0
        v_add_u32 v5, {L_TP}, v5""")
        for k in range(nwv//2): a(f"ds_read2st64_b32 v[{24+2*k}:{25+2*k}], v5 offset0:{2*k} offset1:{2*k+1}")
        for k in range(nwv//2):
            a(f"s_waitcnt lgkmcnt({nwv//2-1-k})")
            a(f"v_add_f32 v{24+2*k}, v{24+2*k}, v{25+2*k}")
            if k & 1: a(f"v_add_f32 v{22+2*k}, v{22+2*k}, v{24+2*k}")
        tops = [24+4*k for k in range((nwv//2+1)//2)]
        while len(tops) > 1:
            nxt = []
            for i in range(0, len(tops)-1, 2):
                a(f"v_add_f32 v{tops[i]}, v{tops[i]}, v{tops[i+1]}"); nxt.append(tops[i])
            if len(tops) & 1: nxt.append(tops[-1])
            tops = nxt
    def tile_ldsaddr():
        a(f"""v_lshl_add_u32 v5, v3, 3, v2
        s_lshl_b32 s8, s3, 8
        v_lshl_add_u32 v5, v5, 2, s8""")
        for i in range(8): a(f"v_mov_b32 v{TA+i}, 0")
    a.label("L_modtile")
    a(f"""s_lshl_b32 s9, s9, 3
    s_and_b32 s8, s2, 7
    s_add_u32 s9, s9, s8
    s_cmp_ge_u32 s3, 10
    s_cbranch_scc1 L_poison
    s_lshr_b32 s11, s9, 2
    s_and_b32 s15, s9, 3
    s_lshl_b32 s14, s11, 7
    s_mul_i32 s8, s15, {160*7680}
    s_add_u32 s14, s14, s8
    s_add_u32 s52, s34, s14
    s_addc_u32 s53, s35, 0
    s_sub_u32 s54, {640*7680}, s14
    s_mul_i32 s14, s15, 320
    s_lshl_b32 s8, s3, 5
    s_add_u32 s14, s14, s8
    v_lshl_add_u32 v7, v2, 1, s14""")
    for t in range(2): a(f"global_load_ushort v{CH+t}, v7, s[32:33] offset:{16*t}")
    tile_loads(7680, 2)
    tile_ldsaddr()
    a(f"""s_mul_i32 s14, s15, 10240
    s_lshl_b32 s8, s11, 9
    s_add_u32 s14, s14, s8
    s_add_u32 s14, s14, {WS_G1}
    v_lshl_add_u32 v6, v0, 3, s14
    s_waitcnt vmcnt(2)""")
    for t in range(2):
        x, u = CH+t, CL+t
        a(f"""v_lshlrev_b32 v{x}, 16, v{x}
        v_mul_f32 v{u}, s42, v{x}
        v_exp_f32 v{u}, -v{u}
        v_add_f32 v{u}, 1.0, v{u}
        v_rcp_f32 v{u}, v{u}
        v_mul_f32 v{x}, v{x}, v{u}""")
        rbf(x, x)
        a(f"v_lshrrev_b32 v{u}, 16, v{x}")
    a("s_waitcnt vmcnt(0)")
    stamp(19)
    tile_finish(2, 10, "L_modjoin")
    a(f"""s_add_u32 s8, s6, {hex(TAGC)}
    v_mov_b32 v25, s8
    global_store_dwordx2 v6, v[24:25], s[40:41] sc1""")
    stamp(6)
    a("s_branch L_tilebar")
    a.label("L_poison")
    a(f"""s_mul_i32 s14, s9, 6
    s_add_u32 s14, s14, s3
    s_lshl_b32 s14, s14, 10
    s_add_u32 s14, s14, {WS_G3 - 10*1024}
    v_lshl_add_u32 v6, v0, 4, s14
    v_mov_b32 v88, -1
    v_mov_b32 v89, -1
    v_mov_b32 v90, -1
    v_mov_b32 v91, -1
    global_store_dwordx4 v6, v[88:91], s[40:41] sc1
    s_cmp_lg_u32 s3, 15
    s_cbranch_scc1 L_modjoin
    s_cmp_lg_u32 s9, 40
    s_cbranch_scc1 L_noboard
    v_lshlrev_b32 v6, 8, v0
    v_add_u32 v6, {WS_BOARD}, v6
    v_mov_b32 v8, 0
    global_store_dword v6, v8, s[40:41] sc1""")
    a.label("L_noboard")
    a(f"""s_cmp_ge_u32 s9, 40
    s_cbranch_scc1 L_modjoin
    s_mul_i32 s14, s9, {CNT_STRIDE}
    s_add_u32 s14, s14, {WS_CNT}
    v_mov_b32 v6, s14
    v_mov_b32 v8, 0
    s_mov_b64 exec, 1
    global_store_dword v6, v8, s[40:41] sc1
    s_mov_b64 exec, -1
    s_branch L_modjoin""")
    a.label("L_qtile")
    a(f"""s_mul_i32 s8, s4, 384
    s_lshl_b32 s9, s5, 7
    s_add_u32 s8, s8, s9
    s_add_u32 s52, s22, s8
    s_addc_u32 s53, s23, 0
    s_sub_u32 s54, {640*12288}, s8
    v_lshlrev_b32 v5, 2, v0
    s_mul_i32 s14, s3, 40
    v_add_u32 v8, s14, v3
    v_lshlrev_b32 v7, 1, v8""")
    for t in range(5): a(f"global_load_dword v{70+t}, v5, s[16:17] offset:{256*t}")
    for t in range(5): a(f"global_load_ushort v{CL+t}, v7, s[16:17] offset:{16*t}")
    tile_loads(12288)
    a("s_barrier")
    a(f"""v_lshlrev_b32 v8, 3, v8
    v_and_b32 v9, 3, v2
    v_mul_u32_u24 v9, 10240, v9
    v_add_u32 v8, v8, v9
    v_lshrrev_b32 v9, 5, v0
    v_mul_u32_u24 v9, 5120, v9
    v_add_u32 v8, v8, v9
    v_add_u32 v8, {WS_G1}, v8
    v_lshlrev_b32 v9, 2, v2""")
    tile_ldsaddr()
    a(f"""v_lshrrev_b32 v10, 1, v0
    v_mul_u32_u24 v11, 43, v10
    v_lshrrev_b32 v11, 7, v11
    v_add_u32 v11, v11, v10
    v_lshlrev_b32 v11, 2, v11
    v_lshlrev_b32 v10, 4, v10
    v_add_u32 v10, 12, v10
    v_and_b32 v12, 1, v0
    v_cmp_eq_u32 s[14:15], 1, v12
    s_mul_i32 s8, s4, 768
    s_lshl_b32 s9, s5, 8
    s_add_u32 s8, s8, s9
    s_add_u32 s8, s8, {WS_GQ}
    v_cndmask_b32 v10, v11, v10, s[14:15]
    v_add_u32 v10, s8, v10
    s_waitcnt vmcnt(5)""")
    for t in range(5):
        a(f"v_lshlrev_b32 v{76+2*t}, 16, v{70+t}\nv_and_b32 v{77+2*t}, s7, v{70+t}")
    a("v_add_f32 v70, v76, v77")
    for i in range(2, 10): a(f"v_add_f32 v70, v70, v{76+i}")
    red16('v_add_f32', [70]); red_hi('v_add_f32', [70], [71])
    a(f"v_mul_f32 v70, {hex(f2u(1/640))}, v70")
    a("v_mov_b32 v72, 0")
    for i in range(10): a(f"v_sub_f32 v{76+i}, v{76+i}, v70\nv_fmac_f32 v72, v{76+i}, v{76+i}")
    red16('v_add_f32', [72]); red_hi('v_add_f32', [72], [71])
    a(f"v_mul_f32 v72, {hex(f2u(1/640))}, v72")
    rbf(70, 70); rbf(72, 72)
    a(f"v_add_f32 v72, {hex(f2u(1e-5))}, v72")
    rbf(72, 72)
    a("v_sqrt_f32 v72, v72")
    rbf(72, 72)
    a("v_rcp_f32 v72, v72")
    for t in range(5):
        r = CL+t
        a(f"v_lshlrev_b32 v{r}, 16, v{r}\nv_sub_f32 v{r}, v{r}, v70")
        rbf(r, r)
        a(f"v_mul_f32 v{r}, v{r}, v72")
        rbf(r, r)
    a(f"s_waitcnt lgkmcnt(0)\ns_add_u32 s11, s6, {hex(TAGC)}")
    stamp(2, 0, 108)
    GG = 88
    lab = a.newlabel('GM'); a.label(lab)
    for t in range(5):
        a(f"global_load_dwordx2 v[{GG+2*t}:{GG+2*t+1}], v8, s[40:41] offset:{64*t} sc1")
    a("s_waitcnt vmcnt(0)")
    a(f"v_xor_b32 v70, s11, v{GG+1}")
    for k in range(1, 5): a(f"v_bitop3_b32 v70, v70, v{GG+2*k+1}, s11 bitop3:0xf6")
    a("v_cmp_ne_u32 vcc, 0, v70")
    spin_tail(lab, P.get('gmslp', 2))
    stamp(3)
    xs = [GG+2*t for t in range(5)]; ys = [GG+2*t+1 for t in range(5)]
    for x in xs: dpp('v_add_f32', x, x, x, 'row_ror:8')
    red_hi('v_add_f32', xs, ys, bits=(4,))
    for x in xs: rbf(x, x)
    for x, y in zip(xs, ys): a(f"v_mov_b32 v{y}, v{x}")
    for x, y in zip(xs, ys): a(f"v_permlane32_swap_b32 v{x}, v{y}")
    for y in ys: a(f"v_add_f32 v{y}, 1.0, v{y}")
    for y in ys: rbf(y, y)
    for t in range(5): a(f"v_mul_f32 v{ys[t]}, v{CL+t}, v{ys[t]}")
    for y in ys: rbf(y, y)
    for x, y in zip(xs, ys): a(f"v_add_f32 v{y}, v{y}, v{x}")
    for y in ys: a(f"v_cvt_pk_bf16_f32 v{y}, v{y}, 0")
    for t in range(5): a(f"ds_bpermute_b32 v{CL+t}, v9, v{ys[t]}")
    for t in range(5): a(f"s_waitcnt lgkmcnt({4-t})\nv_lshlrev_b32 v{CH+t}, 16, v{CL+t}")
    tile_finish()
    a(f"""v_mov_b32_dpp v25, v24 quad_perm:[1,0,3,2] row_mask:0xf bank_mask:0xf
    v_mov_b32 v26, s11
    v_cvt_pk_bf16_f32 v24, v24, v25
    v_cndmask_b32 v24, v24, v26, s[14:15]
    s_mov_b32 exec_lo, 0x557fffff
    s_mov_b32 exec_hi, 0x55555555
    global_store_dword v10, v24, s[40:41] sc1
    s_mov_b64 exec, -1""")
    stamp(4, 0, 108)
    a.label("L_tilebar")
    a("s_barrier")
    a.label("L_roles")
    a(f"""s_cmp_lt_u32 s3, 4
    s_cbranch_scc1 L_chain""")
    bufs = [(vAK, vAV)] + [(vB[i], vB[i]+12) for i in range(NB)]
    a(f"""s_mul_i32 s8, s5, {NSW}
    s_add_u32 s8, s8, s3
    s_cmp_ge_u32 s5, 3
    s_cbranch_scc1 L_fill
    s_add_u32 s8, s8, {BASE1 - 4}
    s_mul_i32 s62, s8, 3072
    s_cmp_ge_u32 s3, {4+NST}
    s_cbranch_scc1 L_fillq2""")
    loadK(vAK); loadV(vAV)
    a("s_branch L_filled")
    a.label("L_fillq2")
    LASTB = bufs[1] if NL else bufs[-1]
    loadK(LASTB[0]); loadV(LASTB[1])
    a("s_branch L_filled")
    a.label("L_fill")
    a(f"""s_sub_u32 s8, s8, 40
    s_mul_i32 s62, s8, 3072""")
    stamp(0, 4)

    issued = 0
    for bi, (kr, vr) in enumerate(bufs):
        for which in (0, 1):
            for j in range(3):
                if issued in SLOW: a(f"s_waitcnt vmcnt({SLOW[issued]})")
                elif issued >= PW: a(f"s_waitcnt vmcnt({PW-1})")
                r = (kr if which == 0 else vr) + 4*j
                a(f"buffer_load_dwordx4 v[{r}:{r+3}], v{vOFF}, s[{44+4*which}:{47+4*which}], s62 offen offset:{128*j} {VLD if which else KLD}")
                issued += 1
        if bi < NB + NL: a(f"s_add_u32 s62, s62, {60*3072}")
    if NL: a(f"s_sub_u32 s11, s3, 4\ns_mul_i32 s11, s11, {6144*NL}\nv_lshl_add_u32 v9, v0, 4, s11")
    for li in range(NL):
        for which in (0, 1):
            for j in range(3):
                a(f"s_waitcnt vmcnt({PW-1})")
                a(f"s_add_u32 m0, s11, {L_W + 6144*li + 3072*which + 896*j}")
                a(f"buffer_load_dwordx4 v{vOFF}, s[{44+4*which}:{47+4*which}], s62 offen offset:{128*j} {VLD if which else KLD} lds")
        if li < NL-1: a(f"s_add_u32 s62, s62, {60*3072}")
    a.label("L_filled")
    a(f"""s_mul_i32 s8, s5, {NST}
    s_add_u32 s8, s8, s3
    s_add_u32 s8, s8, {BASE2 - 4}
    s_mul_i32 s62, s8, 3072
    v_mov_b32 v4, 0""")
    stamp(1, 4)
    lds_wait(L_FLAG, 3, "L_qready", 1)

    a.label("L_chain")
    a(f"""s_cmp_eq_u32 s3, 3
    s_cbranch_scc1 L_xwave
    s_setprio 2
    s_mul_i32 s8, s4, 768
    s_lshl_b32 s9, s3, 8
    s_add_u32 s8, s8, s9
    s_add_u32 s8, s8, {WS_GQ}
    s_add_u32 s60, s40, s8
    s_addc_u32 s61, s41, 0
    v_lshlrev_b32 v5, 2, v0
    v_lshl_add_u32 v5, s3, 7, v5
    v_mov_b32 v6, 0
    v_mov_b32 v7, 1
    s_waitcnt lgkmcnt(0)
    s_add_u32 s88, s6, {hex(TAGC)}""")
    def qreg(k):
        if k < 16: return 44 + k
        if k < 32: return 68 + k - 16
        if k < 40: return 8 + k - 32
        return 84 + k - 40
    a.label("L_qpoll")
    a(f"""s_load_dwordx16 s[44:59], s[60:61], 0 glc
    s_load_dwordx16 s[68:83], s[60:61], 64 glc
    s_load_dwordx8 s[8:15], s[60:61], 128 glc
    s_load_dwordx4 s[84:87], s[60:61], 160 glc
    s_waitcnt lgkmcnt(0)
    s_xor_b32 s89, s{qreg(3)}, s88""")
    for g in range(1, 11): a(f"s_xor_b32 s90, s{qreg(4*g+3)}, s88\ns_or_b32 s89, s89, s90")
    a(f"""s_cbranch_scc0 L_qgot
    s_add_u32 s67, s67, 1
    s_cmp_gt_u32 s67, {SPIN}
    s_cbranch_scc1 L_end
    s_sleep 2
    s_branch L_qpoll""")
    a.label("L_qgot")
    for i in range(32): a(f"v_writelane_b32 v4, s{qreg(4*(i//3) + i%3)}, {i}")
    a(f"""s_mov_b32 exec_hi, 0
    ds_write_b32 v5, v4 offset:{L_Q}
    s_mov_b64 exec, 1
    ds_add_u32 v6, v7 offset:{L_FLAG}
    s_mov_b64 exec, -1""")
    stamp(5, 0, 44)
    a("s_branch L_tail")

    a.label("L_xwave")
    XT = 48; XG = 88
    a(f"""s_cmp_lt_u32 s2, 216
    s_cbranch_scc1 L_tail
    s_sub_u32 s9, s2, 196""")
    a.label("L_xrest")
    a(f"""v_mul_u32_u24 v4, 7680, v2
    v_lshl_add_u32 v4, v3, 4, v4
    s_lshl_b32 s14, s9, 7
    s_add_u32 s52, s34, s14
    s_addc_u32 s53, s35, 0
    s_sub_u32 s54, {640*7680}, s14
    s_mov_b32 s10, 0
    s_mov_b32 s11, 0
    v_lshlrev_b32 v7, 1, v2
    v_mov_b32 v6, 0""")
    for i in range(8): a(f"v_mov_b32 v{XG+i}, 0")
    lds_wait(L_FLAG, 3, "L_xrloop", 4, vz=6)
    a.label("L_xrloop")
    for rb in range(10): a(f"global_load_ushort v{24+rb}, v7, s[32:33] offset:{16*rb}")
    for rb in range(10):
        a(f"buffer_load_dwordx4 v[{XT+4*rb}:{XT+4*rb+3}], v4, s[52:55], s10 offen {XLD}")
        a(f"s_add_u32 s10, s10, {8*7680}")
    a("s_waitcnt vmcnt(10)")
    for rb in range(10):
        x, t = 24+rb, 34+rb
        a(f"""v_lshlrev_b32 v{x}, 16, v{x}
        v_mul_f32 v{t}, s42, v{x}
        v_exp_f32 v{t}, -v{t}
        v_add_f32 v{t}, 1.0, v{t}
        v_rcp_f32 v{t}, v{t}
        v_mul_f32 v{x}, v{x}, v{t}""")
        rbf(x, x)
        a(f"v_lshrrev_b32 v{t}, 16, v{x}")
    a("s_waitcnt vmcnt(0)")
    tile_dots(XG, XT, 10, [24+rb for rb in range(10)], [34+rb for rb in range(10)])
    a(f"""v_add_u32 v7, 160, v7
    s_add_u32 s11, s11, 1
    s_cmp_lt_u32 s11, 8
    s_cbranch_scc1 L_xrloop""")
    tile_reduce8(XG, 's[12:13]')
    rbf(XG, XG)
    a(f"""s_lshl_b32 s9, s9, 9
    s_add_u32 s9, s9, {WS_GM}
    s_add_u32 s8, s6, {hex(TAGC)}
    v_lshl_add_u32 v5, v3, 3, v2
    v_lshl_add_u32 v5, v5, 3, s9
    v_mov_b32 v{XG+1}, s8
    global_store_dwordx2 v5, v[{XG}:{XG+1}], s[40:41] sc1""")
    stamp(7, 3, 44)
    a("s_branch L_tail")

    def read_q_init():
        a(f"""v_lshlrev_b32 v4, 4, v3
        ds_read_b128 v[{vQ}:{vQ+3}], v4 offset:{L_Q}
        ds_read_b128 v[{vQ+4}:{vQ+7}], v4 offset:{L_Q+128}
        ds_read_b128 v[{vQ+8}:{vQ+11}], v4 offset:{L_Q+256}
        v_mov_b32 v{vM}, 0xff7fffff
        v_mov_b32 v{vLS}, 0
        v_mov_b32 v{vU+4}, 0
        v_mov_b32 v{vU+5}, 1""")
        for i in range(24): a(f"v_mov_b32 v{vACC+i}, 0")
        a("s_waitcnt lgkmcnt(0)")

    a.label("L_qready")
    read_q_init()
    stamp(8, 4)
    nrest = 6*(NB+NL)
    a(f"""s_cmp_ge_u32 s3, {4+NST}
    s_cbranch_scc1 L_catch2
    s_setprio {P.get('sprio', 0)}
    s_cmp_ge_u32 s5, 3
    s_cbranch_scc1 L_catch1
    s_waitcnt vmcnt(0)""")
    a.label("L_catch1")
    a(f"s_waitcnt vmcnt({3+nrest})")
    qk_dots(vAK)
    ticket(); loadK(vAK)
    softmax()
    TK = 0 if JIT else 1
    a(f"s_waitcnt vmcnt({nrest+3+TK})")
    pv(vAV)
    loadV(vAV)
    a("s_cmp_lt_u32 s5, 3\ns_cbranch_scc1 L_loop")
    def lds_unit(li):
        a(f"s_sub_u32 s11, s3, 4\ns_mul_i32 s11, s11, {6144*NL}\nv_lshl_add_u32 v{vU}, v0, 4, s11")
        for k in range(6): a(f"ds_read_b128 v[{vB[0]+4*k}:{vB[0]+4*k+3}], v{vU} offset:{L_W + 6144*li + 1024*k}")
        a("s_waitcnt lgkmcnt(0)")
    for bi in range(NB):
        left = 6*(NB+NL-bi-1)
        a(f"s_waitcnt vmcnt({3+left+6+TK})")
        qk_dots(vB[bi]); softmax()
        a(f"s_waitcnt vmcnt({left+6+TK})")
        pv(vB[bi]+12)
    for li in range(NL):
        a(f"s_waitcnt vmcnt({6*(NL-li-1)+6+TK})")
        lds_unit(li)
        qk_dots(vB[0]); softmax(); pv(vB[0]+12)
    stamp(9, 4)
    a.label("L_loop")
    if JIT == 2: a("s_waitcnt vmcnt(5)\ns_mov_b32 s8, 1\ns_atomic_add s8, s[60:61], 0 glc")
    a("s_waitcnt vmcnt(3)")
    if JIT == 1: a("s_mov_b32 s8, 1\ns_atomic_add s8, s[60:61], 0 glc")
    if not JIT: a(f"v_readfirstlane_b32 s8, v{vTK}")
    qk_dots(vAK)
    if JIT: a("s_waitcnt lgkmcnt(0)")
    a(f"""s_add_u32 s8, s8, {NSTAT}
    s_cmp_ge_u32 s8, {NUNITS}
    s_cbranch_scc1 L_drain
    s_mul_i32 s62, s8, 3072""")
    if STAMP: a("s_memrealtime s[92:93]\ns_lshr_b32 s94, s8, 7\ns_add_u32 m0, s94, 32\ns_waitcnt lgkmcnt(0)\nv_writelane_b32 v126, s92, m0")
    ticket(True); loadK(vAK)
    softmax()
    a(f"s_waitcnt vmcnt({3+TK})")
    pv(vAV)
    loadV(vAV)
    a("s_branch L_loop")

    a.label("L_drain")
    a("s_setprio 3")
    stamp(10)
    softmax(last=True)
    part_addr()
    a("s_waitcnt vmcnt(0)")
    pv(vAV)
    stamp(11)
    part_write()
    a("s_branch L_end")

    a.label("L_catch2")
    a("s_waitcnt vmcnt(0)\ns_cmp_lt_u32 s5, 3\ns_cbranch_scc1 L_catch3")
    for bi, (kr, vr) in enumerate(bufs):
        if NL == 0 and bi == len(bufs)-1: a.label("L_catch3")
        qk_dots(kr); softmax(); pv(vr)
    for li in range(NL):
        lds_unit(li)
        if li == NL-1: a.label("L_catch3")
        qk_dots(vB[0]); softmax(); pv(vB[0]+12)
    if HN:
        a(f"""s_sub_u32 s9, s3, 12
        s_cmp_ge_u32 s9, {HN}
        s_cbranch_scc1 L_hfin
        s_mul_i32 s8, s5, {HN}
        s_add_u32 s8, s8, s9
        s_mul_i32 s8, s8, {32 // (8*HN) if HN <= 2 else 1}
        s_min_u32 s8, s8, 30
        s_add_u32 s8, s8, s4
        s_add_u32 s8, s8, 1
        s_and_b32 s8, s8, 31
        s_lshl_b32 s8, s8, 8
        s_add_u32 s8, s8, {WS_BOARD}
        s_add_u32 s74, s40, s8
        s_addc_u32 s75, s41, 0
        s_lshl_b32 s73, s5, 2
        s_add_u32 s73, s73, s9
        s_lshl_b32 s8, s4, 8
        s_add_u32 s8, s8, {WS_BOARD}
        s_add_u32 s76, s40, s8
        s_addc_u32 s77, s41, 0
        v_mov_b32 v101, s8""")
        def board_store():
            lab = a.newlabel('HB')
            a(f"""s_cmp_lg_u32 s73, 0
            s_cbranch_scc1 {lab}
            ds_read_b32 v5, v{vU+4} offset:{L_PROG}
            s_mov_b64 exec, 1
            s_waitcnt lgkmcnt(0)
            global_store_dword v101, v5, s[40:41] sc1
            s_mov_b64 exec, -1""")
            a.label(lab)
        a.label("L_help")
        board_store()
        a(f"""s_load_dword s71, s[74:75], 0 glc
        s_load_dword s70, s[76:77], 0 glc
        s_waitcnt lgkmcnt(0)
        s_add_u32 s70, s70, {HD}
        s_cmp_lt_u32 s70, s71
        s_cbranch_scc1 L_hgo
        s_add_u32 s67, s67, 1
        s_cmp_gt_u32 s67, {SPIN}
        s_cbranch_scc1 L_end
        s_mov_b32 s9, {HK}""")
        a.label("L_hdoze")
        a(f"""s_sleep {HS}
        ds_read_b32 v5, v{vU+4} offset:{L_FLAG+4}
        s_waitcnt lgkmcnt(0)
        v_readfirstlane_b32 s8, v5
        s_cmp_ge_u32 s8, {12 - NST - HN + 1}
        s_cbranch_scc1 L_hfin
        s_sub_u32 s9, s9, 1
        s_cmp_lg_u32 s9, 0
        s_cbranch_scc1 L_hdoze
        s_branch L_help""")
        a.label("L_hgo")
        a(f"""s_mov_b32 s8, 1
        s_atomic_add s8, s[60:61], 0 glc
        s_waitcnt lgkmcnt(0)
        s_add_u32 s8, s8, {NSTAT}
        s_cmp_ge_u32 s8, {NUNITS}
        s_cbranch_scc1 L_hfin
        s_mul_i32 s62, s8, 3072""")
        if STAMP: a("s_add_u32 s95, s95, 1")
        loadK(vAK); loadV(vAV)
        a("s_waitcnt vmcnt(3)")
        qk_dots(vAK); softmax()
        a("s_waitcnt vmcnt(0)")
        pv(vAV)
        a("s_branch L_help")
        a.label("L_hfin")
        a("s_setprio 3")
    dpp('v_max_f32', 3, vM, vM, 'row_ror:8')
    red_hi('v_max_f32', [3], [4])
    a(f"""v_sub_f32 v4, v{vM}, v3
    v_mul_f32 v4, s42, v4
    v_exp_f32 v8, v4
    v_mov_b32 v{vM}, v3
    v_mul_f32 v{vLS}, v{vLS}, v8""")
    dpp('v_add_f32', vLS, vLS, vLS, 'row_ror:8')
    red_hi('v_add_f32', [vLS], [4])
    a(f"""s_lshl_b32 s8, s3, 3
    v_mov_b32 v4, s8
    s_mov_b64 exec, 1
    ds_write_b64 v4, v[{vM}:{vLS}] offset:{L_ML-32}
    ds_add_u32 v{vU+4}, v{vU+5} offset:{L_FLAG+4}
    s_mov_b64 exec, -1""")
    for i in range(12):
        r = vACC + 2*i
        a(f"v_pk_mul_f32 v[{r}:{r+1}], v[{r}:{r+1}], v[8:9] op_sel_hi:[1,0]")
    part_addr()
    part_write()
    a(f"""s_cmp_eq_u32 s3, 15
    s_cbranch_scc1 L_fwave
    s_cmp_lt_u32 s3, 12
    s_cbranch_scc1 L_end""")
    a(f"""s_sub_u32 s9, s3, 12
    s_lshl_b32 s8, s9, 8
    v_lshl_add_u32 v4, v0, 2, s8
    v_and_b32 v10, 15, v0
    v_min_u32 v11, 11, v10
    v_lshlrev_b32 v11, 3, v11
    v_cmp_gt_u32 s[14:15], 12, v10
    v_add_u32 v12, {L_PART}, v4
    s_lshl_b32 s8, s4, 3
    s_add_u32 s8, s8, s5
    s_lshl_b32 s8, s8, 10
    s_add_u32 s8, s8, {WS_G3}
    v_add_u32 v4, s8, v4""")
    lds_wait(L_FLAG+4, 12, "L_cml", 2, vz=52)
    a.label("L_cml")
    a(f"""ds_read_b64 v[6:7], v11 offset:{L_ML}
    s_waitcnt lgkmcnt(0)
    v_mov_b32 v8, v6
    v_cndmask_b32 v7, 0, v7, s[14:15]""")
    red16('v_max_f32', [8])
    a(f"""v_sub_f32 v6, v6, v8
    v_mul_f32 v6, s42, v6
    v_exp_f32 v6, v6
    v_mov_b32 v40, 0
    v_mov_b32 v41, 0
    v_mul_f32 v9, v7, v6
    s_setprio 3
    s_cmp_lg_u32 s9, 0
    s_cbranch_scc1 L_cwait""")
    red16('v_add_f32', [9])
    a(f"""v_min_u32 v8, -2, v8
    v_min_u32 v9, -2, v9
    s_mov_b64 exec, 1
    global_store_dwordx2 v4, v[8:9], s[40:41] offset:768 sc1
    s_mov_b64 exec, -1""")
    a.label("L_cwait")
    lds_wait(L_FLAG+8, 12, "L_cgo", 0, vz=52)
    a.label("L_cgo")
    for k in range(6): a(f"ds_read2st64_b32 v[{24+2*k}:{25+2*k}], v12 offset0:{6*k} offset1:{6*k+3}")
    for k in range(12):
        if k % 2 == 0: a(f"s_waitcnt lgkmcnt({5-k//2})")
        a(f"v_fmac_f32_dpp v{40+(k&1)}, v6, v{24+k} row_newbcast:{k} row_mask:0xf bank_mask:0xf")
    a(f"""v_add_f32 v40, v40, v41
    v_min_u32 v40, -2, v40
    global_store_dword v4, v40, s[40:41] sc1
    s_mov_b64 exec, 1
    ds_add_u32 v52, v53 offset:{L_FLAG+8}
    s_mov_b64 exec, -1""")
    stamp(12)
    a("s_branch L_end")

    def dma(n, srd, voff, sstep, lbase):
        for t in range(n):
            v = voff[t] if isinstance(voff, list) else voff
            a(f"""s_mov_b32 s10, {t*sstep}
            s_add_u32 m0, s11, {lbase + 1024*t}
            buffer_load_dwordx4 v{v}, s[{srd}:{srd+3}], s10 offen {TLD} lds""")
    a.label("L_tail")
    a(f"""s_setprio 0
    v_lshrrev_b32 v2, 4, v0
    v_and_b32 v3, 15, v0
    v_lshrrev_b32 v10, 2, v3
    v_lshl_add_u32 v10, v2, 3, v10
    v_and_b32 v11, 3, v0
    v_mov_b32 v4, 0
    v_lshrrev_b32 v12, 2, v0
    v_and_b32 v13, 31, v0
    v_lshlrev_b32 v13, 2, v13
    s_mov_b32 s14, 0xffff0000
    s_mov_b32 s15, 0xffff0000
    s_mov_b32 s55, 0x20000
    s_mov_b32 s59, 0x20000""")
    lds_wait(L_FLAG+4, 12 - NST - HN + 1, "L_near", 4)
    a.label("L_near")
    a(f"""s_cmp_lg_u32 s3, 0
    s_cbranch_scc1 L_rolewait
    s_and_b32 s9, s2, 7
    s_mul_i32 s8, s9, {CNT_STRIDE}
    s_add_u32 s8, s8, {WS_CNT + 32*CNT_STRIDE}
    s_add_u32 s60, s40, s8
    s_addc_u32 s61, s41, 0""")
    lds_wait(L_FLAG+4, RTRIG, "L_roleget", 0)
    a.label("L_roleget")
    a(f"""s_mov_b32 s8, 1
    s_atomic_add s8, s[60:61], 0 glc
    s_waitcnt lgkmcnt(0)
    s_lshl_b32 s8, s8, 3
    s_add_u32 s8, s8, s9
    s_add_u32 s8, s8, 1
    v_mov_b32 v5, s8
    ds_write_b32 v4, v5 offset:{L_ROLE}
    s_branch L_rolegot""")
    a.label("L_rolewait")
    lds_wait(L_ROLE, 1, "L_rolegot", 0)
    a.label("L_rolegot")
    if STAMP: a("v_writelane_b32 v126, s8, 26")
    a(f"""s_sub_u32 s66, s8, 1
    s_cmp_lt_u32 s66, 48
    s_cbranch_scc1 L_notw
    s_sub_u32 s64, s66, 48
    s_cmp_ge_u32 s64, 160
    s_cbranch_scc1 L_end""")
    BF = 64
    a(f"""s_mul_i32 s65, s64, 205
    s_lshr_b32 s65, s65, 11
    s_mul_i32 s8, s65, 10
    s_sub_u32 s64, s64, s8
    s_lshl_b32 s9, s65, 2
    s_add_u32 s9, s9, s3
    s_mul_i32 s8, s9, {96*1280}
    s_lshl_b32 s10, s64, 7
    s_add_u32 s8, s8, s10
    s_add_u32 s52, s24, s8
    s_addc_u32 s53, s25, 0
    s_sub_u32 s54, {6144*1280}, s8
    v_lshrrev_b32 v14, 3, v0
    v_mul_u32_u24 v14, 1280, v14
    v_and_b32 v16, 7, v0
    v_lshl_add_u32 v14, v16, 4, v14
    s_mul_i32 s11, s3, 12288""")
    if RTRIG >= TRIG:
        dma(12, 52, 14, 8*1280, L_W)
        stamp(24)
    a(f"""v_lshlrev_b32 v15, 7, v10
    v_lshl_add_u32 v15, v11, 3, v15
    v_add_u32 v15, s11, v15
    s_lshr_b32 s9, s9, 1
    s_lshl_b32 s9, s9, 13
    s_add_u32 s9, s9, {WS_G3}
    v_lshl_add_u32 v16, v16, 10, s9
    s_and_b32 s8, s3, 1
    s_mul_i32 s8, s8, 384
    s_add_u32 s9, s9, s8
    v_lshlrev_b32 v17, 11, v2
    v_lshl_add_u32 v17, v3, 3, v17
    v_add_u32 v17, s9, v17
    s_mul_i32 s8, s3, 384
    v_and_b32 v19, 1, v2
    v_lshl_add_u32 v18, v3, 1, v19
    v_lshl_add_u32 v18, v18, 1, s8
    v_lshrrev_b32 v19, 5, v0
    v_lshl_add_u32 v12, v19, 7, v18
    v_lshl_add_u32 v19, v2, 4, s8
    v_lshlrev_b32 v13, 2, v0
    s_lshl_b32 s8, s3, 8
    v_add_u32 v20, s8, v13
    s_mul_i32 s8, s65, 2560
    s_lshl_b32 s10, s64, 8
    s_add_u32 s8, s8, s10
    s_add_u32 s8, s8, {WS_G4}
    v_add_u32 v21, s8, v13
    s_mov_b32 s12, 0
    s_mov_b32 s13, -1
    s_setprio 2""")
    def g3_loads():
        for t in range(3):
            for b in range(2):
                r = 112 + 4*t + 2*b
                a(f"global_load_dwordx2 v[{r}:{r+1}], v17, s[40:41] offset:{1024*b+128*t} sc1")
    if RTRIG < TRIG:
        lds_wait(L_FLAG+4, TRIG, "L_wgo", 0)
        a.label("L_wgo")
        dma(12, 52, 14, 8*1280, L_W)
        stamp(24)
    lab = a.newlabel('ML'); a.label(lab)
    a("global_load_dwordx2 v[6:7], v16, s[40:41] offset:768 sc1")
    g3_loads()
    a("""s_waitcnt vmcnt(0)
    v_max_u32 v8, v6, v7
    v_cmp_eq_u32 vcc, -1, v8""")
    spin_tail(lab)
    stamp(25)
    for ks in range(3):
        for nt in range(4):
            for hf in range(2):
                r = BF + 16*ks + 4*nt + 2*hf
                a(f"ds_read_b64_tr_b16 v[{r}:{r+1}], v15 offset:{L_W + 4096*ks + 512*hf + 32*nt}")
    a("v_mov_b32 v8, v6")
    red8('v_max_f32', 8)
    a(f"""v_sub_f32 v6, v6, v8
    v_mul_f32 v6, s42, v6
    v_exp_f32 v6, v6
    v_mul_f32 v7, v7, v6""")
    red8('v_add_f32', 7)
    a("v_rcp_f32 v7, v7\nv_mul_f32 v6, v6, v7")
    for r in range(4):
        a(f"v_mov_b32_dpp v8, v6 row_newbcast:{2*r} row_mask:{hex(1<<r)} bank_mask:0xf")
        a(f"v_mov_b32_dpp v22, v6 row_newbcast:{2*r+1} row_mask:{hex(1<<r)} bank_mask:0xf")
    a("s_mov_b32 s70, 0\ns_waitcnt lgkmcnt(0)\ns_branch L_g3chk")
    lab = a.newlabel('G3'); a.label(lab)
    a("s_cmp_lg_u32 s70, 0\ns_cbranch_scc1 L_g3ld\ns_mov_b32 s70, 1")
    lds_wait(L_FLAG+8, 15, "L_g3ld", 1)
    a.label("L_g3ld")
    stamp(30)
    a("s_mov_b64 exec, s[68:69]")
    g3_loads()
    a("s_mov_b64 exec, -1")
    a.label("L_g3chk")
    a("s_waitcnt vmcnt(0)")
    for t in range(3):
        a(f"v_pk_mul_f32 v[{48+2*t}:{49+2*t}], v[{112+4*t}:{113+4*t}], v[8:9] op_sel_hi:[1,0]")
    for t in range(3):
        a(f"v_pk_fma_f32 v[{48+2*t}:{49+2*t}], v[{114+4*t}:{115+4*t}], v[22:23], v[{48+2*t}:{49+2*t}] op_sel_hi:[1,0,1]")
    a("v_pk_add_f32 v[56:57], v[48:49], v[50:51]\nv_pk_add_f32 v[56:57], v[56:57], v[52:53]")
    nan_retry([56, 57], list(range(112, 124)), lab, 60, True)
    stamp(13)
    a("""v_mov_b32 v54, v50
    v_mov_b32 v55, v51
    v_permlane32_swap_b32 v48, v52
    v_permlane32_swap_b32 v49, v53
    v_permlane32_swap_b32 v50, v54
    v_permlane32_swap_b32 v51, v55
    v_pk_add_f32 v[48:49], v[48:49], v[52:53]
    v_pk_add_f32 v[50:51], v[50:51], v[54:55]""")
    rs_step(4, [(48, 49), (50, 51)])
    a(f"""v_cvt_pk_bf16_f32 v48, v48, v48
    v_cvt_pk_bf16_f32 v50, v50, v50
    ds_write_b16 v12, v48 offset:{L_O}
    ds_write_b16 v18, v50 offset:{L_O + 64}""")
    for ks in range(3): a(f"ds_read_b128 v[{24+4*ks}:{27+4*ks}], v19 offset:{L_O + 64*ks}")
    for ks in range(3):
        a(f"s_waitcnt lgkmcnt({2-ks})")
        for nt in range(4):
            c = '0' if ks == 0 else f"v[{40+4*nt}:{43+4*nt}]"
            a(f"v_mfma_f32_16x16x32_bf16 v[{40+4*nt}:{43+4*nt}], v[{24+4*ks}:{27+4*ks}], v[{BF+16*ks+4*nt}:{BF+16*ks+4*nt+3}], {c}")
    a(f"""v_cndmask_b32 v56, v40, v44, s[14:15]
    v_cndmask_b32 v57, v48, v52, s[14:15]
    v_cndmask_b32 v56, v56, v57, s[12:13]
    ds_write_b32 v20, v56 offset:{L_WP}
    s_waitcnt lgkmcnt(0)
    s_barrier
    s_cmp_lg_u32 s3, 0
    s_cbranch_scc1 L_end
    ds_read2st64_b32 v[24:25], v13 offset0:{L_WP//256} offset1:{L_WP//256+1}
    ds_read2st64_b32 v[26:27], v13 offset0:{L_WP//256+2} offset1:{L_WP//256+3}
    s_waitcnt lgkmcnt(1)
    v_add_f32 v24, v24, v25
    s_waitcnt lgkmcnt(0)
    v_add_f32 v26, v26, v27
    v_add_f32 v24, v24, v26
    v_min_u32 v24, -2, v24
    global_store_dword v21, v24, s[40:41] sc1""")
    stamp(14)
    a("s_branch L_end")

    a.label("L_notw")

    B1, B2 = 48, 88
    a(f"""s_mul_i32 s8, s3, {160*3072}
    s_lshl_b32 s9, s66, 6
    s_add_u32 s8, s8, s9
    s_add_u32 s52, s28, s8
    s_addc_u32 s53, s29, 0
    s_sub_u32 s54, {640*3072}, s8
    s_mul_i32 s8, s66, {32*1280}
    s_mul_i32 s9, s3, 320
    s_add_u32 s8, s8, s9
    s_add_u32 s56, s30, s8
    s_addc_u32 s57, s31, 0
    s_sub_u32 s58, {1536*1280}, s8
    v_mul_u32_u24 v14, 3072, v12
    v_lshl_add_u32 v14, v11, 4, v14
    s_mul_i32 s11, s3, 10240""")
    dma(10, 52, 14, 16*3072, L_W)
    a(f"""    v_lshlrev_b32 v15, 6, v10
    v_lshl_add_u32 v15, v11, 3, v15
    v_add_u32 v15, s11, v15
    v_mul_u32_u24 v16, 320, v10
    v_lshl_add_u32 v16, v11, 3, v16
    v_add_u32 v16, s11, v16""")
    W2A = 30
    for t in range(10):
        a(f"""v_add_u32 v5, {64*t}, v0
        v_mul_u32_u24 v6, 3277, v5
        v_lshrrev_b32 v6, 16, v6
        v_mul_u32_u24 v7, 960, v6
        v_lshl_add_u32 v{W2A+t}, v5, 4, v7""")
    if RTRIG < MTRIG:
        lds_wait(L_FLAG+4, MTRIG, "L_mgo", 0)
        a.label("L_mgo")
        dma(10, 52, 14, 16*3072, L_W)
        stamp(24)
    if W2E: dma(10, 56, [W2A+t for t in range(10)], 0, L_W2)
    a(f"""v_and_b32 v5, 1, v2
    v_lshl_add_u32 v5, v3, 1, v5
    v_lshrrev_b32 v6, 5, v0
    v_lshl_add_u32 v6, v6, 6, v5
    v_add_u32 v7, 128, v5
    s_mul_i32 s8, s3, 160
    v_lshl_add_u32 v17, v6, 1, s9
    v_lshl_add_u32 v18, v7, 1, s9
    v_add_u32 v6, s8, v6
    v_add_u32 v7, s8, v7
    v_lshlrev_b32 v19, 2, v6
    v_lshlrev_b32 v20, 2, v7
    v_lshlrev_b32 v8, 2, v0
    global_load_ushort v40, v17, s[16:17]
    global_load_ushort v41, v17, s[16:17] offset:64
    global_load_ushort v42, v18, s[16:17]""")
    for t in range(5): a(f"global_load_dword v{24+t}, v8, s[16:17] offset:{256*t}")
    a(f"""v_lshlrev_b32 v6, 3, v6
    v_lshlrev_b32 v7, 3, v7
    v_add_u32 v6, {WS_GR}, v6
    v_add_u32 v7, {WS_GR}, v7
    v_add_u32 v8, 5120, v6
    v_add_u32 v9, 5120, v7
    v_add_u32 v21, 10240, v6
    v_add_u32 v22, 10240, v7
    s_waitcnt lgkmcnt(0)
    s_add_u32 s6, s6, {hex(TAGC)}""")
    lab = a.newlabel('GR'); a.label(lab)
    GRB = 88
    srcs = [(6, 0), (6, 256), (7, 0), (8, 0), (8, 256), (9, 0), (21, 0), (21, 256), (22, 0)]
    for i, (v, o) in enumerate(srcs): a(f"global_load_dwordx2 v[{GRB+2*i}:{GRB+2*i+1}], v{v}, s[40:41] offset:{o} sc1")
    a(f"s_waitcnt vmcnt(0)\nv_xor_b32 v5, s6, v{GRB+1}")
    for i in range(1, 9): a(f"v_bitop3_b32 v5, v5, v{GRB+2*i+1}, s6 bitop3:0xf6")
    a("v_cmp_ne_u32 vcc, 0, v5")
    spin_tail(lab, 4)
    for j in range(3):
        a(f"""v_lshlrev_b32 v{40+j}, 16, v{40+j}
        v_mov_b32 v{43+j}, v{GRB+2*j}
        v_mov_b32 v{120+j}, v{GRB+6+2*j}
        v_add_f32 v{123+j}, 1.0, v{GRB+12+2*j}""")
        rbf(123+j, 123+j)
    a("v_mov_b32 v46, 0")
    for t in range(5): a(f"v_lshlrev_b32 v5, 16, v{24+t}\nv_and_b32 v6, s7, v{24+t}\nv_add_f32 v46, v46, v5\nv_add_f32 v46, v46, v6")
    red16('v_add_f32', [46]); red_hi('v_add_f32', [46], [5])
    a(f"""v_mul_f32 v46, {hex(f2u(1/640))}, v46
    v_mul_u32_u24 v21, 10240, v2
    v_lshl_add_u32 v21, v3, 3, v21
    s_mul_i32 s8, s3, 640
    s_add_u32 s9, s8, {WS_G4}
    v_add_u32 v21, s9, v21
    s_mul_i32 s9, s66, 2560
    s_add_u32 s8, s8, s9
    s_add_u32 s8, s8, {WS_G5}
    v_lshl_add_u32 v22, v0, 2, s8
    s_mul_i32 s8, s3, 320
    v_lshl_add_u32 v23, v2, 4, s8
    s_lshl_b32 s8, s3, 7
    v_add_u32 v47, s8, v13
    s_lshl_b32 s8, s3, 3
    v_mov_b32 v9, s8
    s_lshl_b32 s8, s3, 6
    v_lshrrev_b32 v12, 1, v13
    v_add_u32 v12, s8, v12
    s_add_u32 s8, s8, {L_U}
    v_lshl_add_u32 v5, v2, 4, s8
    v_lshrrev_b32 v6, 2, v3
    v_mov_b32 v7, {L_ZERO}""")
    for g in range(4):
        a(f"v_cmp_eq_u32 vcc, {g}, v6\nv_cndmask_b32 v{[2,3,10,11][g]}, v7, v5, vcc")
    if not W2E:
        lds_wait(L_FLAG+8, 15, "L_mgo2", 1)
        a.label("L_mgo2")
        dma(10, 56, [W2A+t for t in range(10)], 0, L_W2)
    a("s_setprio 2\ns_waitcnt vmcnt(10)")
    for ks in range(5):
        for nt in range(2):
            for hf in range(2):
                r = B1 + 8*ks + 4*nt + 2*hf
                a(f"ds_read_b64_tr_b16 v[{r}:{r+1}], v15 offset:{L_W + 2048*ks + 256*hf + 32*nt}")
    B2R = [B2 + 4*nt for nt in range(8)] + [24, 28]
    a("s_waitcnt vmcnt(0)")
    stamp(25)
    XR = [B2 + 2*i for i in range(16)] + [32, 34, 36, 38]
    raw = [r+k for r in XR for k in range(2)]
    a("v_add_u32 v14, 5120, v21")
    for r in raw: a(f"v_mov_b32 v{r}, -1")
    lab = a.newlabel('G4')
    a("s_mov_b64 s[68:69], -1")
    if IND:
        a(f"""v_mul_u32_u24 v6, 52, v0
        v_lshrrev_b32 v6, 8, v6
        v_mul_u32_u24 v7, {2560 - 640}, v6
        v_lshl_add_u32 v7, v0, 7, v7
        s_mul_i32 s8, s3, 640
        s_add_u32 s8, s8, {WS_G4 + 124}
        v_add_u32 v7, s8, v7
        v_add_u32 v8, {8*2560}, v7""")
        lds_wait(L_FLAG+8, 15, "L_ind0", 1)
        a.label("L_ind0")
        a("s_mov_b32 exec_hi, 0xff")
        a.label("L_ind")
        a(f"""global_load_dword v5, v7, s[40:41] sc1
        global_load_dword v6, v8, s[40:41] sc1
        s_add_u32 s67, s67, 1
        s_cmp_gt_u32 s67, {SPIN}
        s_cbranch_scc1 L_end
        s_waitcnt vmcnt(0)
        v_max_u32 v5, v5, v6
        v_cmp_eq_u32 vcc, -1, v5
        s_cbranch_vccnz L_ind""")
    else:
        lds_wait(L_FLAG+8, 15, lab, 1)
    a.label(lab)
    stamp(30)
    a("s_mov_b64 exec, s[68:69]")
    for t in range(5):
        for b in range(4):
            r = XR[4*t+b]
            a(f"global_load_dwordx2 v[{r}:{r+1}], v{21 if b < 2 else 14}, s[40:41] offset:{2560*(b&1)+128*t} sc1")
    a(f"s_mov_b64 exec, -1\ns_waitcnt vmcnt({20*(PD-1)})")
    YR = [24, 28, 26, 30, 4]
    for t in range(5): a(f"v_pk_add_f32 v[{YR[t]}:{YR[t]+1}], v[{XR[4*t]}:{XR[4*t]+1}], v[{XR[4*t+1]}:{XR[4*t+1]+1}]")
    for t in range(5): a(f"v_pk_add_f32 v[{YR[t]}:{YR[t]+1}], v[{YR[t]}:{YR[t]+1}], v[{XR[4*t+2]}:{XR[4*t+2]+1}]")
    for t in range(5): a(f"v_pk_add_f32 v[{YR[t]}:{YR[t]+1}], v[{YR[t]}:{YR[t]+1}], v[{XR[4*t+3]}:{XR[4*t+3]+1}]")
    a("""v_pk_add_f32 v[6:7], v[24:25], v[28:29]
    v_pk_add_f32 v[126:127], v[26:27], v[30:31]
    v_pk_add_f32 v[6:7], v[6:7], v[4:5]
    v_pk_add_f32 v[6:7], v[6:7], v[126:127]""".replace("v[126:127]", "v[44:45]" if False else "v[122:123]") if False else """v_pk_add_f32 v[6:7], v[24:25], v[28:29]
    v_pk_add_f32 v[6:7], v[6:7], v[26:27]
    v_pk_add_f32 v[6:7], v[6:7], v[30:31]
    v_pk_add_f32 v[6:7], v[6:7], v[4:5]""")
    nan_retry([6, 7], raw, lab, 8, True)
    stamp(15)
    a("v_mov_b32 v6, v4\nv_mov_b32 v7, v5")
    for x, y in ((24, 26), (28, 30), (4, 6)):
        a(f"v_permlane32_swap_b32 v{x}, v{y}\nv_permlane32_swap_b32 v{x+1}, v{y+1}")
    for x, y in ((24, 26), (28, 30), (4, 6)): a(f"v_pk_add_f32 v[{x}:{x+1}], v[{x}:{x+1}], v[{y}:{y+1}]")
    rs_step(4, [(24, 25), (28, 29), (4, 5)])
    C3 = [24, 28, 4]
    for c in C3: rbf(c, c)
    for j, c in enumerate(C3): a(f"v_mul_f32 v{c}, v{43+j}, v{c}")
    for c in C3: rbf(c, c)
    for j, c in enumerate(C3): a(f"v_add_f32 v{c}, v{40+j}, v{c}")
    for c in C3: rbf(c, c)
    a(f"""v_sub_f32 v25, v24, v46
    v_sub_f32 v29, v28, v46
    v_sub_f32 v5, v4, v46
    ds_write_b32 v19, v24 offset:{L_X2}
    ds_write_b32 v19, v28 offset:{L_X2+128}
    ds_write_b32 v20, v4 offset:{L_X2}
    v_mul_f32 v26, 0.5, v5
    v_add_f32 v30, v25, v29
    v_mul_f32 v31, v25, v25
    v_add_f32 v30, v30, v26
    v_fmac_f32 v31, v29, v29
    v_fmac_f32 v31, v26, v5""")
    red16('v_add_f32', [30, 31]); red_hi('v_add_f32', [30, 31], [6, 7])
    a(f"""ds_write_b64 v9, v[30:31] offset:{L_ST}
    v_mov_b32 v8, 0
    s_waitcnt vmcnt(0) lgkmcnt(0)""")
    if MST: stamp(48)
    a(f"""
    s_barrier
    ds_read_b128 v[32:35], v8 offset:{L_ST}
    ds_read_b128 v[36:39], v8 offset:{L_ST+16}""")
    if MST: stamp(49)
    a(f"""""")
    a(f"""s_waitcnt lgkmcnt(0)
    v_pk_add_f32 v[32:33], v[32:33], v[34:35]
    v_pk_add_f32 v[36:37], v[36:37], v[38:39]
    v_pk_add_f32 v[32:33], v[32:33], v[36:37]
    v_mul_f32 v32, {hex(f2u(1/640))}, v32
    v_mul_f32 v33, {hex(f2u(1/640))}, v33
    v_fma_f32 v33, -v32, v32, v33
    v_add_f32 v32, v32, v46
    v_max_f32 v33, 0, v33""")
    rbf(32, 32); rbf(33, 33)
    a(f"v_add_f32 v33, {hex(f2u(1e-5))}, v33")
    for c in C3: a(f"v_sub_f32 v{c}, v{c}, v32")
    rbf(33, 33)
    a("v_sqrt_f32 v33, v33")
    for c in C3: rbf(c, c)
    rbf(33, 33)
    a("v_rcp_f32 v33, v33")
    for c in C3: a(f"v_mul_f32 v{c}, v{c}, v33")
    for c in C3: rbf(c, c)
    for j, c in enumerate(C3): a(f"v_mul_f32 v{c}, v{c}, v{123+j}")
    for c in C3: rbf(c, c)
    for j, c in enumerate(C3): a(f"v_add_f32 v{c}, v{c}, v{120+j}")
    for c in C3: a(f"v_cvt_pk_bf16_f32 v{c}, v{c}, v{c}")
    a(f"""ds_write_b16 v17, v24 offset:{L_O}
    ds_write_b16 v17, v28 offset:{L_O+64}
    ds_write_b16 v18, v4 offset:{L_O}""")
    if MST: stamp(50)
    a(f"""""")
    A1 = [24, 28, 32, 36, 40]
    for ks in range(5): a(f"ds_read_b128 v[{A1[ks]}:{A1[ks]+3}], v23 offset:{L_O + 64*ks}")
    D1 = [4, 120]
    for ks in range(5):
        a(f"s_waitcnt lgkmcnt({4-ks})")
        for nt in range(2):
            c = '0' if ks == 0 else f"v[{D1[nt]}:{D1[nt]+3}]"
            a(f"v_mfma_f32_16x16x32_bf16 v[{D1[nt]}:{D1[nt]+3}], v[{A1[ks]}:{A1[ks]+3}], v[{B1+8*ks+4*nt}:{B1+8*ks+4*nt+3}], {c}")
    for nt in range(10):
        for hf in range(2):
            r = B2R[nt] + 2*hf
            a(f"ds_read_b64_tr_b16 v[{r}:{r+1}], v16 offset:{L_W2 + 1280*hf + 32*nt}")
    a(f"""v_cndmask_b32 v8, v4, v120, s[14:15]
    ds_write_b32 v47, v8 offset:{L_WP}
    s_waitcnt lgkmcnt(0)""")
    if MST: stamp(51)
    a(f"""
    s_barrier
    ds_read_b32 v32, v13 offset:{L_WP}
    ds_read_b32 v33, v13 offset:{L_WP+128}
    ds_read_b32 v34, v13 offset:{L_WP+256}
    ds_read_b32 v35, v13 offset:{L_WP+384}""")
    if MST: stamp(52)
    a(f"""
    s_waitcnt lgkmcnt(2)
    v_add_f32 v32, v32, v33
    s_waitcnt lgkmcnt(0)
    v_add_f32 v34, v34, v35
    v_add_f32 v32, v32, v34""")
    rbf(32, 32)
    a(f"""v_mul_f32 v33, s42, v32
    v_exp_f32 v33, -v33
    v_add_f32 v33, 1.0, v33
    v_rcp_f32 v33, v33
    v_mul_f32 v32, v32, v33
    v_cvt_pk_bf16_f32 v32, v32, v32
    ds_write_b16 v12, v32 offset:{L_U}""")
    if MST: stamp(53)
    a(f"""""")
    A2 = [48, 52, 56, 60]
    for g in range(4): a(f"ds_read_b128 v[{A2[g]}:{A2[g]+3}], v{[2,3,10,11][g]}")
    D2 = [64, 68, 72]
    for g in range(4):
        a(f"s_waitcnt lgkmcnt({3-g})")
        for j in range(3):
            nt = 4*j + g
            if nt >= 10: continue
            c = '0' if g == 0 else f"v[{D2[j]}:{D2[j]+3}]"
            a(f"v_mfma_f32_16x16x32_bf16 v[{D2[j]}:{D2[j]+3}], v[{A2[g]}:{A2[g]+3}], v[{B2R[nt]}:{B2R[nt]+3}], {c}")
    a(f"""v_min_u32 v76, -2, v72
    s_mov_b32 exec_hi, 0
    global_store_dword v22, v76, s[40:41] offset:512 sc1
    s_mov_b64 exec, -1
    v_min_u32 v77, -2, v64
    v_min_u32 v78, -2, v68
    global_store_dword v22, v77, s[40:41] sc1
    global_store_dword v22, v78, s[40:41] offset:256 sc1""")
    stamp(16)
    a("s_branch L_end")

    a.label("L_fwave")
    lds_wait(L_ROLE, 1, "L_frole", 4, vz=52)
    a.label("L_frole")
    a(f"""s_sub_u32 s66, s8, 1
    s_cmp_ge_u32 s66, 40
    s_cbranch_scc1 L_end
    v_and_b32 v4, 3, v0
    v_lshrrev_b32 v5, 4, v0
    v_lshl_add_u32 v6, v4, 2, v5
    s_lshl_b32 s8, s66, 4
    v_add_u32 v6, s8, v6
    v_lshlrev_b32 v7, 3, v6
    v_add_u32 v7, {WS_GR + 1920*8}, v7
    s_waitcnt lgkmcnt(0)
    s_add_u32 s6, s6, {hex(TAGC)}""")
    lab = a.newlabel('GF'); a.label(lab)
    a(f"""global_load_dwordx2 v[50:51], v7, s[40:41] sc1
    s_waitcnt vmcnt(0)
    v_cmp_ne_u32 vcc, s6, v51""")
    spin_tail(lab, 4)
    a(f"""v_lshlrev_b32 v8, 2, v6
    v_lshrrev_b32 v7, 2, v0
    v_mul_u32_u24 v7, 2560, v7
    v_lshl_add_u32 v7, v4, 4, v7
    s_lshl_b32 s8, s66, 6
    s_add_u32 s8, s8, {WS_G5}
    v_add_u32 v7, s8, v7
    v_add_u32 v52, {16*2560}, v7
    v_add_u32 v53, {32*2560}, v7
    v_lshlrev_b32 v6, 1, v6
    v_mov_b32 v4, {WS_EPOCH}
    v_mov_b32 v5, s6""")
    for r in range(24, 36): a(f"v_mov_b32 v{r}, -1")
    a(f"""s_barrier
    ds_read_b32 v48, v8 offset:{L_X2}
    s_waitcnt lgkmcnt(0)
    s_barrier""")
    a("s_mov_b64 s[68:69], -1")
    lab = a.newlabel('G5'); a.label(lab)
    stamp(30)
    a(f"""s_mov_b64 exec, s[68:69]
    global_load_dwordx4 v[24:27], v7, s[40:41] sc1
    global_load_dwordx4 v[28:31], v52, s[40:41] sc1
    global_load_dwordx4 v[32:35], v53, s[40:41] sc1
    s_mov_b64 exec, -1
    s_waitcnt vmcnt({3*(PDF-1)})
    v_pk_add_f32 v[36:37], v[24:25], v[28:29]
    v_pk_add_f32 v[38:39], v[26:27], v[30:31]
    v_pk_add_f32 v[36:37], v[36:37], v[32:33]
    v_pk_add_f32 v[38:39], v[38:39], v[34:35]
    v_pk_add_f32 v[42:43], v[36:37], v[38:39]""")
    nan_retry([42, 43], list(range(24, 36)), lab, 40, True)
    stamp(17)
    rs_step(5, [(36, 38), (37, 39)])
    rs_step(4, [(36, 37)])
    dpp('v_add_f32', 36, 36, 36, 'row_ror:8'); dpp('v_add_f32', 36, 36, 36, 'row_ror:4')
    rbf(36, 36)
    a("v_mul_f32 v36, v50, v36"); rbf(36, 36)
    a(f"""v_add_f32 v36, v48, v36
    v_cvt_pk_bf16_f32 v36, v36, v36
    s_mov_b32 exec_lo, 0x000f000f
    s_mov_b32 exec_hi, 0x000f000f
    global_store_short v6, v36, s[36:37]
    s_cmp_lg_u32 s66, 0
    s_cbranch_scc1 L_fend
    s_mov_b64 exec, 1
    global_store_dword v4, v5, s[40:41] sc1""")
    if P.get('dbgt'):
        a("""s_memrealtime s[92:93]
        s_waitcnt lgkmcnt(0)
        s_sub_u32 s92, s92, s98
        v_mov_b32 v4, 0
        v_mov_b32 v8, s92
        v_mov_b32 v9, s2
        global_store_dwordx2 v4, v[8:9], s[38:39]""")
    a.label("L_fend")
    a("s_mov_b64 exec, -1")
    stamp(18)
    a.label("L_end")
    if STAMP:
        a(f"""s_mov_b64 exec, -1
        v_writelane_b32 v126, s67, 27
        v_writelane_b32 v126, s63, 28
        v_writelane_b32 v126, s95, 29
        s_lshl_b32 s8, s2, 4
        s_add_u32 s8, s8, s3
        s_lshl_b32 s8, s8, 8
        s_add_u32 s8, s8, {WS_ST}
        v_lshl_add_u32 v4, v0, 2, s8
        global_store_dword v4, v126, s[40:41]""")
    a.label("L_exit")
    a("s_endpgm")

    body = a.text()
    out = HEADER
    out += f"; @launch grid=(256,1,1) block=(1024,1,1) lds={max(LDS_BYTES, L_W + 12*6144*NL)}\n"
    out += '.amdgcn_target "amdgcn-amd-amdhsa--gfx950"\n.text\n'
    out += f".globl {KN}\n.p2align 8\n.type {KN},@function\n{KN}:\n" + body
    out += f""".section .rodata,"a"
.p2align 6
.amdhsa_kernel {KN}
  .amdhsa_next_free_vgpr 128
  .amdhsa_next_free_sgpr 102
  .amdhsa_accum_offset 128
  .amdhsa_group_segment_fixed_size 0
  .amdhsa_kernarg_size 104
  .amdhsa_user_sgpr_count 2
  .amdhsa_user_sgpr_kernarg_segment_ptr 1
  .amdhsa_system_sgpr_workgroup_id_x 1
  .amdhsa_float_denorm_mode_32 3
.end_amdhsa_kernel
"""
    return out

if __name__ == '__main__':
    import json
    P = json.loads(sys.argv[2]) if len(sys.argv) > 2 else {}
    open(sys.argv[1], 'w').write(gen(P))
```

```python
import re, struct

def f2u(x):
    return struct.unpack('<I', struct.pack('<f', x))[0]

TRANS = ('v_exp_f32', 'v_log_f32', 'v_rcp_f32', 'v_rsq_f32', 'v_sqrt_f32', 'v_sin_f32', 'v_cos_f32', 'v_rcp_iflag_f32')
DPP_RE = re.compile(r'\b(quad_perm|row_shl|row_shr|row_ror|row_mirror|row_half_mirror|row_bcast|row_newbcast|wave_shl|wave_shr|wave_rol|wave_ror)\b')

def regs_of(tok):
    tok = tok.strip()
    tok = re.sub(r'^-|^\|', '', tok)
    tok = re.sub(r'^abs\((.*)\)$', r'\1', tok)
    tok = tok.rstrip('|')
    m = re.fullmatch(r'([vsa])(\d+)', tok)
    if m: return [(m.group(1), int(m.group(2)))]
    m = re.fullmatch(r'([vsa])\[(\d+):(\d+)\]', tok)
    if m: return [(m.group(1), i) for i in range(int(m.group(2)), int(m.group(3)) + 1)]
    if tok == 'vcc': return [('s', 'vcc_lo'), ('s', 'vcc_hi')]
    if tok in ('vcc_lo', 'vcc_hi'): return [('s', tok)]
    if tok == 'exec': return [('s', 'exec_lo'), ('s', 'exec_hi')]
    if tok == 'm0': return [('s', 'm0')]
    return []

class Ins:
    def __init__(self, text):
        self.text = text
        t = text.split(';')[0].strip()
        self.label = t.endswith(':')
        self.directive = t.startswith('.')
        self.empty = (t == '')
        self.op = ''
        self.w = set(); self.r = set()
        self.valu = self.trans = self.dpp = self.perm = self.rdlane = self.dot = self.vmem = self.ds = self.salu = False
        self.mfma = False
        self.widestore = False; self.sdata = set()
        if self.label or self.directive or self.empty: return
        parts = t.split(None, 1)
        self.op = op = parts[0]
        rest = parts[1] if len(parts) > 1 else ''
        ops = [o.strip() for o in re.split(r',(?![^\[]*\])', rest)] if rest else []
        if ops:
            last = ops[-1].split()
            ops[-1] = last[0] if last else ''
        self.ops = ops
        mo = re.search(r'\boffset:(-?\d+)', t)
        if mo:
            o = int(mo.group(1))
            if op.startswith('buffer_'): assert 0 <= o <= 4095, text
            elif op.startswith('global_'): assert -4096 <= o <= 4095, text
            elif op.startswith('ds_'): assert 0 <= o <= 65535, text
        for mo in re.finditer(r'\boffset[01]:(\d+)', t): assert int(mo.group(1)) <= 255, text
        mo = re.search(r'vmcnt\((\d+)\)', t)
        if mo: assert int(mo.group(1)) <= 63, text
        mo = re.search(r'lgkmcnt\((\d+)\)', t)
        if mo: assert int(mo.group(1)) <= 15, text
        base = re.sub(r'_(e32|e64|dpp|sdwa)$', '', op)
        self.base = base
        if op.startswith('v_'):
            self.valu = True
            self.trans = base in TRANS
            self.dpp = bool(DPP_RE.search(t))
            self.perm = base.startswith('v_permlane')
            self.rdlane = base in ('v_readfirstlane_b32', 'v_readlane_b32')
            self.dot = base.startswith('v_dot')
            self.mfma = base.startswith('v_mfma')
            if base.startswith('v_cmp'):
                self.w |= set(regs_of(ops[0])); srcs = ops[1:]
            elif self.perm:
                self.w |= set(regs_of(ops[0])) | set(regs_of(ops[1])); srcs = ops
            elif base in ('v_add_co_u32', 'v_sub_co_u32', 'v_addc_co_u32', 'v_subb_co_u32'):
                self.w |= set(regs_of(ops[0])) | set(regs_of(ops[1])); srcs = ops[2:]
            else:
                self.w |= set(regs_of(ops[0])); srcs = ops[1:]
                if base in ('v_fmac_f32', 'v_dot2c_f32_bf16', 'v_pk_fmac_f16', 'v_writelane_b32') or self.dpp:
                    srcs = ops
            for s in srcs: self.r |= set(regs_of(s))
            if base == 'v_cndmask_b32' and len(ops) == 3: self.r |= set(regs_of('vcc'))
        elif op.startswith(('buffer_', 'global_', 'flat_')):
            self.vmem = True
            isst = 'store' in op
            isat = 'atomic' in op
            islds = (' lds' in t) or ('load_lds' in op)
            if op in ('buffer_inv', 'buffer_wbl2'):
                pass
            elif isst:
                for s in ops: self.r |= set(regs_of(s))
                d = ops[0] if op.startswith('buffer_') else ops[1]
                self.sdata = set(regs_of(d))
                self.widestore = ('x3' in op or 'x4' in op)
            elif isat:
                ret = ' sc0' in t
                if op.startswith('global_') and ret:
                    self.w |= set(regs_of(ops[0])); srcs = ops[1:]
                else:
                    srcs = ops
                    if op.startswith('buffer_') and ret: self.w |= set(regs_of(ops[0]))
                for s in srcs: self.r |= set(regs_of(s))
            elif islds:
                for s in ops: self.r |= set(regs_of(s))
                self.r.add(('s', 'm0'))
            else:
                self.w |= set(regs_of(ops[0]))
                for s in ops[1:]: self.r |= set(regs_of(s))
        elif op.startswith('ds_'):
            self.ds = True
            if 'read' in op or 'permute' in op or 'swizzle' in op or '_rtn' in op:
                self.w |= set(regs_of(ops[0]))
                for s in ops[1:]: self.r |= set(regs_of(s))
            else:
                for s in ops: self.r |= set(regs_of(s))
        elif op.startswith('s_'):
            self.salu = True
            if op in ('s_nop', 's_waitcnt', 's_barrier', 's_endpgm', 's_sleep', 's_setprio', 's_branch') or op.startswith('s_cbranch') or op.startswith('s_cmp') or op.startswith('s_bitcmp'):
                for s in ops: self.r |= set(regs_of(s))
            else:
                if ops: self.w |= set(regs_of(ops[0]))
                for s in ops[1:]: self.r |= set(regs_of(s))
    def states(self):
        if self.op == 's_nop': return int(self.ops[0], 0) + 1
        return 1

def need(prod, cons):
    n = 0
    pv = {r for r in prod.w if r[0] == 'v'}
    ps = {r for r in prod.w if r[0] == 's'}
    if prod.valu:
        if cons.valu and (cons.dpp or cons.perm) and (pv & cons.r): n = max(n, 2)
        if cons.rdlane and (pv & cons.r): n = max(n, 1)
        if prod.trans and cons.valu and not cons.trans and (pv & cons.r): n = max(n, 1)
        if prod.trans and (cons.vmem or cons.ds) and (pv & cons.r): n = max(n, 1)
        if ps and cons.valu and (ps & cons.r): n = max(n, 2)
        if ps and cons.vmem and (ps & cons.r): n = max(n, 5)
        if ps and cons.salu and (ps & cons.r): n = max(n, 1)
        if prod.dot:
            if cons.valu and cons.base == prod.base:
                ab = set()
                for s in cons.ops[1:3]: ab |= set(regs_of(s))
                if pv & ab: n = max(n, 3)
            elif (pv & (cons.r | cons.w)): n = max(n, 3)
        if cons.mfma and not prod.mfma and (pv & cons.r): n = max(n, 2)
        if prod.mfma:
            p = 8 if '32x32' in prod.base else 4
            samec = cons.mfma and cons.base == prod.base and set(regs_of(cons.ops[3])) == pv
            if cons.mfma:
                ab = set(regs_of(cons.ops[1])) | set(regs_of(cons.ops[2]))
                if pv & ab: n = max(n, 8 if p == 4 else 12)
                elif (pv & set(regs_of(cons.ops[3]))) and not samec: n = max(n, 6 if p == 4 else 10)
            elif pv & (cons.r | cons.w): n = max(n, 8 if p == 4 else 12)
    if prod.mfma and cons.valu and not cons.mfma:
        c = set(regs_of(prod.ops[3]))
        if c & cons.w: n = max(n, 3 if '16x16' in prod.base else 7)
    if prod.widestore and (cons.valu or cons.vmem or cons.ds) and (prod.sdata & cons.w): n = max(n, 2)
    if prod.salu and ('s', 'm0') in prod.w and cons.vmem and ('s', 'm0') in cons.r: n = max(n, 1)
    return n

def hazard_pass(lines):
    out = []
    window = []
    for text in lines:
        ins = Ins(text)
        if ins.label or ins.directive or ins.empty:
            out.append(text); continue
        dist = 0; req = 0
        for p in reversed(window):
            k = need(p, ins)
            if k > dist: req = max(req, k - dist)
            dist += p.states()
            if dist > 20: break
        if req > 0:
            nop = Ins(f's_nop {req-1}')
            out.append(f'    s_nop {req-1}'); window.append(nop)
        out.append(text if text.startswith(' ') else '    ' + text)
        window.append(ins)
        if ins.op in ('s_branch', 's_endpgm'): window = []
        if len(window) > 32: window = window[-32:]
    return out

class Asm:
    def __init__(self): self.L = []; self.uid = 0
    def __call__(self, s):
        for x in s.split('\n'):
            x = x.strip()
            if x: self.L.append(x)
    def label(self, n): self.L.append(n + ':')
    def newlabel(self, p='L'):
        self.uid += 1; return f'{p}_{self.uid}'
    def text(self): return '\n'.join(hazard_pass(self.L)) + '\n'
```

```python
import sys, math
from asmlib import Asm, f2u

KN = "adaLN_cond__gqa_block_cached__dense_activation_silu__decode_kernel"
HEADER = open('adaLN_cond__gqa_block_cached__dense_activation_silu__decode.s.ref').read().split('; Override')[0]

WS_EPOCH = 0
WS_CNT = 0x1000; CNT_STRIDE = 1152
WS_BOARD = 0xC000
WS_GM = 0x10000
WS_GR = WS_GM + 1280*8
WS_G1 = 0x20000
WS_GQ = 0x30000
WS_G3 = 0x100000
WS_G5 = WS_G3 + 0x40000
WS_G4 = WS_G5 + 48*2560
WS_ST = 0x200000
TAGC = 0x9E3779B9
NUNITS = 2048
HEADB = 16384*384
L_Q = 0
L_FLAG = 512
L_ZERO = 528
L_ROLE = L_FLAG + 12
L_KF = 544
L_ML = 576
L_ST = 704
L_O = 1024
L_U = 2560
L_WP = 3072
L_X2 = 4096
L_PART = 6912
L_TP = 6912
L_W = 16384
L_W2 = L_W + 73728
L_SC = L_W2 + 40960
LDS_BYTES = L_SC + 8192

def gen(P):
    a = Asm()
    NST = 8
    PW = P.get('pw', 3)
    SLOW = {int(k): v for k, v in P.get('slow', {1: 0, 3: 1}).items()}
    STAMP = P.get('stamp', 0); MST = P.get('mst', 0)
    SPIN = P.get('spin', 400000)
    NLK = P.get('nlk', 2)
    NF = 6 + NLK
    SN = P.get('sn', 228); SQ = P.get('sq', 196)
    SX = P.get('sx', SN - 12)
    SM = P.get('sm', SN)
    NSTAT = 3*SQ + 2*SN + 2*SM + SX
    MB = P.get('mb', 160)
    assert NSTAT <= NUNITS and max(SN, SQ) <= 256 and SN >= 12*NF + 32 and SQ >= 32
    MS = P.get('ms', 0)
    PD = P.get('pd', 1); PDF = P.get('pdf', 2)
    TRIG = RTRIG = MTRIG = NST; W2E = 1; IND = 0; HN = 0; JIT = 0
    LD = P.get('ld', 'nt'); TLD = P.get('tld', LD); XLD = P.get('xld', LD); KLD = P.get('kld', LD); VLD = P.get('vld', LD)

    vL, vOFF = 0, 1
    vT = list(range(2, 10))
    vQ = 10
    vM, vLS = 22, 23
    vACC = 24
    vAK, vAV = 48, 60
    vB = [72, 96]
    vU = 120
    vTK = 127
    vSC = 8

    def stamp(k, cond_wave=None, r=None):
        if not STAMP: return
        a(f"""s_memrealtime s[92:93]
        s_waitcnt lgkmcnt(0)
        v_writelane_b32 v126, s92, {k}""")

    def rbf(d, s):
        a(f"v_cvt_pk_bf16_f32 v{d}, v{s}, v{s}\nv_and_b32 v{d}, s7, v{d}")

    def dpp(op, d, s0, s1, ctl):
        a(f"{op}_dpp v{d}, v{s0}, v{s1} {ctl} row_mask:0xf bank_mask:0xf")

    def red8(op, x):
        dpp(op, x, x, x, "quad_perm:[1,0,3,2]"); dpp(op, x, x, x, "quad_perm:[2,3,0,1]"); dpp(op, x, x, x, "row_half_mirror")
    def red16(op, xs):
        for ctl in ("quad_perm:[1,0,3,2]", "quad_perm:[2,3,0,1]", "row_half_mirror", "row_mirror"):
            for x in xs: dpp(op, x, x, x, ctl)
    def red_hi(op, xs, ts, bits=(4, 5)):
        for b in bits:
            sw = 'v_permlane16_swap_b32' if b == 4 else 'v_permlane32_swap_b32'
            for x, t in zip(xs, ts): a(f"v_mov_b32 v{t}, v{x}")
            for x, t in zip(xs, ts): a(f"{sw} v{x}, v{t}")
            for x, t in zip(xs, ts): a(f"{op} v{x}, v{x}, v{t}")
    def rs_step(bit, pairs):
        sw = 'v_permlane16_swap_b32' if bit == 4 else 'v_permlane32_swap_b32'
        for x, y in pairs: a(f"{sw} v{x}, v{y}")
        for x, y in pairs: a(f"v_add_f32 v{x}, v{x}, v{y}")

    def spin_tail(lab_retry, slp=1):
        done = a.newlabel('GD')
        a(f"""s_cbranch_vccz {done}
        s_add_u32 s67, s67, 1
        s_cmp_gt_u32 s67, {SPIN}
        s_cbranch_scc1 L_end
        s_sleep {slp}
        s_branch {lab_retry}""")
        a.label(done)

    def tile_dots(acc, tile, nrb, chi, clo):
        for rb in range(nrb):
            for d in range(4):
                a(f"v_dot2c_f32_bf16 v{acc+2*d}, v{tile+4*rb+d}, v{clo[rb]}")
                a(f"v_dot2c_f32_bf16 v{acc+2*d+1}, v{tile+4*rb+d}, v{chi[rb]}")
    def tile_reduce8(acc, sel):
        rs_step(5, [(acc+i, acc+4+i) for i in range(4)])
        rs_step(4, [(acc+i, acc+2+i) for i in range(2)])
        dpp('v_add_f32', acc, acc, acc, 'row_ror:8'); dpp('v_add_f32', acc+1, acc+1, acc+1, 'row_ror:8')
        a(f"v_cndmask_b32 v{acc}, v{acc}, v{acc+1}, {sel}")
    def tile_reduce4(acc):
        rs_step(5, [(acc+i, acc+4+i) for i in range(4)])
        rs_step(4, [(acc+i, acc+2+i) for i in range(2)])
        for ctl in ('row_ror:8', 'row_ror:4'):
            dpp('v_add_f32', acc, acc, acc, ctl); dpp('v_add_f32', acc+1, acc+1, acc+1, ctl)

    def loadK(r):
        for j in range(3): a(f"buffer_load_dwordx4 v[{r+4*j}:{r+4*j+3}], v{vOFF}, s[44:47], s62 offen offset:{128*j} {KLD}")
    def loadV(r):
        for j in range(3): a(f"buffer_load_dwordx4 v[{r+4*j}:{r+4*j+3}], v{vOFF}, s[48:51], s62 offen offset:{128*j} {VLD}")
    def ticket(prog=False):
        if JIT: return
        a("s_mov_b64 exec, 1")
        if prog and HN: a(f"ds_max_u32 v{vU+4}, v{vTK} offset:{L_PROG}")
        a(f"""global_atomic_add v{vTK}, v{vU+4}, v{vU+5}, s[60:61] sc0
        s_mov_b64 exec, -1""")
    def qk_dots(K):
        t0, t1, t2 = vT[0], vT[1], vT[2]
        a(f"v_mov_b32 v{t0}, 0\nv_mov_b32 v{t1}, 0\nv_mov_b32 v{t2}, 0")
        for r in range(4):
            for j in range(3):
                a(f"v_dot2c_f32_bf16 v{vT[j]}, v{K+4*j+r}, v{vQ+4*j+r}")
    def softmax(last=False, scored=False):
        t0, t1, t2, t3, p, al = vT[0], vT[1], vT[2], vT[3], vT[4], vU+2
        if not scored:
            a(f"v_add_f32 v{t0}, v{t0}, v{t1}\nv_add_f32 v{t0}, v{t0}, v{t2}")
            red8('v_add_f32', t0)
            rbf(t0, t0)
            a(f"v_mul_f32 v{t0}, s43, v{t0}")
            rbf(t0, t0)
        a(f"v_max_f32 v{t1}, v{vM}, v{t0}")
        if last:
            dpp('v_max_f32', t1, t1, t1, 'row_ror:8')
            red_hi('v_max_f32', [t1], [t2])
        a(f"""v_sub_f32 v{t2}, v{vM}, v{t1}
        v_sub_f32 v{t3}, v{t0}, v{t1}
        v_mul_f32 v{t2}, s42, v{t2}
        v_mul_f32 v{t3}, s42, v{t3}
        v_exp_f32 v{al}, v{t2}
        v_exp_f32 v{p}, v{t3}
        v_mov_b32 v{vM}, v{t1}
        v_fma_f32 v{vLS}, v{vLS}, v{al}, v{p}""")
        if last:
            dpp('v_add_f32', vLS, vLS, vLS, 'row_ror:8')
            red_hi('v_add_f32', [vLS], [t2])
            a(f"""s_lshl_b32 s8, s3, 3
            v_mov_b32 v{t2}, s8
            v_mov_b32 v{t0}, 0
            v_mov_b32 v{t1}, 1
            s_mov_b64 exec, 1
            ds_write_b64 v{t2}, v[{vM}:{vLS}] offset:{L_ML-32}
            ds_add_u32 v{t0}, v{t1} offset:{L_FLAG+4}
            s_mov_b64 exec, -1""")
        for i in range(12):
            r = vACC + 2*i
            a(f"v_pk_mul_f32 v[{r}:{r+1}], v[{r}:{r+1}], v[{al}:{al+1}] op_sel_hi:[1,0]")
    def lds_wait(off, val, lab, slp, cmp='ge', vz=4, vd=5):
        top = a.newlabel('LW'); a.label(top)
        a(f"""ds_read_b32 v{vd}, v{vz} offset:{off}
        s_waitcnt lgkmcnt(0)
        v_readfirstlane_b32 s8, v{vd}
        s_cmp_ge_u32 s8, {val}
        s_cbranch_scc1 {lab}
        s_add_u32 s67, s67, 1
        s_cmp_gt_u32 s67, {SPIN*8}
        s_cbranch_scc1 L_end""")
        if slp: a(f"s_sleep {slp}")
        a(f"s_branch {top}")
    def part_addr():
        a(f"""v_lshrrev_b32 v52, 3, v0
        v_and_b32 v53, 7, v0
        v_mul_u32_u24 v52, 3, v52
        s_mul_i32 s8, s3, 768
        s_add_u32 s8, s8, {L_PART-4*768}
        v_lshl_add_u32 v53, v53, 5, s8
        s_mov_b32 s12, 0xff00ff00
        s_mov_b32 s13, 0xff00ff00""")
        for i in range(3):
            a(f"""v_add_u32 v54, {i}, v52
            v_lshrrev_b32 v55, 3, v54
            v_and_b32 v54, 7, v54
            v_lshl_add_u32 v55, v55, 8, v53
            v_lshl_add_u32 v{48+i}, v54, 2, v55""")
        a("v_mov_b32 v52, 0\nv_mov_b32 v53, 1")
    def part_write():
        for i in range(12): a(f"v_permlane32_swap_b32 v{vACC+i}, v{vACC+12+i}")
        for i in range(0, 12, 2): a(f"v_pk_add_f32 v[{vACC+i}:{vACC+i+1}], v[{vACC+i}:{vACC+i+1}], v[{vACC+12+i}:{vACC+13+i}]")
        for i in range(6): a(f"v_permlane16_swap_b32 v{vACC+i}, v{vACC+6+i}")
        for i in range(0, 6, 2): a(f"v_pk_add_f32 v[{vACC+i}:{vACC+i+1}], v[{vACC+i}:{vACC+i+1}], v[{vACC+6+i}:{vACC+7+i}]")
        for i in range(6): dpp('v_add_f32', vACC+i, vACC+i, vACC+i, 'row_ror:8')
        for i in range(3): a(f"v_cndmask_b32 v{vACC+i}, v{vACC+i}, v{vACC+3+i}, s[12:13]")
        for i in range(3): a(f"ds_write_b32 v{48+i}, v{vACC+i}")
        a(f"""s_mov_b64 exec, 1
        ds_add_u32 v52, v53 offset:{L_FLAG+8}
        s_mov_b64 exec, -1""")
    def nan_retry(regs, raw, lab, tmp, masked=False):
        done = a.newlabel('NR')
        if len(regs) == 1: a(f"v_cmp_u_f32 vcc, v{regs[0]}, v{regs[0]}")
        elif len(regs) == 2: a(f"v_cmp_u_f32 vcc, v{regs[0]}, v{regs[1]}")
        else: a(f"v_add_f32 v{tmp}, v{regs[0]}, v{regs[1]}\nv_cmp_u_f32 vcc, v{tmp}, v{regs[2]}")
        a(f"s_cbranch_vccz {done}")
        if masked: a("s_mov_b64 s[68:69], vcc")
        a(f"""s_add_u32 s67, s67, 1
        s_and_b32 s8, s67, 15
        s_cbranch_scc1 {lab}
        s_cmp_gt_u32 s67, {SPIN}
        s_cbranch_scc1 L_end
        s_cmp_eq_u32 s63, 1
        s_cbranch_scc1 {done}""")
        a(f"v_mov_b32 v{tmp}, v{raw[0]}")
        for i in range(1, len(raw), 2):
            if i+1 < len(raw): a(f"v_max3_u32 v{tmp}, v{tmp}, v{raw[i]}, v{raw[i+1]}")
            else: a(f"v_max_u32 v{tmp}, v{tmp}, v{raw[i]}")
        a(f"""v_cmp_eq_u32 vcc, -1, v{tmp}
        s_cbranch_vccnz {lab}
        s_mov_b32 s63, 1
        s_branch {lab}""")
        a.label(done)
    def pv(V):
        p = vT[4]
        for i in range(12):
            t = vU + 2*(i & 1)
            r = vACC + 2*i
            a(f"""v_lshlrev_b32 v{t}, 16, v{V+i}
            v_and_b32 v{t+1}, s7, v{V+i}
            v_pk_fma_f32 v[{r}:{r+1}], v[{t}:{t+1}], v[{p}:{p+1}], v[{r}:{r+1}] op_sel_hi:[1,0,1]""")

    if STAMP: a("s_memrealtime s[98:99]\nv_mov_b32 v126, 0\ns_mov_b32 s95, 0")
    if P.get('dbgt'): a("s_memrealtime s[98:99]")
    a(f"""s_cmp_ge_u32 s2, 256
    s_cbranch_scc1 L_exit
    s_load_dwordx16 s[16:31], s[0:1], 0
    s_load_dwordx8 s[32:39], s[0:1], 64
    s_load_dwordx2 s[40:41], s[0:1], 96
    v_lshrrev_b32 v1, 6, v0
    v_readfirstlane_b32 s3, v1
    v_and_b32 v0, 63, v0""")
    if P.get('warm', 0):
        a(f"""s_cmp_ge_u32 s2, {P.get('warmwg', 16)}
        s_cbranch_scc1 L_nowarm
        s_cmp_lg_u32 s3, 15
        s_cbranch_scc1 L_nowarm
        s_getpc_b64 s[52:53]""")
        a.label("L_pc")
        a(f"""s_sub_u32 s52, s52, L_pc-{KN}
        s_subb_u32 s53, s53, 0
        s_mov_b32 s54, L_exit+4-{KN}
        s_mov_b32 s55, 0x20000
        v_lshlrev_b32 v5, 4, v0""")
        for i in range(P.get('warm')):
            a(f"s_mov_b32 s8, {1024*i}\nbuffer_load_dwordx4 v[120:123], v5, s[52:55], s8 offen")
        a.label("L_nowarm")
    a(f"""s_lshr_b32 s4, s2, 3
    s_lshl_b32 s5, s2, 2
    s_add_u32 s4, s4, s5
    s_and_b32 s4, s4, 31
    s_lshr_b32 s5, s2, 5
    s_mov_b32 s7, 0xffff0000
    s_mov_b32 s42, {hex(f2u(math.log2(math.e)))}
    s_mov_b32 s43, {hex(f2u(192 ** -0.5))}
    s_mov_b32 s67, 0
    s_mov_b32 s63, 0
    v_lshrrev_b32 v2, 3, v0
    v_and_b32 v3, 7, v0
    v_mul_u32_u24 v1, 384, v2
    v_lshl_add_u32 v1, v3, 4, v1
    s_mul_i32 s8, s4, {HEADB}
    s_mov_b32 s46, {HEADB}
    s_mov_b32 s47, 0x20000
    s_mov_b32 s50, {HEADB}
    s_mov_b32 s51, 0x20000
    s_mov_b32 s55, 0x20000
    s_mov_b32 s59, 0x20000
    s_mul_i32 s9, s4, {CNT_STRIDE}
    s_add_u32 s9, s9, {WS_CNT}
    v_mov_b32 v4, 0
    v_mov_b32 v5, 0
    v_mov_b32 v6, 0
    v_mov_b32 v7, 0
    ds_write_b128 v4, v[4:7] offset:{L_FLAG}
    ds_write_b128 v4, v[4:7] offset:{L_ZERO}
    s_cmp_lt_u32 s5, 3
    s_cselect_b32 s10, 16, {12*NF + 16}
    v_mov_b32 v8, s10
    v_mov_b32 v9, 16
    ds_write_b64 v4, v[8:9] offset:{L_KF}
    v_mov_b32 v10, -1
    v_mov_b32 v11, -1
    v_lshlrev_b32 v12, 3, v0
    v_lshl_add_u32 v12, s3, 9, v12
    v_add_u32 v12, {L_SC}, v12
    ds_write_b64 v12, v[10:11]
    s_waitcnt lgkmcnt(0)
    s_barrier""")
    if STAMP: a("v_writelane_b32 v126, s98, 22")
    stamp(23)
    a(f"""s_add_u32 s44, s18, s8
    s_addc_u32 s45, s19, 0
    s_add_u32 s48, s20, s8
    s_addc_u32 s49, s21, 0
    s_add_u32 s60, s40, s9
    s_addc_u32 s61, s41, 0
    s_load_dword s6, s[40:41], {WS_EPOCH}
    s_mov_b32 s12, 0xff00ff00
    s_mov_b32 s13, 0xff00ff00
    s_cmp_lt_u32 s5, 3
    s_cbranch_scc1 L_qtile
    s_lshr_b32 s9, s2, 3
    s_and_b32 s8, s9, 3
    s_cmp_eq_u32 s8, 3
    s_cbranch_scc1 L_roles
    s_sub_u32 s9, s5, 3
    s_mul_i32 s9, s9, 3
    s_add_u32 s9, s9, s8
    s_cmp_ge_u32 s9, 10
    s_cbranch_scc1 L_roles""")
    TILE = 48; CH = 24; CL = 30; TA = 40
    def tile_loads(stride, n=5):
        a(f"""s_mul_i32 s10, s3, {8*n*stride}
        v_mul_u32_u24 v4, {stride}, v2
        v_lshl_add_u32 v4, v3, 4, v4""")
        for t in range(n):
            a(f"buffer_load_dwordx4 v[{TILE+4*t}:{TILE+4*t+3}], v4, s[52:55], s10 offen {LD}")
            if t < n-1: a(f"s_add_u32 s10, s10, {8*stride}")
    def tile_finish(n=5, nwv=16, join=None):
        tile_dots(TA, TILE, n, [CH+t for t in range(n)], [CL+t for t in range(n)])
        tile_reduce8(TA, 's[12:13]')
        a(f"""ds_write_b32 v5, v{TA} offset:{L_TP}""")
        stamp(20)
        if join: a.label(join)
        a(f"""s_waitcnt vmcnt(0) lgkmcnt(0)
        s_barrier""")
        stamp(21)
        a(f"""s_cmp_lg_u32 s3, 0
        s_cbranch_scc1 L_tilebar
        v_lshlrev_b32 v5, 2, v0
        v_add_u32 v5, {L_TP}, v5""")
        for k in range(nwv//2): a(f"ds_read2st64_b32 v[{24+2*k}:{25+2*k}], v5 offset0:{2*k} offset1:{2*k+1}")
        for k in range(nwv//2):
            a(f"s_waitcnt lgkmcnt({nwv//2-1-k})")
            a(f"v_add_f32 v{24+2*k}, v{24+2*k}, v{25+2*k}")
            if k & 1: a(f"v_add_f32 v{22+2*k}, v{22+2*k}, v{24+2*k}")
        tops = [24+4*k for k in range((nwv//2+1)//2)]
        while len(tops) > 1:
            nxt = []
            for i in range(0, len(tops)-1, 2):
                a(f"v_add_f32 v{tops[i]}, v{tops[i]}, v{tops[i+1]}"); nxt.append(tops[i])
            if len(tops) & 1: nxt.append(tops[-1])
            tops = nxt
    def tile_ldsaddr():
        a(f"""v_lshl_add_u32 v5, v3, 3, v2
        s_lshl_b32 s8, s3, 8
        v_lshl_add_u32 v5, v5, 2, s8""")
        for i in range(8): a(f"v_mov_b32 v{TA+i}, 0")
    a.label("L_modtile")
    a(f"""s_lshl_b32 s9, s9, 3
    s_and_b32 s8, s2, 7
    s_add_u32 s9, s9, s8
    s_cmp_ge_u32 s3, 10
    s_cbranch_scc1 L_poison
    s_lshr_b32 s11, s9, 2
    s_and_b32 s15, s9, 3
    s_lshl_b32 s14, s11, 7
    s_mul_i32 s8, s15, {160*7680}
    s_add_u32 s14, s14, s8
    s_add_u32 s52, s34, s14
    s_addc_u32 s53, s35, 0
    s_sub_u32 s54, {640*7680}, s14
    s_mul_i32 s14, s15, 320
    s_lshl_b32 s8, s3, 5
    s_add_u32 s14, s14, s8
    v_lshl_add_u32 v7, v2, 1, s14""")
    for t in range(2): a(f"global_load_ushort v{CH+t}, v7, s[32:33] offset:{16*t}")
    tile_loads(7680, 2)
    tile_ldsaddr()
    a(f"""s_mul_i32 s14, s15, 10240
    s_lshl_b32 s8, s11, 9
    s_add_u32 s14, s14, s8
    s_add_u32 s14, s14, {WS_G1}
    v_lshl_add_u32 v6, v0, 3, s14
    s_waitcnt vmcnt(2)""")
    for t in range(2):
        x, u = CH+t, CL+t
        a(f"""v_lshlrev_b32 v{x}, 16, v{x}
        v_mul_f32 v{u}, s42, v{x}
        v_exp_f32 v{u}, -v{u}
        v_add_f32 v{u}, 1.0, v{u}
        v_rcp_f32 v{u}, v{u}
        v_mul_f32 v{x}, v{x}, v{u}""")
        rbf(x, x)
        a(f"v_lshrrev_b32 v{u}, 16, v{x}")
    a("s_waitcnt vmcnt(0)")
    stamp(19)
    tile_finish(2, 10, "L_modjoin")
    a(f"""s_add_u32 s8, s6, {hex(TAGC)}
    v_mov_b32 v25, s8
    global_store_dwordx2 v6, v[24:25], s[40:41] sc1""")
    stamp(6)
    a("s_branch L_tilebar")
    a.label("L_poison")
    a(f"""s_mul_i32 s14, s9, 6
    s_add_u32 s14, s14, s3
    s_lshl_b32 s14, s14, 10
    s_add_u32 s14, s14, {WS_G3 - 10*1024}
    v_lshl_add_u32 v6, v0, 4, s14
    v_mov_b32 v88, -1
    v_mov_b32 v89, -1
    v_mov_b32 v90, -1
    v_mov_b32 v91, -1
    global_store_dwordx4 v6, v[88:91], s[40:41] sc1
    s_cmp_lg_u32 s3, 15
    s_cbranch_scc1 L_modjoin
    s_cmp_lg_u32 s9, 40
    s_cbranch_scc1 L_noboard
    v_lshlrev_b32 v6, 8, v0
    v_add_u32 v6, {WS_BOARD}, v6
    v_mov_b32 v8, 0
    global_store_dword v6, v8, s[40:41] sc1""")
    a.label("L_noboard")
    a(f"""s_cmp_ge_u32 s9, 40
    s_cbranch_scc1 L_modjoin
    s_mul_i32 s14, s9, {CNT_STRIDE}
    s_add_u32 s14, s14, {WS_CNT}
    v_mov_b32 v6, s14
    v_mov_b32 v8, 0
    s_mov_b64 exec, 1
    global_store_dword v6, v8, s[40:41] sc1
    s_mov_b64 exec, -1
    s_branch L_modjoin""")
    a.label("L_qtile")
    a(f"""s_mul_i32 s8, s4, 384
    s_lshl_b32 s9, s5, 7
    s_add_u32 s8, s8, s9
    s_add_u32 s52, s22, s8
    s_addc_u32 s53, s23, 0
    s_sub_u32 s54, {640*12288}, s8
    v_lshlrev_b32 v5, 2, v0
    s_mul_i32 s14, s3, 40
    v_add_u32 v8, s14, v3
    v_lshlrev_b32 v7, 1, v8""")
    for t in range(5): a(f"global_load_dword v{70+t}, v5, s[16:17] offset:{256*t}")
    for t in range(5): a(f"global_load_ushort v{CL+t}, v7, s[16:17] offset:{16*t}")
    tile_loads(12288)
    a("s_barrier")
    a(f"""v_lshlrev_b32 v8, 3, v8
    v_and_b32 v9, 3, v2
    v_mul_u32_u24 v9, 10240, v9
    v_add_u32 v8, v8, v9
    v_lshrrev_b32 v9, 5, v0
    v_mul_u32_u24 v9, 5120, v9
    v_add_u32 v8, v8, v9
    v_add_u32 v8, {WS_G1}, v8
    v_lshlrev_b32 v9, 2, v2""")
    tile_ldsaddr()
    a(f"""v_lshrrev_b32 v10, 1, v0
    v_mul_u32_u24 v11, 43, v10
    v_lshrrev_b32 v11, 7, v11
    v_add_u32 v11, v11, v10
    v_lshlrev_b32 v11, 2, v11
    v_lshlrev_b32 v10, 4, v10
    v_add_u32 v10, 12, v10
    v_and_b32 v12, 1, v0
    v_cmp_eq_u32 s[14:15], 1, v12
    s_mul_i32 s8, s4, 768
    s_lshl_b32 s9, s5, 8
    s_add_u32 s8, s8, s9
    s_add_u32 s8, s8, {WS_GQ}
    v_cndmask_b32 v10, v11, v10, s[14:15]
    v_add_u32 v10, s8, v10
    s_waitcnt vmcnt(5)""")
    for t in range(5):
        a(f"v_lshlrev_b32 v{76+2*t}, 16, v{70+t}\nv_and_b32 v{77+2*t}, s7, v{70+t}")
    a("v_add_f32 v70, v76, v77")
    for i in range(2, 10): a(f"v_add_f32 v70, v70, v{76+i}")
    red16('v_add_f32', [70]); red_hi('v_add_f32', [70], [71])
    a(f"v_mul_f32 v70, {hex(f2u(1/640))}, v70")
    a("v_mov_b32 v72, 0")
    for i in range(10): a(f"v_sub_f32 v{76+i}, v{76+i}, v70\nv_fmac_f32 v72, v{76+i}, v{76+i}")
    red16('v_add_f32', [72]); red_hi('v_add_f32', [72], [71])
    a(f"v_mul_f32 v72, {hex(f2u(1/640))}, v72")
    rbf(70, 70); rbf(72, 72)
    a(f"v_add_f32 v72, {hex(f2u(1e-5))}, v72")
    rbf(72, 72)
    a("v_sqrt_f32 v72, v72")
    rbf(72, 72)
    a("v_rcp_f32 v72, v72")
    for t in range(5):
        r = CL+t
        a(f"v_lshlrev_b32 v{r}, 16, v{r}\nv_sub_f32 v{r}, v{r}, v70")
        rbf(r, r)
        a(f"v_mul_f32 v{r}, v{r}, v72")
        rbf(r, r)
    a(f"s_waitcnt lgkmcnt(0)\ns_add_u32 s11, s6, {hex(TAGC)}")
    stamp(2, 0, 108)
    GG = 88
    lab = a.newlabel('GM'); a.label(lab)
    for t in range(5):
        a(f"global_load_dwordx2 v[{GG+2*t}:{GG+2*t+1}], v8, s[40:41] offset:{64*t} sc1")
    a("s_waitcnt vmcnt(0)")
    a(f"v_xor_b32 v70, s11, v{GG+1}")
    for k in range(1, 5): a(f"v_bitop3_b32 v70, v70, v{GG+2*k+1}, s11 bitop3:0xf6")
    a("v_cmp_ne_u32 vcc, 0, v70")
    spin_tail(lab, P.get('gmslp', 2))
    stamp(3)
    xs = [GG+2*t for t in range(5)]; ys = [GG+2*t+1 for t in range(5)]
    for x in xs: dpp('v_add_f32', x, x, x, 'row_ror:8')
    red_hi('v_add_f32', xs, ys, bits=(4,))
    for x in xs: rbf(x, x)
    for x, y in zip(xs, ys): a(f"v_mov_b32 v{y}, v{x}")
    for x, y in zip(xs, ys): a(f"v_permlane32_swap_b32 v{x}, v{y}")
    for y in ys: a(f"v_add_f32 v{y}, 1.0, v{y}")
    for y in ys: rbf(y, y)
    for t in range(5): a(f"v_mul_f32 v{ys[t]}, v{CL+t}, v{ys[t]}")
    for y in ys: rbf(y, y)
    for x, y in zip(xs, ys): a(f"v_add_f32 v{y}, v{y}, v{x}")
    for y in ys: a(f"v_cvt_pk_bf16_f32 v{y}, v{y}, 0")
    for t in range(5): a(f"ds_bpermute_b32 v{CL+t}, v9, v{ys[t]}")
    for t in range(5): a(f"s_waitcnt lgkmcnt({4-t})\nv_lshlrev_b32 v{CH+t}, 16, v{CL+t}")
    tile_finish()
    a(f"""v_mov_b32_dpp v25, v24 quad_perm:[1,0,3,2] row_mask:0xf bank_mask:0xf
    v_mov_b32 v26, s11
    v_cvt_pk_bf16_f32 v24, v24, v25
    v_cndmask_b32 v24, v24, v26, s[14:15]
    s_mov_b32 exec_lo, 0x557fffff
    s_mov_b32 exec_hi, 0x55555555
    global_store_dword v10, v24, s[40:41] sc1
    s_mov_b64 exec, -1""")
    stamp(4, 0, 108)
    a.label("L_tilebar")
    a("s_barrier")
    a.label("L_roles")
    a(f"""s_cmp_lt_u32 s3, 4
    s_cbranch_scc1 L_chain""")
    slots = [vAK, vAV, vB[0], vB[0]+12, vB[1], vB[1]+12]
    def ld3(r, srd, soff, pol):
        for j in range(3): a(f"buffer_load_dwordx4 v[{r+4*j}:{r+4*j+3}], v{vOFF}, s[{srd}:{srd+3}], s{soff} offen offset:{128*j} {pol}")
    a(f"""s_sub_u32 s9, s3, 4
    v_lshlrev_b32 v{vSC}, 2, v2
    v_add_u32 v{vSC}, {L_SC}, v{vSC}
    s_cmp_ge_u32 s5, 3
    s_cbranch_scc1 L_fill
    s_cmp_ge_u32 s3, {4+NST}
    s_cbranch_scc1 L_retired
    s_mul_i32 s64, s5, {SQ*3072}
    s_mov_b32 s65, {SQ}
    s_mul_i32 s62, s9, 3072
    s_add_u32 s62, s62, s64
    s_lshl_b32 s74, s9, 5
    s_add_u32 s75, s74, 256""")
    ld3(vAK, 44, 62, KLD)
    a(f"s_add_u32 s62, s62, {NST*3072}")
    ld3(vAV, 44, 62, KLD)
    a("s_branch L_filled")
    a.label("L_fill")
    a(f"""s_mul_i32 s64, s5, {SN*3072}
    s_add_u32 s64, s64, {(3*SQ - 3*SN)*3072}
    s_mul_i32 s8, s5, {SM*3072}
    s_add_u32 s8, s8, {(3*SQ + 2*SN - 5*SM)*3072}
    s_movk_i32 s65, {SN}
    s_cmp_ge_u32 s5, 5
    s_cselect_b32 s64, s8, s64
    s_cselect_b32 s65, {SM}, s65
    s_cmp_eq_u32 s5, 7
    s_cselect_b32 s65, {SX}, s65
    s_mul_i32 s62, s9, 3072
    s_add_u32 s62, s62, s64
    s_lshl_b32 s74, s9, 5
    v_add_u32 v{vSC+1}, s74, v{vSC}
    s_add_u32 s74, s74, {12*NF*32}
    s_add_u32 s75, s74, 256
    s_mul_i32 s11, s9, {3072*NLK}""")
    stamp(0)
    issued = 0
    for k in range(NF):
        for j in range(3):
            if issued in SLOW: a(f"s_waitcnt vmcnt({SLOW[issued]})")
            elif issued >= PW: a(f"s_waitcnt vmcnt({PW-1})")
            if k < 6:
                r = slots[k] + 4*j
                a(f"buffer_load_dwordx4 v[{r}:{r+3}], v{vOFF}, s[44:47], s62 offen offset:{128*j} {KLD}")
            else:
                a(f"s_add_u32 m0, s11, {L_W + 3072*(k-6) + 896*j}")
                a(f"buffer_load_dwordx4 v{vOFF}, s[44:47], s62 offen offset:{128*j} {KLD} lds")
            issued += 1
        a(f"s_add_u32 s62, s62, {12*3072}")
    a.label("L_filled")
    a("v_mov_b32 v4, 0")
    stamp(1)
    lds_wait(L_FLAG, 3, "L_qready", 1)

    a.label("L_chain")
    a(f"""s_cmp_eq_u32 s3, 3
    s_cbranch_scc1 L_xwave
    s_setprio 2
    s_mul_i32 s8, s4, 768
    s_lshl_b32 s9, s3, 8
    s_add_u32 s8, s8, s9
    s_add_u32 s8, s8, {WS_GQ}
    s_add_u32 s60, s40, s8
    s_addc_u32 s61, s41, 0
    v_lshlrev_b32 v5, 2, v0
    v_lshl_add_u32 v5, s3, 7, v5
    v_mov_b32 v6, 0
    v_mov_b32 v7, 1
    s_waitcnt lgkmcnt(0)
    s_add_u32 s88, s6, {hex(TAGC)}""")
    def qreg(k):
        if k < 16: return 44 + k
        if k < 32: return 68 + k - 16
        if k < 40: return 8 + k - 32
        return 84 + k - 40
    a.label("L_qpoll")
    a(f"""s_load_dwordx16 s[44:59], s[60:61], 0 glc
    s_load_dwordx16 s[68:83], s[60:61], 64 glc
    s_load_dwordx8 s[8:15], s[60:61], 128 glc
    s_load_dwordx4 s[84:87], s[60:61], 160 glc
    s_waitcnt lgkmcnt(0)
    s_xor_b32 s89, s{qreg(3)}, s88""")
    for g in range(1, 11): a(f"s_xor_b32 s90, s{qreg(4*g+3)}, s88\ns_or_b32 s89, s89, s90")
    a(f"""s_cbranch_scc0 L_qgot
    s_add_u32 s67, s67, 1
    s_cmp_gt_u32 s67, {SPIN}
    s_cbranch_scc1 L_end
    s_sleep 2
    s_branch L_qpoll""")
    a.label("L_qgot")
    for i in range(32): a(f"v_writelane_b32 v4, s{qreg(4*(i//3) + i%3)}, {i}")
    a(f"""s_mov_b32 exec_hi, 0
    ds_write_b32 v5, v4 offset:{L_Q}
    s_mov_b64 exec, 1
    ds_add_u32 v6, v7 offset:{L_FLAG}
    s_mov_b64 exec, -1""")
    stamp(5, 0, 44)
    a("s_branch L_tail")

    a.label("L_xwave")
    XT = 48; XG = 88
    a(f"""s_cmp_lt_u32 s2, 216
    s_cbranch_scc1 L_tail
    s_sub_u32 s9, s2, 196""")
    a.label("L_xrest")
    a(f"""v_mul_u32_u24 v4, 7680, v2
    v_lshl_add_u32 v4, v3, 4, v4
    s_lshl_b32 s14, s9, 7
    s_add_u32 s52, s34, s14
    s_addc_u32 s53, s35, 0
    s_sub_u32 s54, {640*7680}, s14
    s_mov_b32 s10, 0
    s_mov_b32 s11, 0
    v_lshlrev_b32 v7, 1, v2
    v_mov_b32 v6, 0""")
    for i in range(8): a(f"v_mov_b32 v{XG+i}, 0")
    lds_wait(L_FLAG, 3, "L_xrloop", 4, vz=6)
    a.label("L_xrloop")
    for rb in range(10): a(f"global_load_ushort v{24+rb}, v7, s[32:33] offset:{16*rb}")
    for rb in range(10):
        a(f"buffer_load_dwordx4 v[{XT+4*rb}:{XT+4*rb+3}], v4, s[52:55], s10 offen {XLD}")
        a(f"s_add_u32 s10, s10, {8*7680}")
    a("s_waitcnt vmcnt(10)")
    for rb in range(10):
        x, t = 24+rb, 34+rb
        a(f"""v_lshlrev_b32 v{x}, 16, v{x}
        v_mul_f32 v{t}, s42, v{x}
        v_exp_f32 v{t}, -v{t}
        v_add_f32 v{t}, 1.0, v{t}
        v_rcp_f32 v{t}, v{t}
        v_mul_f32 v{x}, v{x}, v{t}""")
        rbf(x, x)
        a(f"v_lshrrev_b32 v{t}, 16, v{x}")
    a("s_waitcnt vmcnt(0)")
    tile_dots(XG, XT, 10, [24+rb for rb in range(10)], [34+rb for rb in range(10)])
    a(f"""v_add_u32 v7, 160, v7
    s_add_u32 s11, s11, 1
    s_cmp_lt_u32 s11, 8
    s_cbranch_scc1 L_xrloop""")
    tile_reduce8(XG, 's[12:13]')
    rbf(XG, XG)
    a(f"""s_lshl_b32 s9, s9, 9
    s_add_u32 s9, s9, {WS_GM}
    s_add_u32 s8, s6, {hex(TAGC)}
    v_lshl_add_u32 v5, v3, 3, v2
    v_lshl_add_u32 v5, v5, 3, s9
    v_mov_b32 v{XG+1}, s8
    global_store_dwordx2 v5, v[{XG}:{XG+1}], s[40:41] sc1""")
    stamp(7, 3, 44)
    a("s_branch L_tail")

    def read_q_init():
        a(f"""v_lshlrev_b32 v4, 4, v3
        ds_read_b128 v[{vQ}:{vQ+3}], v4 offset:{L_Q}
        ds_read_b128 v[{vQ+4}:{vQ+7}], v4 offset:{L_Q+128}
        ds_read_b128 v[{vQ+8}:{vQ+11}], v4 offset:{L_Q+256}
        v_mov_b32 v{vM}, 0xff7fffff
        v_mov_b32 v{vLS}, 0
        v_mov_b32 v{vU+4}, 0
        v_mov_b32 v{vU+5}, 1""")
        for i in range(24): a(f"v_mov_b32 v{vACC+i}, 0")
        a("s_waitcnt lgkmcnt(0)")

    vLT = 126 if not STAMP else 119
    def score(addr, off=0):
        t0, t1, t2 = vT[0], vT[1], vT[2]
        a(f"v_add_f32 v{t0}, v{t0}, v{t1}\nv_add_f32 v{t0}, v{t0}, v{t2}")
        red8('v_add_f32', t0)
        rbf(t0, t0)
        a(f"v_mul_f32 v{t0}, s43, v{t0}")
        rbf(t0, t0)
        a(f"v_min_u32 v{t0}, -2, v{t0}\nds_write_b32 v{addr}, v{t0} offset:{off}")
    def lticket(which):
        a(f"""s_mov_b64 exec, 1
        ds_add_rtn_u32 v{vLT}, v{vU+4}, v{vU+5} offset:{L_KF + 4*which}
        s_mov_b64 exec, -1""")
    def take(k, out):
        a(f"""s_waitcnt lgkmcnt(0)
        v_readfirstlane_b32 s8, v{vLT}
        s_cmp_ge_u32 s8, s65
        s_cbranch_scc1 {out}
        s_mul_i32 s62, s8, 3072
        s_add_u32 s62, s62, s64
        s_lshl_b32 s{74+k}, s8, 5""")
    def rest_of_buffer(first, extra):
        for k in range(first, 6):
            a(f"s_waitcnt vmcnt({3*(NF-1-k) + extra})")
            qk_dots(slots[k]); score(vSC+1, 384*k)
        if NLK:
            a(f"s_waitcnt vmcnt({extra})\nv_lshl_add_u32 v{vU}, v0, 4, s11")
            for k in range(NLK):
                for j in range(3): a(f"ds_read_b128 v[{vB[0]+12*k+4*j}:{vB[0]+12*k+4*j+3}], v{vU} offset:{L_W + 3072*k + 1024*j}")
            for k in range(NLK):
                a(f"s_waitcnt lgkmcnt({3*(NLK-1-k)})" if k == 0 else "s_waitcnt lgkmcnt(0)")
                qk_dots(vB[0]+12*k); score(vSC+1, 384*(6+k))
    a.label("L_qready")
    read_q_init()
    stamp(8)
    a(f"""s_cmp_ge_u32 s3, {4+NST}
    s_cbranch_scc1 L_catch2
    s_cmp_lt_u32 s5, 3
    s_cbranch_scc1 L_kgo""")
    for k in range(2):
        a(f"s_waitcnt vmcnt({3*(NF-1)})")
        qk_dots(slots[k])
        ld3(slots[k], 44, 62, KLD)
        if k == 0: a(f"s_add_u32 s62, s62, {NST*3072}")
        score(vSC+1, 384*k)
    rest_of_buffer(2, 6)
    stamp(9)
    a.label("L_kgo")
    lticket(0)
    a.label("L_kloop")
    for k in range(2):
        a(f"s_waitcnt vmcnt(3)\nv_add_u32 v{vSC+1}, s{74+k}, v{vSC}")
        qk_dots(slots[k])
        take(k, f"L_kend{k}")
        ld3(slots[k], 44, 62, KLD)
        lticket(0)
        score(vSC+1)
    a("s_branch L_kloop")
    def v_fill(k, i):
        a(f"""s_add_u32 s8, s3, {8*i - 4}
        s_mul_i32 s62, s8, 3072
        s_add_u32 s62, s62, s64
        s_lshl_b32 s{74+k}, s8, 5""")
        ld3(slots[k], 48, 62, VLD)
    for k in range(2):
        a.label(f"L_kend{k}")
        stamp(31)
        v_fill(k, 0)
        score(vSC+1)
        a(f"s_waitcnt vmcnt(3)\nv_add_u32 v{vSC+1}, s{75-k}, v{vSC}")
        qk_dots(slots[1-k])
        v_fill(1-k, 1)
        lticket(1)
        score(vSC+1)
        a(f"s_branch L_v{k}")
    slow = []
    def weigh(k, last=False):
        lab = a.newlabel('SC')
        a(f"v_add_u32 v{vSC+1}, s{74+k}, v{vSC}")
        a.label(lab)
        a(f"""ds_read_b32 v{vT[0]}, v{vSC+1}
        s_waitcnt lgkmcnt(0)
        v_cmp_eq_u32 vcc, -1, v{vT[0]}
        s_cbranch_vccnz {lab}_again""")
        slow.append(lab)
        softmax(last, True)
    for k in range(2):
        a.label(f"L_v{k}")
        weigh(k)
        a("s_waitcnt vmcnt(3)")
        pv(slots[k])
        take(k, f"L_vend{k}")
        ld3(slots[k], 48, 62, VLD)
        lticket(1)
    a("s_branch L_v0")
    def shared_first(none):
        a(f"""s_waitcnt lgkmcnt(0)
        s_add_u32 s8, s8, {NSTAT}
        s_cmp_ge_u32 s8, {NUNITS}
        s_cbranch_scc1 {none}
        s_mul_i32 s62, s8, 3072""")
    a.label("L_vend1")
    a("s_mov_b32 s8, 1\ns_atomic_add s8, s[60:61], 0 glc")
    shared_first("L_vnoneA")
    weigh(0)
    a("s_waitcnt vmcnt(0)")
    pv(vAK)
    ticket(); loadK(vAK); loadV(vAV)
    a("s_branch L_loop")
    a.label("L_vend0")
    a("s_mov_b32 s8, 1\ns_atomic_add s8, s[60:61], 0 glc")
    shared_first("L_vnoneB")
    ticket(); loadK(vAK)
    weigh(1)
    a("s_waitcnt vmcnt(4)")
    pv(vAV)
    loadV(vAV)
    a.label("L_loop")
    if JIT == 2: a("s_waitcnt vmcnt(5)\ns_mov_b32 s8, 1\ns_atomic_add s8, s[60:61], 0 glc")
    a("s_waitcnt vmcnt(3)")
    if JIT == 1: a("s_mov_b32 s8, 1\ns_atomic_add s8, s[60:61], 0 glc")
    if not JIT: a(f"v_readfirstlane_b32 s8, v{vTK}")
    qk_dots(vAK)
    if JIT: a("s_waitcnt lgkmcnt(0)")
    a(f"""s_add_u32 s8, s8, {NSTAT}
    s_cmp_ge_u32 s8, {NUNITS}
    s_cbranch_scc1 L_drain
    s_mul_i32 s62, s8, 3072""")
    if STAMP: a("s_memrealtime s[92:93]\ns_lshr_b32 s94, s8, 7\ns_add_u32 m0, s94, 32\ns_waitcnt lgkmcnt(0)\nv_writelane_b32 v126, s92, m0")
    ticket(True); loadK(vAK)
    softmax()
    a("s_waitcnt vmcnt(4)")
    pv(vAV)
    loadV(vAV)
    a("s_branch L_loop")

    a.label("L_drain")
    a("s_setprio 3")
    stamp(10)
    softmax(last=True)
    a.label("L_drain2")
    part_addr()
    a("s_waitcnt vmcnt(0)")
    pv(vAV)
    a.label("L_drain3")
    stamp(11)
    part_write()
    a("s_branch L_end")

    a.label("L_vnoneB")
    a("s_setprio 3")
    stamp(10)
    weigh(1, True)
    a("s_branch L_drain2")
    a.label("L_vnoneA")
    a("s_setprio 3")
    stamp(10)
    weigh(0, True)
    a("s_waitcnt vmcnt(0)")
    pv(vAK)
    part_addr()
    a("s_branch L_drain3")

    for lab in slow:
        a.label(lab + "_again")
        a(f"""s_add_u32 s67, s67, 1
        s_cmp_gt_u32 s67, {SPIN*8}
        s_cbranch_scc1 L_end
        s_branch {lab}""")

    a.label("L_catch2")
    rest_of_buffer(0, 0)
    a.label("L_retired")
    a(f"""v_mov_b32 v52, 0
    v_mov_b32 v53, 1
    s_cmp_eq_u32 s3, 15
    s_cbranch_scc1 L_fwave""")
    a(f"""s_sub_u32 s9, s3, 12
    s_lshl_b32 s8, s9, 8
    v_lshl_add_u32 v4, v0, 2, s8
    v_and_b32 v11, 7, v0
    v_lshlrev_b32 v11, 3, v11
    v_add_u32 v12, {L_PART}, v4
    s_lshl_b32 s8, s4, 3
    s_add_u32 s8, s8, s5
    s_lshl_b32 s8, s8, 10
    s_add_u32 s8, s8, {WS_G3}
    v_add_u32 v4, s8, v4""")
    lds_wait(L_FLAG+4, 1, "L_cnear", 4, vz=52)
    a.label("L_cnear")
    lds_wait(L_FLAG+4, NST, "L_cml", 0, vz=52)
    a.label("L_cml")
    a(f"""ds_read_b64 v[6:7], v11 offset:{L_ML}
    s_waitcnt lgkmcnt(0)
    v_mov_b32 v8, v6""")
    red8('v_max_f32', 8)
    a(f"""v_sub_f32 v6, v6, v8
    v_mul_f32 v6, s42, v6
    v_exp_f32 v6, v6
    v_mov_b32 v40, 0
    v_mov_b32 v41, 0
    v_mul_f32 v9, v7, v6
    s_setprio 3
    s_cmp_lg_u32 s9, 0
    s_cbranch_scc1 L_cwait""")
    red8('v_add_f32', 9)
    a(f"""v_min_u32 v8, -2, v8
    v_min_u32 v9, -2, v9
    s_mov_b64 exec, 1
    global_store_dwordx2 v4, v[8:9], s[40:41] offset:768 sc1
    s_mov_b64 exec, -1""")
    a.label("L_cwait")
    lds_wait(L_FLAG+8, NST, "L_cgo", 0, vz=52)
    a.label("L_cgo")
    for k in range(4): a(f"ds_read2st64_b32 v[{24+2*k}:{25+2*k}], v12 offset0:{6*k} offset1:{6*k+3}")
    for k in range(8):
        if k % 2 == 0: a(f"s_waitcnt lgkmcnt({3-k//2})")
        a(f"v_fmac_f32_dpp v{40+(k&1)}, v6, v{24+k} row_newbcast:{k} row_mask:0xf bank_mask:0xf")
    a(f"""v_add_f32 v40, v40, v41
    v_min_u32 v40, -2, v40
    global_store_dword v4, v40, s[40:41] sc1
    s_mov_b64 exec, 1
    ds_add_u32 v52, v53 offset:{L_FLAG+8}
    s_mov_b64 exec, -1""")
    stamp(12)
    a("s_branch L_end")

    def dma(n, srd, voff, sstep, lbase, pace=None):
        for t in range(n):
            v = voff[t] if isinstance(voff, list) else voff
            a(f"""s_mov_b32 s10, {t*sstep}
            s_add_u32 m0, s11, {lbase + 1024*t}
            buffer_load_dwordx4 v{v}, s[{srd}:{srd+3}], s10 offen {TLD} lds""")
            if pace is not None: a(f"s_waitcnt vmcnt({pace})")
    a.label("L_tail")
    a(f"""s_setprio 0
    v_lshrrev_b32 v2, 4, v0
    v_and_b32 v3, 15, v0
    v_lshrrev_b32 v10, 2, v3
    v_lshl_add_u32 v10, v2, 3, v10
    v_and_b32 v11, 3, v0
    v_mov_b32 v4, 0
    v_lshrrev_b32 v12, 2, v0
    v_and_b32 v13, 31, v0
    v_lshlrev_b32 v13, 2, v13
    s_mov_b32 s14, 0xffff0000
    s_mov_b32 s15, 0xffff0000
    s_mov_b32 s55, 0x20000
    s_mov_b32 s59, 0x20000""")
    if MS: a(f"s_sub_u32 s66, s2, {MB}\ns_cmp_lt_u32 s66, 48\ns_cbranch_scc1 L_notw")
    lds_wait(L_FLAG+4, 1, "L_near", 4)
    a.label("L_near")
    a(f"""s_cmp_lg_u32 s3, 0
    s_cbranch_scc1 L_rolewait
    s_and_b32 s9, s2, 7
    s_mul_i32 s8, s9, {CNT_STRIDE}
    s_add_u32 s8, s8, {WS_CNT + 32*CNT_STRIDE}
    s_add_u32 s60, s40, s8
    s_addc_u32 s61, s41, 0""")
    lds_wait(L_FLAG+4, RTRIG, "L_roleget", 0)
    a.label("L_roleget")
    a(f"""s_mov_b32 s8, 1
    s_atomic_add s8, s[60:61], 0 glc
    s_waitcnt lgkmcnt(0)
    s_lshl_b32 s8, s8, 3
    s_add_u32 s8, s8, s9
    s_add_u32 s8, s8, 1
    v_mov_b32 v5, s8
    ds_write_b32 v4, v5 offset:{L_ROLE}
    s_branch L_rolegot""")
    a.label("L_rolewait")
    lds_wait(L_ROLE, 1, "L_rolegot", 0)
    a.label("L_rolegot")
    if STAMP: a("v_writelane_b32 v126, s8, 26")
    if MS:
        if STAMP: a("s_add_u32 s9, s8, 48\nv_writelane_b32 v126, s9, 26")
        a("s_sub_u32 s64, s8, 1\ns_cmp_ge_u32 s64, 160\ns_cbranch_scc1 L_end")
    else:
        a(f"""s_sub_u32 s66, s8, 1
        s_cmp_lt_u32 s66, 48
        s_cbranch_scc1 L_notw
        s_sub_u32 s64, s66, 48
        s_cmp_ge_u32 s64, 160
        s_cbranch_scc1 L_end""")
    BF = 64
    a(f"""s_mul_i32 s65, s64, 205
    s_lshr_b32 s65, s65, 11
    s_mul_i32 s8, s65, 10
    s_sub_u32 s64, s64, s8
    s_lshl_b32 s9, s65, 2
    s_add_u32 s9, s9, s3
    s_mul_i32 s8, s9, {96*1280}
    s_lshl_b32 s10, s64, 7
    s_add_u32 s8, s8, s10
    s_add_u32 s52, s24, s8
    s_addc_u32 s53, s25, 0
    s_sub_u32 s54, {6144*1280}, s8
    v_lshrrev_b32 v14, 3, v0
    v_mul_u32_u24 v14, 1280, v14
    v_and_b32 v16, 7, v0
    v_lshl_add_u32 v14, v16, 4, v14
    s_mul_i32 s11, s3, 12288""")
    if RTRIG >= TRIG:
        dma(12, 52, 14, 8*1280, L_W)
        stamp(24)
    a(f"""v_lshlrev_b32 v15, 7, v10
    v_lshl_add_u32 v15, v11, 3, v15
    v_add_u32 v15, s11, v15
    s_lshr_b32 s9, s9, 1
    s_lshl_b32 s9, s9, 13
    s_add_u32 s9, s9, {WS_G3}
    v_lshl_add_u32 v16, v16, 10, s9
    s_and_b32 s8, s3, 1
    s_mul_i32 s8, s8, 384
    s_add_u32 s9, s9, s8
    v_lshlrev_b32 v17, 11, v2
    v_lshl_add_u32 v17, v3, 3, v17
    v_add_u32 v17, s9, v17
    s_mul_i32 s8, s3, 384
    v_and_b32 v19, 1, v2
    v_lshl_add_u32 v18, v3, 1, v19
    v_lshl_add_u32 v18, v18, 1, s8
    v_lshrrev_b32 v19, 5, v0
    v_lshl_add_u32 v12, v19, 7, v18
    v_lshl_add_u32 v19, v2, 4, s8
    v_lshlrev_b32 v13, 2, v0
    s_lshl_b32 s8, s3, 8
    v_add_u32 v20, s8, v13
    s_mul_i32 s8, s65, 2560
    s_lshl_b32 s10, s64, 8
    s_add_u32 s8, s8, s10
    s_add_u32 s8, s8, {WS_G4}
    v_add_u32 v21, s8, v13
    s_mov_b32 s12, 0
    s_mov_b32 s13, -1
    s_setprio 2""")
    def g3_loads():
        for t in range(3):
            for b in range(2):
                r = 112 + 4*t + 2*b
                a(f"global_load_dwordx2 v[{r}:{r+1}], v17, s[40:41] offset:{1024*b+128*t} sc1")
    if RTRIG < TRIG:
        lds_wait(L_FLAG+4, TRIG, "L_wgo", 0)
        a.label("L_wgo")
        dma(12, 52, 14, 8*1280, L_W)
        stamp(24)
    lab = a.newlabel('ML'); a.label(lab)
    a("global_load_dwordx2 v[6:7], v16, s[40:41] offset:768 sc1")
    g3_loads()
    a("""s_waitcnt vmcnt(0)
    v_max_u32 v8, v6, v7
    v_cmp_eq_u32 vcc, -1, v8""")
    spin_tail(lab)
    stamp(25)
    for ks in range(3):
        for nt in range(4):
            for hf in range(2):
                r = BF + 16*ks + 4*nt + 2*hf
                a(f"ds_read_b64_tr_b16 v[{r}:{r+1}], v15 offset:{L_W + 4096*ks + 512*hf + 32*nt}")
    a("v_mov_b32 v8, v6")
    red8('v_max_f32', 8)
    a(f"""v_sub_f32 v6, v6, v8
    v_mul_f32 v6, s42, v6
    v_exp_f32 v6, v6
    v_mul_f32 v7, v7, v6""")
    red8('v_add_f32', 7)
    a("v_rcp_f32 v7, v7\nv_mul_f32 v6, v6, v7")
    for r in range(4):
        a(f"v_mov_b32_dpp v8, v6 row_newbcast:{2*r} row_mask:{hex(1<<r)} bank_mask:0xf")
        a(f"v_mov_b32_dpp v22, v6 row_newbcast:{2*r+1} row_mask:{hex(1<<r)} bank_mask:0xf")
    a("s_mov_b32 s70, 0\ns_waitcnt lgkmcnt(0)\ns_branch L_g3chk")
    lab = a.newlabel('G3'); a.label(lab)
    a("s_cmp_lg_u32 s70, 0\ns_cbranch_scc1 L_g3ld\ns_mov_b32 s70, 1")
    lds_wait(L_FLAG+8, NST+3, "L_g3ld", 1)
    a.label("L_g3ld")
    stamp(30)
    a("s_mov_b64 exec, s[68:69]")
    g3_loads()
    a("s_mov_b64 exec, -1")
    a.label("L_g3chk")
    a("s_waitcnt vmcnt(0)")
    for t in range(3):
        a(f"v_pk_mul_f32 v[{48+2*t}:{49+2*t}], v[{112+4*t}:{113+4*t}], v[8:9] op_sel_hi:[1,0]")
    for t in range(3):
        a(f"v_pk_fma_f32 v[{48+2*t}:{49+2*t}], v[{114+4*t}:{115+4*t}], v[22:23], v[{48+2*t}:{49+2*t}] op_sel_hi:[1,0,1]")
    a("v_pk_add_f32 v[56:57], v[48:49], v[50:51]\nv_pk_add_f32 v[56:57], v[56:57], v[52:53]")
    nan_retry([56, 57], list(range(112, 124)), lab, 60, True)
    stamp(13)
    a("""v_mov_b32 v54, v50
    v_mov_b32 v55, v51
    v_permlane32_swap_b32 v48, v52
    v_permlane32_swap_b32 v49, v53
    v_permlane32_swap_b32 v50, v54
    v_permlane32_swap_b32 v51, v55
    v_pk_add_f32 v[48:49], v[48:49], v[52:53]
    v_pk_add_f32 v[50:51], v[50:51], v[54:55]""")
    rs_step(4, [(48, 49), (50, 51)])
    a(f"""v_cvt_pk_bf16_f32 v48, v48, v48
    v_cvt_pk_bf16_f32 v50, v50, v50
    ds_write_b16 v12, v48 offset:{L_O}
    ds_write_b16 v18, v50 offset:{L_O + 64}""")
    for ks in range(3): a(f"ds_read_b128 v[{24+4*ks}:{27+4*ks}], v19 offset:{L_O + 64*ks}")
    for ks in range(3):
        a(f"s_waitcnt lgkmcnt({2-ks})")
        for nt in range(4):
            c = '0' if ks == 0 else f"v[{40+4*nt}:{43+4*nt}]"
            a(f"v_mfma_f32_16x16x32_bf16 v[{40+4*nt}:{43+4*nt}], v[{24+4*ks}:{27+4*ks}], v[{BF+16*ks+4*nt}:{BF+16*ks+4*nt+3}], {c}")
    a(f"""v_cndmask_b32 v56, v40, v44, s[14:15]
    v_cndmask_b32 v57, v48, v52, s[14:15]
    v_cndmask_b32 v56, v56, v57, s[12:13]
    ds_write_b32 v20, v56 offset:{L_WP}
    s_waitcnt lgkmcnt(0)
    s_barrier
    s_cmp_lg_u32 s3, 0
    s_cbranch_scc1 L_end
    ds_read2st64_b32 v[24:25], v13 offset0:{L_WP//256} offset1:{L_WP//256+1}
    ds_read2st64_b32 v[26:27], v13 offset0:{L_WP//256+2} offset1:{L_WP//256+3}
    s_waitcnt lgkmcnt(1)
    v_add_f32 v24, v24, v25
    s_waitcnt lgkmcnt(0)
    v_add_f32 v26, v26, v27
    v_add_f32 v24, v24, v26
    v_min_u32 v24, -2, v24
    global_store_dword v21, v24, s[40:41] sc1""")
    stamp(14)
    a("s_branch L_end")

    a.label("L_notw")
    if MS and STAMP: a("s_add_u32 s9, s66, 1\nv_writelane_b32 v126, s9, 26")

    B1, B2 = 48, 88
    a(f"""s_mul_i32 s8, s3, {160*3072}
    s_lshl_b32 s9, s66, 6
    s_add_u32 s8, s8, s9
    s_add_u32 s52, s28, s8
    s_addc_u32 s53, s29, 0
    s_sub_u32 s54, {640*3072}, s8
    s_mul_i32 s8, s66, {32*1280}
    s_mul_i32 s9, s3, 320
    s_add_u32 s8, s8, s9
    s_add_u32 s56, s30, s8
    s_addc_u32 s57, s31, 0
    s_sub_u32 s58, {1536*1280}, s8
    v_mul_u32_u24 v14, 3072, v12
    v_lshl_add_u32 v14, v11, 4, v14
    s_mul_i32 s11, s3, 10240""")
    if not MS:
        dma(10, 52, 14, 16*3072, L_W)
        stamp(24)
    a(f"""    v_lshlrev_b32 v15, 6, v10
    v_lshl_add_u32 v15, v11, 3, v15
    v_add_u32 v15, s11, v15
    v_mul_u32_u24 v16, 320, v10
    v_lshl_add_u32 v16, v11, 3, v16
    v_add_u32 v16, s11, v16
    v_add_u32 v16, {L_W2}, v16""")
    W2A = 30
    for t in range(10):
        a(f"""v_add_u32 v5, {64*t}, v0
        v_mul_u32_u24 v6, 3277, v5
        v_lshrrev_b32 v6, 16, v6
        v_mul_u32_u24 v7, 960, v6
        v_lshl_add_u32 v{W2A+t}, v5, 4, v7""")
    dma(10, 56, [W2A+t for t in range(10)], 0, L_W2, 1 if MS else None)
    a(f"""v_and_b32 v5, 1, v2
    v_lshl_add_u32 v5, v3, 1, v5
    v_lshrrev_b32 v6, 5, v0
    v_lshl_add_u32 v6, v6, 6, v5
    v_add_u32 v7, 128, v5
    s_mul_i32 s8, s3, 160
    v_lshl_add_u32 v17, v6, 1, s9
    v_lshl_add_u32 v18, v7, 1, s9
    v_add_u32 v6, s8, v6
    v_add_u32 v7, s8, v7
    v_lshlrev_b32 v19, 2, v6
    v_lshlrev_b32 v20, 2, v7
    v_lshlrev_b32 v8, 2, v0
    global_load_ushort v40, v17, s[16:17]
    global_load_ushort v41, v17, s[16:17] offset:64
    global_load_ushort v42, v18, s[16:17]""")
    for t in range(5): a(f"global_load_dword v{24+t}, v8, s[16:17] offset:{256*t}")
    a(f"""v_lshlrev_b32 v6, 3, v6
    v_lshlrev_b32 v7, 3, v7
    v_add_u32 v6, {WS_GR}, v6
    v_add_u32 v7, {WS_GR}, v7
    v_add_u32 v8, 5120, v6
    v_add_u32 v9, 5120, v7
    v_add_u32 v21, 10240, v6
    v_add_u32 v22, 10240, v7
    s_waitcnt lgkmcnt(0)
    s_add_u32 s6, s6, {hex(TAGC)}""")
    if MS:
        lds_wait(L_KF+4, 140, "L_mmid", 16)
        a.label("L_mmid")
    lab = a.newlabel('GR'); a.label(lab)
    GRB = 88
    srcs = [(6, 0), (6, 256), (7, 0), (8, 0), (8, 256), (9, 0), (21, 0), (21, 256), (22, 0)]
    for i, (v, o) in enumerate(srcs): a(f"global_load_dwordx2 v[{GRB+2*i}:{GRB+2*i+1}], v{v}, s[40:41] offset:{o} sc1")
    a(f"s_waitcnt vmcnt(0)\nv_xor_b32 v5, s6, v{GRB+1}")
    for i in range(1, 9): a(f"v_bitop3_b32 v5, v5, v{GRB+2*i+1}, s6 bitop3:0xf6")
    a("v_cmp_ne_u32 vcc, 0, v5")
    spin_tail(lab, 32 if MS else 4)
    for j in range(3):
        a(f"""v_lshlrev_b32 v{40+j}, 16, v{40+j}
        v_mov_b32 v{43+j}, v{GRB+2*j}
        v_mov_b32 v{120+j}, v{GRB+6+2*j}
        v_add_f32 v{123+j}, 1.0, v{GRB+12+2*j}""")
        rbf(123+j, 123+j)
    a("v_mov_b32 v46, 0")
    for t in range(5): a(f"v_lshlrev_b32 v5, 16, v{24+t}\nv_and_b32 v6, s7, v{24+t}\nv_add_f32 v46, v46, v5\nv_add_f32 v46, v46, v6")
    red16('v_add_f32', [46]); red_hi('v_add_f32', [46], [5])
    a(f"""v_mul_f32 v46, {hex(f2u(1/640))}, v46
    v_mul_u32_u24 v21, 10240, v2
    v_lshl_add_u32 v21, v3, 3, v21
    s_mul_i32 s8, s3, 640
    s_add_u32 s9, s8, {WS_G4}
    v_add_u32 v21, s9, v21
    s_mul_i32 s9, s66, 2560
    s_add_u32 s8, s8, s9
    s_add_u32 s8, s8, {WS_G5}
    v_lshl_add_u32 v22, v0, 2, s8
    s_mul_i32 s8, s3, 320
    v_lshl_add_u32 v23, v2, 4, s8
    s_lshl_b32 s8, s3, 7
    v_add_u32 v47, s8, v13
    s_lshl_b32 s8, s3, 3
    v_mov_b32 v9, s8
    s_lshl_b32 s8, s3, 6
    v_lshrrev_b32 v12, 1, v13
    v_add_u32 v12, s8, v12
    s_add_u32 s8, s8, {L_U}
    v_lshl_add_u32 v5, v2, 4, s8
    v_lshrrev_b32 v6, 2, v3
    v_mov_b32 v7, {L_ZERO}""")
    for g in range(4):
        a(f"v_cmp_eq_u32 vcc, {g}, v6\nv_cndmask_b32 v{[2,3,10,11][g]}, v7, v5, vcc")
    if MS == 2:
        dma(10, 52, 14, 16*3072, L_W, 1)
    if MS == 1:
        lds_wait(L_FLAG+4, 1, "L_mnear", 4)
        a.label("L_mnear")
        lds_wait(L_FLAG+4, NST, "L_mgo", 0)
        a.label("L_mgo")
        dma(10, 52, 14, 16*3072, L_W)
        stamp(24)
    a("s_setprio 2\ns_waitcnt vmcnt(0)")
    for ks in range(5):
        for nt in range(2):
            for hf in range(2):
                r = B1 + 8*ks + 4*nt + 2*hf
                a(f"ds_read_b64_tr_b16 v[{r}:{r+1}], v15 offset:{L_W + 2048*ks + 256*hf + 32*nt}")
    B2R = [B2 + 4*nt for nt in range(8)] + [24, 28]
    a("s_waitcnt vmcnt(0)")
    stamp(25)
    XR = [B2 + 2*i for i in range(16)] + [32, 34, 36, 38]
    raw = [r+k for r in XR for k in range(2)]
    a("v_add_u32 v14, 5120, v21")
    for r in raw: a(f"v_mov_b32 v{r}, -1")
    lab = a.newlabel('G4')
    a("s_mov_b64 s[68:69], -1")
    if IND:
        a(f"""v_mul_u32_u24 v6, 52, v0
        v_lshrrev_b32 v6, 8, v6
        v_mul_u32_u24 v7, {2560 - 640}, v6
        v_lshl_add_u32 v7, v0, 7, v7
        s_mul_i32 s8, s3, 640
        s_add_u32 s8, s8, {WS_G4 + 124}
        v_add_u32 v7, s8, v7
        v_add_u32 v8, {8*2560}, v7""")
        lds_wait(L_FLAG+8, NST+3, "L_ind0", 1)
        a.label("L_ind0")
        a("s_mov_b32 exec_hi, 0xff")
        a.label("L_ind")
        a(f"""global_load_dword v5, v7, s[40:41] sc1
        global_load_dword v6, v8, s[40:41] sc1
        s_add_u32 s67, s67, 1
        s_cmp_gt_u32 s67, {SPIN}
        s_cbranch_scc1 L_end
        s_waitcnt vmcnt(0)
        v_max_u32 v5, v5, v6
        v_cmp_eq_u32 vcc, -1, v5
        s_cbranch_vccnz L_ind""")
    else:
        lds_wait(L_FLAG+8, NST+3, lab, 1)
    a.label(lab)
    stamp(30)
    a("s_mov_b64 exec, s[68:69]")
    for t in range(5):
        for b in range(4):
            r = XR[4*t+b]
            a(f"global_load_dwordx2 v[{r}:{r+1}], v{21 if b < 2 else 14}, s[40:41] offset:{2560*(b&1)+128*t} sc1")
    a(f"s_mov_b64 exec, -1\ns_waitcnt vmcnt({20*(PD-1)})")
    YR = [24, 28, 26, 30, 4]
    for t in range(5): a(f"v_pk_add_f32 v[{YR[t]}:{YR[t]+1}], v[{XR[4*t]}:{XR[4*t]+1}], v[{XR[4*t+1]}:{XR[4*t+1]+1}]")
    for t in range(5): a(f"v_pk_add_f32 v[{YR[t]}:{YR[t]+1}], v[{YR[t]}:{YR[t]+1}], v[{XR[4*t+2]}:{XR[4*t+2]+1}]")
    for t in range(5): a(f"v_pk_add_f32 v[{YR[t]}:{YR[t]+1}], v[{YR[t]}:{YR[t]+1}], v[{XR[4*t+3]}:{XR[4*t+3]+1}]")
    a("""v_pk_add_f32 v[6:7], v[24:25], v[28:29]
    v_pk_add_f32 v[126:127], v[26:27], v[30:31]
    v_pk_add_f32 v[6:7], v[6:7], v[4:5]
    v_pk_add_f32 v[6:7], v[6:7], v[126:127]""".replace("v[126:127]", "v[44:45]" if False else "v[122:123]") if False else """v_pk_add_f32 v[6:7], v[24:25], v[28:29]
    v_pk_add_f32 v[6:7], v[6:7], v[26:27]
    v_pk_add_f32 v[6:7], v[6:7], v[30:31]
    v_pk_add_f32 v[6:7], v[6:7], v[4:5]""")
    nan_retry([6, 7], raw, lab, 8, True)
    stamp(15)
    a("v_mov_b32 v6, v4\nv_mov_b32 v7, v5")
    for x, y in ((24, 26), (28, 30), (4, 6)):
        a(f"v_permlane32_swap_b32 v{x}, v{y}\nv_permlane32_swap_b32 v{x+1}, v{y+1}")
    for x, y in ((24, 26), (28, 30), (4, 6)): a(f"v_pk_add_f32 v[{x}:{x+1}], v[{x}:{x+1}], v[{y}:{y+1}]")
    rs_step(4, [(24, 25), (28, 29), (4, 5)])
    C3 = [24, 28, 4]
    for c in C3: rbf(c, c)
    for j, c in enumerate(C3): a(f"v_mul_f32 v{c}, v{43+j}, v{c}")
    for c in C3: rbf(c, c)
    for j, c in enumerate(C3): a(f"v_add_f32 v{c}, v{40+j}, v{c}")
    for c in C3: rbf(c, c)
    a(f"""v_sub_f32 v25, v24, v46
    v_sub_f32 v29, v28, v46
    v_sub_f32 v5, v4, v46
    ds_write_b32 v19, v24 offset:{L_X2}
    ds_write_b32 v19, v28 offset:{L_X2+128}
    ds_write_b32 v20, v4 offset:{L_X2}
    v_mul_f32 v26, 0.5, v5
    v_add_f32 v30, v25, v29
    v_mul_f32 v31, v25, v25
    v_add_f32 v30, v30, v26
    v_fmac_f32 v31, v29, v29
    v_fmac_f32 v31, v26, v5""")
    red16('v_add_f32', [30, 31]); red_hi('v_add_f32', [30, 31], [6, 7])
    a(f"""ds_write_b64 v9, v[30:31] offset:{L_ST}
    v_mov_b32 v8, 0
    s_waitcnt vmcnt(0) lgkmcnt(0)""")
    if MST: stamp(48)
    a(f"""
    s_barrier
    ds_read_b128 v[32:35], v8 offset:{L_ST}
    ds_read_b128 v[36:39], v8 offset:{L_ST+16}""")
    if MST: stamp(49)
    a(f"""""")
    a(f"""s_waitcnt lgkmcnt(0)
    v_pk_add_f32 v[32:33], v[32:33], v[34:35]
    v_pk_add_f32 v[36:37], v[36:37], v[38:39]
    v_pk_add_f32 v[32:33], v[32:33], v[36:37]
    v_mul_f32 v32, {hex(f2u(1/640))}, v32
    v_mul_f32 v33, {hex(f2u(1/640))}, v33
    v_fma_f32 v33, -v32, v32, v33
    v_add_f32 v32, v32, v46
    v_max_f32 v33, 0, v33""")
    rbf(32, 32); rbf(33, 33)
    a(f"v_add_f32 v33, {hex(f2u(1e-5))}, v33")
    for c in C3: a(f"v_sub_f32 v{c}, v{c}, v32")
    rbf(33, 33)
    a("v_sqrt_f32 v33, v33")
    for c in C3: rbf(c, c)
    rbf(33, 33)
    a("v_rcp_f32 v33, v33")
    for c in C3: a(f"v_mul_f32 v{c}, v{c}, v33")
    for c in C3: rbf(c, c)
    for j, c in enumerate(C3): a(f"v_mul_f32 v{c}, v{c}, v{123+j}")
    for c in C3: rbf(c, c)
    for j, c in enumerate(C3): a(f"v_add_f32 v{c}, v{c}, v{120+j}")
    for c in C3: a(f"v_cvt_pk_bf16_f32 v{c}, v{c}, v{c}")
    a(f"""ds_write_b16 v17, v24 offset:{L_O}
    ds_write_b16 v17, v28 offset:{L_O+64}
    ds_write_b16 v18, v4 offset:{L_O}""")
    if MST: stamp(50)
    a(f"""""")
    A1 = [24, 28, 32, 36, 40]
    for ks in range(5): a(f"ds_read_b128 v[{A1[ks]}:{A1[ks]+3}], v23 offset:{L_O + 64*ks}")
    D1 = [4, 120]
    for ks in range(5):
        a(f"s_waitcnt lgkmcnt({4-ks})")
        for nt in range(2):
            c = '0' if ks == 0 else f"v[{D1[nt]}:{D1[nt]+3}]"
            a(f"v_mfma_f32_16x16x32_bf16 v[{D1[nt]}:{D1[nt]+3}], v[{A1[ks]}:{A1[ks]+3}], v[{B1+8*ks+4*nt}:{B1+8*ks+4*nt+3}], {c}")
    for nt in range(10):
        for hf in range(2):
            r = B2R[nt] + 2*hf
            a(f"ds_read_b64_tr_b16 v[{r}:{r+1}], v16 offset:{1280*hf + 32*nt}")
    a(f"""v_cndmask_b32 v8, v4, v120, s[14:15]
    ds_write_b32 v47, v8 offset:{L_WP}
    s_waitcnt lgkmcnt(0)""")
    if MST: stamp(51)
    a(f"""
    s_barrier
    ds_read_b32 v32, v13 offset:{L_WP}
    ds_read_b32 v33, v13 offset:{L_WP+128}
    ds_read_b32 v34, v13 offset:{L_WP+256}
    ds_read_b32 v35, v13 offset:{L_WP+384}""")
    if MST: stamp(52)
    a(f"""
    s_waitcnt lgkmcnt(2)
    v_add_f32 v32, v32, v33
    s_waitcnt lgkmcnt(0)
    v_add_f32 v34, v34, v35
    v_add_f32 v32, v32, v34""")
    rbf(32, 32)
    a(f"""v_mul_f32 v33, s42, v32
    v_exp_f32 v33, -v33
    v_add_f32 v33, 1.0, v33
    v_rcp_f32 v33, v33
    v_mul_f32 v32, v32, v33
    v_cvt_pk_bf16_f32 v32, v32, v32
    ds_write_b16 v12, v32 offset:{L_U}""")
    if MST: stamp(53)
    a(f"""""")
    A2 = [48, 52, 56, 60]
    for g in range(4): a(f"ds_read_b128 v[{A2[g]}:{A2[g]+3}], v{[2,3,10,11][g]}")
    D2 = [64, 68, 72]
    for g in range(4):
        a(f"s_waitcnt lgkmcnt({3-g})")
        for j in range(3):
            nt = 4*j + g
            if nt >= 10: continue
            c = '0' if g == 0 else f"v[{D2[j]}:{D2[j]+3}]"
            a(f"v_mfma_f32_16x16x32_bf16 v[{D2[j]}:{D2[j]+3}], v[{A2[g]}:{A2[g]+3}], v[{B2R[nt]}:{B2R[nt]+3}], {c}")
    a(f"""v_min_u32 v76, -2, v72
    s_mov_b32 exec_hi, 0
    global_store_dword v22, v76, s[40:41] offset:512 sc1
    s_mov_b64 exec, -1
    v_min_u32 v77, -2, v64
    v_min_u32 v78, -2, v68
    global_store_dword v22, v77, s[40:41] sc1
    global_store_dword v22, v78, s[40:41] offset:256 sc1""")
    stamp(16)
    a("s_branch L_end")

    a.label("L_fwave")
    if MS: a(f"s_sub_u32 s8, s2, {MB-1}")
    else:
        lds_wait(L_ROLE, 1, "L_frole", 4, vz=52)
        a.label("L_frole")
    a(f"""s_sub_u32 s66, s8, 1
    s_cmp_ge_u32 s66, 40
    s_cbranch_scc1 L_end
    v_and_b32 v4, 3, v0
    v_lshrrev_b32 v5, 4, v0
    v_lshl_add_u32 v6, v4, 2, v5
    s_lshl_b32 s8, s66, 4
    v_add_u32 v6, s8, v6
    v_lshlrev_b32 v7, 3, v6
    v_add_u32 v7, {WS_GR + 1920*8}, v7
    s_waitcnt lgkmcnt(0)
    s_add_u32 s6, s6, {hex(TAGC)}""")
    if MS:
        lds_wait(L_KF+4, 140, "L_fmid", 16, vz=52)
        a.label("L_fmid")
    lab = a.newlabel('GF'); a.label(lab)
    a(f"""global_load_dwordx2 v[50:51], v7, s[40:41] sc1
    s_waitcnt vmcnt(0)
    v_cmp_ne_u32 vcc, s6, v51""")
    spin_tail(lab, 32 if MS else 4)
    a(f"""v_lshlrev_b32 v8, 2, v6
    v_lshrrev_b32 v7, 2, v0
    v_mul_u32_u24 v7, 2560, v7
    v_lshl_add_u32 v7, v4, 4, v7
    s_lshl_b32 s8, s66, 6
    s_add_u32 s8, s8, {WS_G5}
    v_add_u32 v7, s8, v7
    v_add_u32 v52, {16*2560}, v7
    v_add_u32 v53, {32*2560}, v7
    v_lshlrev_b32 v6, 1, v6
    v_mov_b32 v4, {WS_EPOCH}
    v_mov_b32 v5, s6""")
    for r in range(24, 36): a(f"v_mov_b32 v{r}, -1")
    a(f"""s_barrier
    ds_read_b32 v48, v8 offset:{L_X2}
    s_waitcnt lgkmcnt(0)
    s_barrier""")
    a("s_mov_b64 s[68:69], -1")
    lab = a.newlabel('G5'); a.label(lab)
    stamp(30)
    a(f"""s_mov_b64 exec, s[68:69]
    global_load_dwordx4 v[24:27], v7, s[40:41] sc1
    global_load_dwordx4 v[28:31], v52, s[40:41] sc1
    global_load_dwordx4 v[32:35], v53, s[40:41] sc1
    s_mov_b64 exec, -1
    s_waitcnt vmcnt({3*(PDF-1)})
    v_pk_add_f32 v[36:37], v[24:25], v[28:29]
    v_pk_add_f32 v[38:39], v[26:27], v[30:31]
    v_pk_add_f32 v[36:37], v[36:37], v[32:33]
    v_pk_add_f32 v[38:39], v[38:39], v[34:35]
    v_pk_add_f32 v[42:43], v[36:37], v[38:39]""")
    nan_retry([42, 43], list(range(24, 36)), lab, 40, True)
    stamp(17)
    rs_step(5, [(36, 38), (37, 39)])
    rs_step(4, [(36, 37)])
    dpp('v_add_f32', 36, 36, 36, 'row_ror:8'); dpp('v_add_f32', 36, 36, 36, 'row_ror:4')
    rbf(36, 36)
    a("v_mul_f32 v36, v50, v36"); rbf(36, 36)
    a(f"""v_add_f32 v36, v48, v36
    v_cvt_pk_bf16_f32 v36, v36, v36
    s_mov_b32 exec_lo, 0x000f000f
    s_mov_b32 exec_hi, 0x000f000f
    global_store_short v6, v36, s[36:37] {P.get('ost', '')}
    s_cmp_lg_u32 s66, 0
    s_cbranch_scc1 L_fend
    s_mov_b64 exec, 1
    global_store_dword v4, v5, s[40:41] sc1""")
    if P.get('dbgt'):
        a("""s_memrealtime s[92:93]
        s_waitcnt lgkmcnt(0)
        s_sub_u32 s92, s92, s98
        v_mov_b32 v4, 0
        v_mov_b32 v8, s92
        v_mov_b32 v9, s2
        global_store_dwordx2 v4, v[8:9], s[38:39]""")
    a.label("L_fend")
    a("s_mov_b64 exec, -1")
    stamp(18)
    a.label("L_end")
    if STAMP:
        a(f"""s_mov_b64 exec, -1
        v_writelane_b32 v126, s67, 27
        v_writelane_b32 v126, s63, 28
        v_writelane_b32 v126, s95, 29
        s_lshl_b32 s8, s2, 4
        s_add_u32 s8, s8, s3
        s_lshl_b32 s8, s8, 8
        s_add_u32 s8, s8, {WS_ST}
        v_lshl_add_u32 v4, v0, 2, s8
        global_store_dword v4, v126, s[40:41]""")
    a.label("L_exit")
    a("s_endpgm")

    body = a.text()
    out = HEADER
    out += f"; @launch grid=(256,1,1) block=(1024,1,1) lds={LDS_BYTES}\n"
    out += '.amdgcn_target "amdgcn-amd-amdhsa--gfx950"\n.text\n'
    out += f".globl {KN}\n.p2align 8\n.type {KN},@function\n{KN}:\n" + body
    out += f""".section .rodata,"a"
.p2align 6
.amdhsa_kernel {KN}
  .amdhsa_next_free_vgpr 128
  .amdhsa_next_free_sgpr 102
  .amdhsa_accum_offset 128
  .amdhsa_group_segment_fixed_size 0
  .amdhsa_kernarg_size 104
  .amdhsa_user_sgpr_count 2
  .amdhsa_user_sgpr_kernarg_segment_ptr 1
  .amdhsa_system_sgpr_workgroup_id_x 1
  .amdhsa_float_denorm_mode_32 3
.end_amdhsa_kernel
"""
    return out

if __name__ == '__main__':
    import json
    P = json.loads(sys.argv[2]) if len(sys.argv) > 2 else {}
    open(sys.argv[1], 'w').write(gen(P))
```

```python
import sys, math
from asmlib import Asm, f2u

KN = "adaLN_cond__gqa_block_cached__dense_activation_silu__decode_kernel"
HEADER = open('adaLN_cond__gqa_block_cached__dense_activation_silu__decode.s.ref').read().split('; Override')[0]

WS_EPOCH = 0
WS_CNT = 0x1000; CNT_STRIDE = 1152
WS_BOARD = 0xC000
WS_GM = 0x10000
WS_GR = WS_GM + 1280*8
WS_G1 = 0x20000
WS_GQ = 0x30000
WS_G3 = 0x100000
WS_G5 = WS_G3 + 0x40000
WS_G4 = WS_G5 + 48*2560
WS_ST = 0x200000
TAGC = 0x9E3779B9
NUNITS = 2048
HEADB = 16384*384
L_Q = 0
L_FLAG = 512
L_ZERO = 528
L_ROLE = L_FLAG + 12
L_KF = 544
L_ML = 576
L_ST = 704
L_O = 1024
L_U = 2560
L_WP = 3072
L_X2 = 4096
L_PART = 6912
L_TP = 6912
L_W = 16384
L_W2 = L_W + 73728
L_SC = L_W2 + 40960
LDS_BYTES = L_SC + 8192

def gen(P):
    a = Asm()
    NST = 8
    PW = P.get('pw', 3)
    SLOW = {int(k): v for k, v in P.get('slow', {1: 0, 3: 1}).items()}
    STAMP = P.get('stamp', 0); MST = P.get('mst', 0)
    SPIN = P.get('spin', 400000)
    NLK = P.get('nlk', 2)
    NF = 6 + NLK
    SN = P.get('sn', 228); SQ = P.get('sq', 196)
    SX = P.get('sx', SN - 12)
    SM = P.get('sm', SN)
    NSTAT = 3*SQ + 2*SN + 2*SM + SX
    MB = P.get('mb', 160)
    assert NSTAT <= NUNITS and max(SN, SQ) <= 256 and SN >= 12*NF + 32 and SQ >= 32
    MS = P.get('ms', 0)
    PD = P.get('pd', 1); PDF = P.get('pdf', 2)
    TRIG = RTRIG = MTRIG = NST; W2E = 1; IND = 0; HN = 0; JIT = 0
    LD = P.get('ld', 'nt'); TLD = P.get('tld', LD); XLD = P.get('xld', LD); KLD = P.get('kld', LD); VLD = P.get('vld', LD)

    vL, vOFF = 0, 1
    vT = list(range(2, 10))
    vQ = 10
    vM, vLS = 22, 23
    vACC = 24
    vAK, vAV = 48, 60
    vB = [72, 96]
    vU = 120
    vTK = 127
    vSC = 8

    def stamp(k, cond_wave=None, r=None):
        if not STAMP: return
        a(f"""s_memrealtime s[92:93]
        s_waitcnt lgkmcnt(0)
        v_writelane_b32 v126, s92, {k}""")

    def rbf(d, s):
        a(f"v_cvt_pk_bf16_f32 v{d}, v{s}, v{s}\nv_and_b32 v{d}, s7, v{d}")

    def dpp(op, d, s0, s1, ctl):
        a(f"{op}_dpp v{d}, v{s0}, v{s1} {ctl} row_mask:0xf bank_mask:0xf")

    def red8(op, x):
        dpp(op, x, x, x, "quad_perm:[1,0,3,2]"); dpp(op, x, x, x, "quad_perm:[2,3,0,1]"); dpp(op, x, x, x, "row_half_mirror")
    def red16(op, xs):
        for ctl in ("quad_perm:[1,0,3,2]", "quad_perm:[2,3,0,1]", "row_half_mirror", "row_mirror"):
            for x in xs: dpp(op, x, x, x, ctl)
    def red_hi(op, xs, ts, bits=(4, 5)):
        for b in bits:
            sw = 'v_permlane16_swap_b32' if b == 4 else 'v_permlane32_swap_b32'
            for x, t in zip(xs, ts): a(f"v_mov_b32 v{t}, v{x}")
            for x, t in zip(xs, ts): a(f"{sw} v{x}, v{t}")
            for x, t in zip(xs, ts): a(f"{op} v{x}, v{x}, v{t}")
    def rs_step(bit, pairs):
        sw = 'v_permlane16_swap_b32' if bit == 4 else 'v_permlane32_swap_b32'
        for x, y in pairs: a(f"{sw} v{x}, v{y}")
        for x, y in pairs: a(f"v_add_f32 v{x}, v{x}, v{y}")

    def spin_tail(lab_retry, slp=1):
        done = a.newlabel('GD')
        a(f"""s_cbranch_vccz {done}
        s_add_u32 s67, s67, 1
        s_cmp_gt_u32 s67, {SPIN}
        s_cbranch_scc1 L_end
        s_sleep {slp}
        s_branch {lab_retry}""")
        a.label(done)

    def tile_dots(acc, tile, nrb, chi, clo):
        for rb in range(nrb):
            for d in range(4):
                a(f"v_dot2c_f32_bf16 v{acc+2*d}, v{tile+4*rb+d}, v{clo[rb]}")
                a(f"v_dot2c_f32_bf16 v{acc+2*d+1}, v{tile+4*rb+d}, v{chi[rb]}")
    def tile_reduce8(acc, sel):
        rs_step(5, [(acc+i, acc+4+i) for i in range(4)])
        rs_step(4, [(acc+i, acc+2+i) for i in range(2)])
        dpp('v_add_f32', acc, acc, acc, 'row_ror:8'); dpp('v_add_f32', acc+1, acc+1, acc+1, 'row_ror:8')
        a(f"v_cndmask_b32 v{acc}, v{acc}, v{acc+1}, {sel}")
    def tile_reduce4(acc):
        rs_step(5, [(acc+i, acc+4+i) for i in range(4)])
        rs_step(4, [(acc+i, acc+2+i) for i in range(2)])
        for ctl in ('row_ror:8', 'row_ror:4'):
            dpp('v_add_f32', acc, acc, acc, ctl); dpp('v_add_f32', acc+1, acc+1, acc+1, ctl)

    def loadK(r):
        for j in range(3): a(f"buffer_load_dwordx4 v[{r+4*j}:{r+4*j+3}], v{vOFF}, s[44:47], s62 offen offset:{128*j} {KLD}")
    def loadV(r):
        for j in range(3): a(f"buffer_load_dwordx4 v[{r+4*j}:{r+4*j+3}], v{vOFF}, s[48:51], s62 offen offset:{128*j} {VLD}")
    def ticket(prog=False):
        if JIT: return
        a("s_mov_b64 exec, 1")
        if prog and HN: a(f"ds_max_u32 v{vU+4}, v{vTK} offset:{L_PROG}")
        a(f"""global_atomic_add v{vTK}, v{vU+4}, v{vU+5}, s[60:61] sc0
        s_mov_b64 exec, -1""")
    def qk_dots(K):
        t0, t1, t2 = vT[0], vT[1], vT[2]
        a(f"v_mov_b32 v{t0}, 0\nv_mov_b32 v{t1}, 0\nv_mov_b32 v{t2}, 0")
        for r in range(4):
            for j in range(3):
                a(f"v_dot2c_f32_bf16 v{vT[j]}, v{K+4*j+r}, v{vQ+4*j+r}")
    def softmax(last=False, scored=False):
        t0, t1, t2, t3, p, al = vT[0], vT[1], vT[2], vT[3], vT[4], vU+2
        if not scored:
            a(f"v_add_f32 v{t0}, v{t0}, v{t1}\nv_add_f32 v{t0}, v{t0}, v{t2}")
            red8('v_add_f32', t0)
            rbf(t0, t0)
            a(f"v_mul_f32 v{t0}, s43, v{t0}")
            rbf(t0, t0)
        a(f"v_max_f32 v{t1}, v{vM}, v{t0}")
        if last:
            dpp('v_max_f32', t1, t1, t1, 'row_ror:8')
            red_hi('v_max_f32', [t1], [t2])
        a(f"""v_sub_f32 v{t2}, v{vM}, v{t1}
        v_sub_f32 v{t3}, v{t0}, v{t1}
        v_mul_f32 v{t2}, s42, v{t2}
        v_mul_f32 v{t3}, s42, v{t3}
        v_exp_f32 v{al}, v{t2}
        v_exp_f32 v{p}, v{t3}
        v_mov_b32 v{vM}, v{t1}
        v_fma_f32 v{vLS}, v{vLS}, v{al}, v{p}""")
        if last:
            dpp('v_add_f32', vLS, vLS, vLS, 'row_ror:8')
            red_hi('v_add_f32', [vLS], [t2])
            a(f"""s_lshl_b32 s8, s3, 3
            v_mov_b32 v{t2}, s8
            v_mov_b32 v{t0}, 0
            v_mov_b32 v{t1}, 1
            s_mov_b64 exec, 1
            ds_write_b64 v{t2}, v[{vM}:{vLS}] offset:{L_ML-32}
            ds_add_u32 v{t0}, v{t1} offset:{L_FLAG+4}
            s_mov_b64 exec, -1""")
        for i in range(12):
            r = vACC + 2*i
            a(f"v_pk_mul_f32 v[{r}:{r+1}], v[{r}:{r+1}], v[{al}:{al+1}] op_sel_hi:[1,0]")
    def lds_wait(off, val, lab, slp, cmp='ge', vz=4, vd=5):
        top = a.newlabel('LW'); a.label(top)
        a(f"""ds_read_b32 v{vd}, v{vz} offset:{off}
        s_waitcnt lgkmcnt(0)
        v_readfirstlane_b32 s8, v{vd}
        s_cmp_ge_u32 s8, {val}
        s_cbranch_scc1 {lab}
        s_add_u32 s67, s67, 1
        s_cmp_gt_u32 s67, {SPIN*8}
        s_cbranch_scc1 L_end""")
        if slp: a(f"s_sleep {slp}")
        a(f"s_branch {top}")
    def part_addr():
        a(f"""v_lshrrev_b32 v52, 3, v0
        v_and_b32 v53, 7, v0
        v_mul_u32_u24 v52, 3, v52
        s_mul_i32 s8, s3, 768
        s_add_u32 s8, s8, {L_PART-4*768}
        v_lshl_add_u32 v53, v53, 5, s8
        s_mov_b32 s12, 0xff00ff00
        s_mov_b32 s13, 0xff00ff00""")
        for i in range(3):
            a(f"""v_add_u32 v54, {i}, v52
            v_lshrrev_b32 v55, 3, v54
            v_and_b32 v54, 7, v54
            v_lshl_add_u32 v55, v55, 8, v53
            v_lshl_add_u32 v{48+i}, v54, 2, v55""")
        a("v_mov_b32 v52, 0\nv_mov_b32 v53, 1")
    def part_write():
        for i in range(12): a(f"v_permlane32_swap_b32 v{vACC+i}, v{vACC+12+i}")
        for i in range(0, 12, 2): a(f"v_pk_add_f32 v[{vACC+i}:{vACC+i+1}], v[{vACC+i}:{vACC+i+1}], v[{vACC+12+i}:{vACC+13+i}]")
        for i in range(6): a(f"v_permlane16_swap_b32 v{vACC+i}, v{vACC+6+i}")
        for i in range(0, 6, 2): a(f"v_pk_add_f32 v[{vACC+i}:{vACC+i+1}], v[{vACC+i}:{vACC+i+1}], v[{vACC+6+i}:{vACC+7+i}]")
        for i in range(6): dpp('v_add_f32', vACC+i, vACC+i, vACC+i, 'row_ror:8')
        for i in range(3): a(f"v_cndmask_b32 v{vACC+i}, v{vACC+i}, v{vACC+3+i}, s[12:13]")
        for i in range(3): a(f"ds_write_b32 v{48+i}, v{vACC+i}")
        a(f"""s_mov_b64 exec, 1
        ds_add_u32 v52, v53 offset:{L_FLAG+8}
        s_mov_b64 exec, -1""")
    def nan_retry(regs, raw, lab, tmp, masked=False):
        done = a.newlabel('NR')
        if len(regs) == 1: a(f"v_cmp_u_f32 vcc, v{regs[0]}, v{regs[0]}")
        elif len(regs) == 2: a(f"v_cmp_u_f32 vcc, v{regs[0]}, v{regs[1]}")
        else: a(f"v_add_f32 v{tmp}, v{regs[0]}, v{regs[1]}\nv_cmp_u_f32 vcc, v{tmp}, v{regs[2]}")
        a(f"s_cbranch_vccz {done}")
        if masked: a("s_mov_b64 s[68:69], vcc")
        a(f"""s_add_u32 s67, s67, 1
        s_and_b32 s8, s67, 15
        s_cbranch_scc1 {lab}
        s_cmp_gt_u32 s67, {SPIN}
        s_cbranch_scc1 L_end
        s_cmp_eq_u32 s63, 1
        s_cbranch_scc1 {done}""")
        a(f"v_mov_b32 v{tmp}, v{raw[0]}")
        for i in range(1, len(raw), 2):
            if i+1 < len(raw): a(f"v_max3_u32 v{tmp}, v{tmp}, v{raw[i]}, v{raw[i+1]}")
            else: a(f"v_max_u32 v{tmp}, v{tmp}, v{raw[i]}")
        a(f"""v_cmp_eq_u32 vcc, -1, v{tmp}
        s_cbranch_vccnz {lab}
        s_mov_b32 s63, 1
        s_branch {lab}""")
        a.label(done)
    def pv(V):
        p = vT[4]
        for i in range(12):
            t = vU + 2*(i & 1)
            r = vACC + 2*i
            a(f"""v_lshlrev_b32 v{t}, 16, v{V+i}
            v_and_b32 v{t+1}, s7, v{V+i}
            v_pk_fma_f32 v[{r}:{r+1}], v[{t}:{t+1}], v[{p}:{p+1}], v[{r}:{r+1}] op_sel_hi:[1,0,1]""")

    if STAMP: a("s_memrealtime s[98:99]\nv_mov_b32 v126, 0\ns_mov_b32 s95, 0")
    if P.get('dbgt'): a("s_memrealtime s[98:99]")
    a(f"""s_cmp_ge_u32 s2, 256
    s_cbranch_scc1 L_exit
    s_load_dwordx16 s[16:31], s[0:1], 0
    s_load_dwordx8 s[32:39], s[0:1], 64
    s_load_dwordx2 s[40:41], s[0:1], 96
    v_lshrrev_b32 v1, 6, v0
    v_readfirstlane_b32 s3, v1
    v_and_b32 v0, 63, v0""")
    def code_touch(first, n, sd):
        lab = a.newlabel('PC')
        a("s_getpc_b64 s[70:71]")
        a.label(lab)
        a(f"""s_sub_u32 s70, s70, {lab}-{first}
        s_subb_u32 s71, s71, 0
        s_mul_i32 s72, s{sd}, {128*n}
        s_min_u32 s72, s72, L_exit-{first}-{128*(n-1)}
        s_add_u32 s70, s70, s72
        s_addc_u32 s71, s71, 0""")
        for i in range(n): a(f"s_load_dword s72, s[70:71], {128*i}")
    if P.get('pf', 0):
        a(f"s_cmp_ge_u32 s2, {P.get('pfwg', 64)}\ns_cbranch_scc1 L_nopf")
        code_touch(KN, P['pf'], 3)
        a.label("L_nopf")
    a(f"""s_lshr_b32 s4, s2, 3
    s_lshl_b32 s5, s2, 2
    s_add_u32 s4, s4, s5
    s_and_b32 s4, s4, 31
    s_lshr_b32 s5, s2, 5
    s_mov_b32 s7, 0xffff0000
    s_mov_b32 s42, {hex(f2u(math.log2(math.e)))}
    s_mov_b32 s43, {hex(f2u(192 ** -0.5))}
    s_mov_b32 s67, 0
    s_mov_b32 s63, 0
    v_lshrrev_b32 v2, 3, v0
    v_and_b32 v3, 7, v0
    v_mul_u32_u24 v1, 384, v2
    v_lshl_add_u32 v1, v3, 4, v1
    s_mul_i32 s8, s4, {HEADB}
    s_mov_b32 s46, {HEADB}
    s_mov_b32 s47, 0x20000
    s_mov_b32 s50, {HEADB}
    s_mov_b32 s51, 0x20000
    s_mov_b32 s55, 0x20000
    s_mov_b32 s59, 0x20000
    s_mul_i32 s9, s4, {CNT_STRIDE}
    s_add_u32 s9, s9, {WS_CNT}
    v_mov_b32 v4, 0
    v_mov_b32 v5, 0
    v_mov_b32 v6, 0
    v_mov_b32 v7, 0
    ds_write_b128 v4, v[4:7] offset:{L_FLAG}
    ds_write_b128 v4, v[4:7] offset:{L_ZERO}
    s_cmp_lt_u32 s5, 3
    s_cselect_b32 s10, 16, {12*NF + 16}
    v_mov_b32 v8, s10
    v_mov_b32 v9, 16
    ds_write_b64 v4, v[8:9] offset:{L_KF}
    v_mov_b32 v10, -1
    v_mov_b32 v11, -1
    v_lshlrev_b32 v12, 3, v0
    v_lshl_add_u32 v12, s3, 9, v12
    v_add_u32 v12, {L_SC}, v12
    ds_write_b64 v12, v[10:11]
    s_waitcnt lgkmcnt(0)
    s_barrier""")
    if STAMP: a("v_writelane_b32 v126, s98, 22")
    stamp(23)
    a(f"""s_add_u32 s44, s18, s8
    s_addc_u32 s45, s19, 0
    s_add_u32 s48, s20, s8
    s_addc_u32 s49, s21, 0
    s_add_u32 s60, s40, s9
    s_addc_u32 s61, s41, 0
    s_load_dword s6, s[40:41], {WS_EPOCH}
    s_mov_b32 s12, 0xff00ff00
    s_mov_b32 s13, 0xff00ff00
    s_cmp_lt_u32 s5, 3
    s_cbranch_scc1 L_qtile
    s_lshr_b32 s9, s2, 3
    s_and_b32 s8, s9, 3
    s_cmp_eq_u32 s8, 3
    s_cbranch_scc1 L_roles
    s_sub_u32 s9, s5, 3
    s_mul_i32 s9, s9, 3
    s_add_u32 s9, s9, s8
    s_cmp_ge_u32 s9, 10
    s_cbranch_scc1 L_roles""")
    TILE = 48; CH = 24; CL = 30; TA = 40
    def tile_loads(stride, n=5):
        a(f"""s_mul_i32 s10, s3, {8*n*stride}
        v_mul_u32_u24 v4, {stride}, v2
        v_lshl_add_u32 v4, v3, 4, v4""")
        for t in range(n):
            a(f"buffer_load_dwordx4 v[{TILE+4*t}:{TILE+4*t+3}], v4, s[52:55], s10 offen {LD}")
            if t < n-1: a(f"s_add_u32 s10, s10, {8*stride}")
    def tile_finish(n=5, nwv=16, join=None):
        tile_dots(TA, TILE, n, [CH+t for t in range(n)], [CL+t for t in range(n)])
        tile_reduce8(TA, 's[12:13]')
        a(f"""ds_write_b32 v5, v{TA} offset:{L_TP}""")
        stamp(20)
        if join: a.label(join)
        a(f"""s_waitcnt vmcnt(0) lgkmcnt(0)
        s_barrier""")
        stamp(21)
        a(f"""s_cmp_lg_u32 s3, 0
        s_cbranch_scc1 L_tilebar
        v_lshlrev_b32 v5, 2, v0
        v_add_u32 v5, {L_TP}, v5""")
        for k in range(nwv//2): a(f"ds_read2st64_b32 v[{24+2*k}:{25+2*k}], v5 offset0:{2*k} offset1:{2*k+1}")
        for k in range(nwv//2):
            a(f"s_waitcnt lgkmcnt({nwv//2-1-k})")
            a(f"v_add_f32 v{24+2*k}, v{24+2*k}, v{25+2*k}")
            if k & 1: a(f"v_add_f32 v{22+2*k}, v{22+2*k}, v{24+2*k}")
        tops = [24+4*k for k in range((nwv//2+1)//2)]
        while len(tops) > 1:
            nxt = []
            for i in range(0, len(tops)-1, 2):
                a(f"v_add_f32 v{tops[i]}, v{tops[i]}, v{tops[i+1]}"); nxt.append(tops[i])
            if len(tops) & 1: nxt.append(tops[-1])
            tops = nxt
    def tile_ldsaddr():
        a(f"""v_lshl_add_u32 v5, v3, 3, v2
        s_lshl_b32 s8, s3, 8
        v_lshl_add_u32 v5, v5, 2, s8""")
        for i in range(8): a(f"v_mov_b32 v{TA+i}, 0")
    a.label("L_modtile")
    a(f"""s_lshl_b32 s9, s9, 3
    s_and_b32 s8, s2, 7
    s_add_u32 s9, s9, s8
    s_cmp_ge_u32 s3, 10
    s_cbranch_scc1 L_poison
    s_lshr_b32 s11, s9, 2
    s_and_b32 s15, s9, 3
    s_lshl_b32 s14, s11, 7
    s_mul_i32 s8, s15, {160*7680}
    s_add_u32 s14, s14, s8
    s_add_u32 s52, s34, s14
    s_addc_u32 s53, s35, 0
    s_sub_u32 s54, {640*7680}, s14
    s_mul_i32 s14, s15, 320
    s_lshl_b32 s8, s3, 5
    s_add_u32 s14, s14, s8
    v_lshl_add_u32 v7, v2, 1, s14""")
    for t in range(2): a(f"global_load_ushort v{CH+t}, v7, s[32:33] offset:{16*t}")
    tile_loads(7680, 2)
    tile_ldsaddr()
    a(f"""s_mul_i32 s14, s15, 10240
    s_lshl_b32 s8, s11, 9
    s_add_u32 s14, s14, s8
    s_add_u32 s14, s14, {WS_G1}
    v_lshl_add_u32 v6, v0, 3, s14
    s_waitcnt vmcnt(2)""")
    for t in range(2):
        x, u = CH+t, CL+t
        a(f"""v_lshlrev_b32 v{x}, 16, v{x}
        v_mul_f32 v{u}, s42, v{x}
        v_exp_f32 v{u}, -v{u}
        v_add_f32 v{u}, 1.0, v{u}
        v_rcp_f32 v{u}, v{u}
        v_mul_f32 v{x}, v{x}, v{u}""")
        rbf(x, x)
        a(f"v_lshrrev_b32 v{u}, 16, v{x}")
    a("s_waitcnt vmcnt(0)")
    stamp(19)
    tile_finish(2, 10, "L_modjoin")
    a(f"""s_add_u32 s8, s6, {hex(TAGC)}
    v_mov_b32 v25, s8
    global_store_dwordx2 v6, v[24:25], s[40:41] sc1""")
    stamp(6)
    a("s_branch L_tilebar")
    a.label("L_poison")
    a(f"""s_mul_i32 s14, s9, 6
    s_add_u32 s14, s14, s3
    s_lshl_b32 s14, s14, 10
    s_add_u32 s14, s14, {WS_G3 - 10*1024}
    v_lshl_add_u32 v6, v0, 4, s14
    v_mov_b32 v88, -1
    v_mov_b32 v89, -1
    v_mov_b32 v90, -1
    v_mov_b32 v91, -1
    global_store_dwordx4 v6, v[88:91], s[40:41] sc1
    s_cmp_lg_u32 s3, 15
    s_cbranch_scc1 L_modjoin
    s_cmp_lg_u32 s9, 40
    s_cbranch_scc1 L_noboard
    v_lshlrev_b32 v6, 8, v0
    v_add_u32 v6, {WS_BOARD}, v6
    v_mov_b32 v8, 0
    global_store_dword v6, v8, s[40:41] sc1""")
    a.label("L_noboard")
    a(f"""s_cmp_ge_u32 s9, 40
    s_cbranch_scc1 L_modjoin
    s_mul_i32 s14, s9, {CNT_STRIDE}
    s_add_u32 s14, s14, {WS_CNT}
    v_mov_b32 v6, s14
    v_mov_b32 v8, 0
    s_mov_b64 exec, 1
    global_store_dword v6, v8, s[40:41] sc1
    s_mov_b64 exec, -1
    s_branch L_modjoin""")
    a.label("L_qtile")
    a(f"""s_mul_i32 s8, s4, 384
    s_lshl_b32 s9, s5, 7
    s_add_u32 s8, s8, s9
    s_add_u32 s52, s22, s8
    s_addc_u32 s53, s23, 0
    s_sub_u32 s54, {640*12288}, s8
    v_lshlrev_b32 v5, 2, v0
    s_mul_i32 s14, s3, 40
    v_add_u32 v8, s14, v3
    v_lshlrev_b32 v7, 1, v8""")
    for t in range(5): a(f"global_load_dword v{70+t}, v5, s[16:17] offset:{256*t}")
    for t in range(5): a(f"global_load_ushort v{CL+t}, v7, s[16:17] offset:{16*t}")
    tile_loads(12288)
    a("s_barrier")
    a(f"""v_lshlrev_b32 v8, 3, v8
    v_and_b32 v9, 3, v2
    v_mul_u32_u24 v9, 10240, v9
    v_add_u32 v8, v8, v9
    v_lshrrev_b32 v9, 5, v0
    v_mul_u32_u24 v9, 5120, v9
    v_add_u32 v8, v8, v9
    v_add_u32 v8, {WS_G1}, v8
    v_lshlrev_b32 v9, 2, v2""")
    tile_ldsaddr()
    a(f"""v_lshrrev_b32 v10, 1, v0
    v_mul_u32_u24 v11, 43, v10
    v_lshrrev_b32 v11, 7, v11
    v_add_u32 v11, v11, v10
    v_lshlrev_b32 v11, 2, v11
    v_lshlrev_b32 v10, 4, v10
    v_add_u32 v10, 12, v10
    v_and_b32 v12, 1, v0
    v_cmp_eq_u32 s[14:15], 1, v12
    s_mul_i32 s8, s4, 768
    s_lshl_b32 s9, s5, 8
    s_add_u32 s8, s8, s9
    s_add_u32 s8, s8, {WS_GQ}
    v_cndmask_b32 v10, v11, v10, s[14:15]
    v_add_u32 v10, s8, v10
    s_waitcnt vmcnt(5)""")
    for t in range(5):
        a(f"v_lshlrev_b32 v{76+2*t}, 16, v{70+t}\nv_and_b32 v{77+2*t}, s7, v{70+t}")
    a("v_add_f32 v70, v76, v77")
    for i in range(2, 10): a(f"v_add_f32 v70, v70, v{76+i}")
    red16('v_add_f32', [70]); red_hi('v_add_f32', [70], [71])
    a(f"v_mul_f32 v70, {hex(f2u(1/640))}, v70")
    a("v_mov_b32 v72, 0")
    for i in range(10): a(f"v_sub_f32 v{76+i}, v{76+i}, v70\nv_fmac_f32 v72, v{76+i}, v{76+i}")
    red16('v_add_f32', [72]); red_hi('v_add_f32', [72], [71])
    a(f"v_mul_f32 v72, {hex(f2u(1/640))}, v72")
    rbf(70, 70); rbf(72, 72)
    a(f"v_add_f32 v72, {hex(f2u(1e-5))}, v72")
    rbf(72, 72)
    a("v_sqrt_f32 v72, v72")
    rbf(72, 72)
    a("v_rcp_f32 v72, v72")
    for t in range(5):
        r = CL+t
        a(f"v_lshlrev_b32 v{r}, 16, v{r}\nv_sub_f32 v{r}, v{r}, v70")
        rbf(r, r)
        a(f"v_mul_f32 v{r}, v{r}, v72")
        rbf(r, r)
    a(f"s_waitcnt lgkmcnt(0)\ns_add_u32 s11, s6, {hex(TAGC)}")
    stamp(2, 0, 108)
    GG = 88
    lab = a.newlabel('GM'); a.label(lab)
    for t in range(5):
        a(f"global_load_dwordx2 v[{GG+2*t}:{GG+2*t+1}], v8, s[40:41] offset:{64*t} sc1")
    a("s_waitcnt vmcnt(0)")
    a(f"v_xor_b32 v70, s11, v{GG+1}")
    for k in range(1, 5): a(f"v_bitop3_b32 v70, v70, v{GG+2*k+1}, s11 bitop3:0xf6")
    a("v_cmp_ne_u32 vcc, 0, v70")
    spin_tail(lab, P.get('gmslp', 2))
    stamp(3)
    xs = [GG+2*t for t in range(5)]; ys = [GG+2*t+1 for t in range(5)]
    for x in xs: dpp('v_add_f32', x, x, x, 'row_ror:8')
    red_hi('v_add_f32', xs, ys, bits=(4,))
    for x in xs: rbf(x, x)
    for x, y in zip(xs, ys): a(f"v_mov_b32 v{y}, v{x}")
    for x, y in zip(xs, ys): a(f"v_permlane32_swap_b32 v{x}, v{y}")
    for y in ys: a(f"v_add_f32 v{y}, 1.0, v{y}")
    for y in ys: rbf(y, y)
    for t in range(5): a(f"v_mul_f32 v{ys[t]}, v{CL+t}, v{ys[t]}")
    for y in ys: rbf(y, y)
    for x, y in zip(xs, ys): a(f"v_add_f32 v{y}, v{y}, v{x}")
    for y in ys: a(f"v_cvt_pk_bf16_f32 v{y}, v{y}, 0")
    for t in range(5): a(f"ds_bpermute_b32 v{CL+t}, v9, v{ys[t]}")
    for t in range(5): a(f"s_waitcnt lgkmcnt({4-t})\nv_lshlrev_b32 v{CH+t}, 16, v{CL+t}")
    tile_finish()
    a(f"""v_mov_b32_dpp v25, v24 quad_perm:[1,0,3,2] row_mask:0xf bank_mask:0xf
    v_mov_b32 v26, s11
    v_cvt_pk_bf16_f32 v24, v24, v25
    v_cndmask_b32 v24, v24, v26, s[14:15]
    s_mov_b32 exec_lo, 0x557fffff
    s_mov_b32 exec_hi, 0x55555555
    global_store_dword v10, v24, s[40:41] sc1
    s_mov_b64 exec, -1""")
    stamp(4, 0, 108)
    a.label("L_tilebar")
    a("s_barrier")
    a.label("L_roles")
    a(f"""s_cmp_lt_u32 s3, 4
    s_cbranch_scc1 L_chain""")
    slots = [vAK, vAV, vB[0], vB[0]+12, vB[1], vB[1]+12]
    def ld3(r, srd, soff, pol):
        for j in range(3): a(f"buffer_load_dwordx4 v[{r+4*j}:{r+4*j+3}], v{vOFF}, s[{srd}:{srd+3}], s{soff} offen offset:{128*j} {pol}")
    a(f"""s_sub_u32 s9, s3, 4
    v_lshlrev_b32 v{vSC}, 2, v2
    v_add_u32 v{vSC}, {L_SC}, v{vSC}
    s_cmp_ge_u32 s5, 3
    s_cbranch_scc1 L_fill
    s_cmp_ge_u32 s3, {4+NST}
    s_cbranch_scc1 L_retired
    s_mul_i32 s64, s5, {SQ*3072}
    s_mov_b32 s65, {SQ}
    s_mul_i32 s62, s9, 3072
    s_add_u32 s62, s62, s64
    s_lshl_b32 s74, s9, 5
    s_add_u32 s75, s74, 256""")
    ld3(vAK, 44, 62, KLD)
    a(f"s_add_u32 s62, s62, {NST*3072}")
    ld3(vAV, 44, 62, KLD)
    a("s_branch L_filled")
    a.label("L_fill")
    a(f"""s_mul_i32 s64, s5, {SN*3072}
    s_add_u32 s64, s64, {(3*SQ - 3*SN)*3072}
    s_mul_i32 s8, s5, {SM*3072}
    s_add_u32 s8, s8, {(3*SQ + 2*SN - 5*SM)*3072}
    s_movk_i32 s65, {SN}
    s_cmp_ge_u32 s5, 5
    s_cselect_b32 s64, s8, s64
    s_cselect_b32 s65, {SM}, s65
    s_cmp_eq_u32 s5, 7
    s_cselect_b32 s65, {SX}, s65
    s_mul_i32 s62, s9, 3072
    s_add_u32 s62, s62, s64
    s_lshl_b32 s74, s9, 5
    v_add_u32 v{vSC+1}, s74, v{vSC}
    s_add_u32 s74, s74, {12*NF*32}
    s_add_u32 s75, s74, 256
    s_mul_i32 s11, s9, {3072*NLK}""")
    stamp(0)
    issued = 0
    for k in range(NF):
        for j in range(3):
            if issued in SLOW: a(f"s_waitcnt vmcnt({SLOW[issued]})")
            elif issued >= PW: a(f"s_waitcnt vmcnt({PW-1})")
            if k < 6:
                r = slots[k] + 4*j
                a(f"buffer_load_dwordx4 v[{r}:{r+3}], v{vOFF}, s[44:47], s62 offen offset:{128*j} {KLD}")
            else:
                a(f"s_add_u32 m0, s11, {L_W + 3072*(k-6) + 896*j}")
                a(f"buffer_load_dwordx4 v{vOFF}, s[44:47], s62 offen offset:{128*j} {KLD} lds")
            issued += 1
        a(f"s_add_u32 s62, s62, {12*3072}")
    a.label("L_filled")
    a("v_mov_b32 v4, 0")
    stamp(1)
    lds_wait(L_FLAG, 3, "L_qready", 1)

    a.label("L_chain")
    a(f"""s_cmp_eq_u32 s3, 3
    s_cbranch_scc1 L_xwave
    s_setprio 2
    s_mul_i32 s8, s4, 768
    s_lshl_b32 s9, s3, 8
    s_add_u32 s8, s8, s9
    s_add_u32 s8, s8, {WS_GQ}
    s_add_u32 s60, s40, s8
    s_addc_u32 s61, s41, 0
    v_lshlrev_b32 v5, 2, v0
    v_lshl_add_u32 v5, s3, 7, v5
    v_mov_b32 v6, 0
    v_mov_b32 v7, 1
    s_waitcnt lgkmcnt(0)
    s_add_u32 s88, s6, {hex(TAGC)}""")
    def qreg(k):
        if k < 16: return 44 + k
        if k < 32: return 68 + k - 16
        if k < 40: return 8 + k - 32
        return 84 + k - 40
    a.label("L_qpoll")
    a(f"""s_load_dwordx16 s[44:59], s[60:61], 0 glc
    s_load_dwordx16 s[68:83], s[60:61], 64 glc
    s_load_dwordx8 s[8:15], s[60:61], 128 glc
    s_load_dwordx4 s[84:87], s[60:61], 160 glc
    s_waitcnt lgkmcnt(0)
    s_xor_b32 s89, s{qreg(3)}, s88""")
    for g in range(1, 11): a(f"s_xor_b32 s90, s{qreg(4*g+3)}, s88\ns_or_b32 s89, s89, s90")
    a(f"""s_cbranch_scc0 L_qgot
    s_add_u32 s67, s67, 1
    s_cmp_gt_u32 s67, {SPIN}
    s_cbranch_scc1 L_end
    s_sleep 2
    s_branch L_qpoll""")
    a.label("L_qgot")
    for i in range(32): a(f"v_writelane_b32 v4, s{qreg(4*(i//3) + i%3)}, {i}")
    a(f"""s_mov_b32 exec_hi, 0
    ds_write_b32 v5, v4 offset:{L_Q}
    s_mov_b64 exec, 1
    ds_add_u32 v6, v7 offset:{L_FLAG}
    s_mov_b64 exec, -1""")
    stamp(5, 0, 44)
    a("s_branch L_tail")

    a.label("L_xwave")
    XT = 48; XG = 88
    a(f"""s_cmp_lt_u32 s2, 216
    s_cbranch_scc1 L_tail
    s_sub_u32 s9, s2, 196""")
    a.label("L_xrest")
    a(f"""v_mul_u32_u24 v4, 7680, v2
    v_lshl_add_u32 v4, v3, 4, v4
    s_lshl_b32 s14, s9, 7
    s_add_u32 s52, s34, s14
    s_addc_u32 s53, s35, 0
    s_sub_u32 s54, {640*7680}, s14
    s_mov_b32 s10, 0
    s_mov_b32 s11, 0
    v_lshlrev_b32 v7, 1, v2
    v_mov_b32 v6, 0""")
    for i in range(8): a(f"v_mov_b32 v{XG+i}, 0")
    lds_wait(L_FLAG, 3, "L_xrloop", 4, vz=6)
    a.label("L_xrloop")
    for rb in range(10): a(f"global_load_ushort v{24+rb}, v7, s[32:33] offset:{16*rb}")
    for rb in range(10):
        a(f"buffer_load_dwordx4 v[{XT+4*rb}:{XT+4*rb+3}], v4, s[52:55], s10 offen {XLD}")
        a(f"s_add_u32 s10, s10, {8*7680}")
    a("s_waitcnt vmcnt(10)")
    for rb in range(10):
        x, t = 24+rb, 34+rb
        a(f"""v_lshlrev_b32 v{x}, 16, v{x}
        v_mul_f32 v{t}, s42, v{x}
        v_exp_f32 v{t}, -v{t}
        v_add_f32 v{t}, 1.0, v{t}
        v_rcp_f32 v{t}, v{t}
        v_mul_f32 v{x}, v{x}, v{t}""")
        rbf(x, x)
        a(f"v_lshrrev_b32 v{t}, 16, v{x}")
    a("s_waitcnt vmcnt(0)")
    tile_dots(XG, XT, 10, [24+rb for rb in range(10)], [34+rb for rb in range(10)])
    a(f"""v_add_u32 v7, 160, v7
    s_add_u32 s11, s11, 1
    s_cmp_lt_u32 s11, 8
    s_cbranch_scc1 L_xrloop""")
    tile_reduce8(XG, 's[12:13]')
    rbf(XG, XG)
    a(f"""s_lshl_b32 s9, s9, 9
    s_add_u32 s9, s9, {WS_GM}
    s_add_u32 s8, s6, {hex(TAGC)}
    v_lshl_add_u32 v5, v3, 3, v2
    v_lshl_add_u32 v5, v5, 3, s9
    v_mov_b32 v{XG+1}, s8
    global_store_dwordx2 v5, v[{XG}:{XG+1}], s[40:41] sc1""")
    stamp(7, 3, 44)
    a("s_branch L_tail")

    def read_q_init():
        a(f"""v_lshlrev_b32 v4, 4, v3
        ds_read_b128 v[{vQ}:{vQ+3}], v4 offset:{L_Q}
        ds_read_b128 v[{vQ+4}:{vQ+7}], v4 offset:{L_Q+128}
        ds_read_b128 v[{vQ+8}:{vQ+11}], v4 offset:{L_Q+256}
        v_mov_b32 v{vM}, 0xff7fffff
        v_mov_b32 v{vLS}, 0
        v_mov_b32 v{vU+4}, 0
        v_mov_b32 v{vU+5}, 1""")
        for i in range(24): a(f"v_mov_b32 v{vACC+i}, 0")
        a("s_waitcnt lgkmcnt(0)")

    vLT = 126 if not STAMP else 119
    def score(addr, off=0):
        t0, t1, t2 = vT[0], vT[1], vT[2]
        a(f"v_add_f32 v{t0}, v{t0}, v{t1}\nv_add_f32 v{t0}, v{t0}, v{t2}")
        red8('v_add_f32', t0)
        rbf(t0, t0)
        a(f"v_mul_f32 v{t0}, s43, v{t0}")
        rbf(t0, t0)
        a(f"v_min_u32 v{t0}, -2, v{t0}\nds_write_b32 v{addr}, v{t0} offset:{off}")
    def lticket(which):
        a(f"""s_mov_b64 exec, 1
        ds_add_rtn_u32 v{vLT}, v{vU+4}, v{vU+5} offset:{L_KF + 4*which}
        s_mov_b64 exec, -1""")
    def take(k, out):
        a(f"""s_waitcnt lgkmcnt(0)
        v_readfirstlane_b32 s8, v{vLT}
        s_cmp_ge_u32 s8, s65
        s_cbranch_scc1 {out}
        s_mul_i32 s62, s8, 3072
        s_add_u32 s62, s62, s64
        s_lshl_b32 s{74+k}, s8, 5""")
    def rest_of_buffer(first, extra):
        for k in range(first, 6):
            a(f"s_waitcnt vmcnt({3*(NF-1-k) + extra})")
            qk_dots(slots[k]); score(vSC+1, 384*k)
        if NLK:
            a(f"s_waitcnt vmcnt({extra})\nv_lshl_add_u32 v{vU}, v0, 4, s11")
            for k in range(NLK):
                for j in range(3): a(f"ds_read_b128 v[{vB[0]+12*k+4*j}:{vB[0]+12*k+4*j+3}], v{vU} offset:{L_W + 3072*k + 1024*j}")
            for k in range(NLK):
                a(f"s_waitcnt lgkmcnt({3*(NLK-1-k)})" if k == 0 else "s_waitcnt lgkmcnt(0)")
                qk_dots(vB[0]+12*k); score(vSC+1, 384*(6+k))
    a.label("L_qready")
    read_q_init()
    stamp(8)
    a(f"""s_cmp_ge_u32 s3, {4+NST}
    s_cbranch_scc1 L_catch2
    s_cmp_lt_u32 s5, 3
    s_cbranch_scc1 L_kgo""")
    for k in range(2):
        a(f"s_waitcnt vmcnt({3*(NF-1)})")
        qk_dots(slots[k])
        ld3(slots[k], 44, 62, KLD)
        if k == 0: a(f"s_add_u32 s62, s62, {NST*3072}")
        score(vSC+1, 384*k)
    rest_of_buffer(2, 6)
    stamp(9)
    a.label("L_kgo")
    lticket(0)
    a.label("L_kloop")
    for k in range(2):
        a(f"s_waitcnt vmcnt(3)\nv_add_u32 v{vSC+1}, s{74+k}, v{vSC}")
        qk_dots(slots[k])
        take(k, f"L_kend{k}")
        ld3(slots[k], 44, 62, KLD)
        lticket(0)
        score(vSC+1)
    a("s_branch L_kloop")
    def v_fill(k, i):
        a(f"""s_add_u32 s8, s3, {8*i - 4}
        s_mul_i32 s62, s8, 3072
        s_add_u32 s62, s62, s64
        s_lshl_b32 s{74+k}, s8, 5""")
        ld3(slots[k], 48, 62, VLD)
    for k in range(2):
        a.label(f"L_kend{k}")
        stamp(31)
        v_fill(k, 0)
        score(vSC+1)
        a(f"s_waitcnt vmcnt(3)\nv_add_u32 v{vSC+1}, s{75-k}, v{vSC}")
        qk_dots(slots[1-k])
        v_fill(1-k, 1)
        lticket(1)
        score(vSC+1)
        a(f"s_branch L_v{k}")
    slow = []
    def weigh(k, last=False):
        lab = a.newlabel('SC')
        a(f"v_add_u32 v{vSC+1}, s{74+k}, v{vSC}")
        a.label(lab)
        a(f"""ds_read_b32 v{vT[0]}, v{vSC+1}
        s_waitcnt lgkmcnt(0)
        v_cmp_eq_u32 vcc, -1, v{vT[0]}
        s_cbranch_vccnz {lab}_again""")
        slow.append(lab)
        softmax(last, True)
    for k in range(2):
        a.label(f"L_v{k}")
        weigh(k)
        a("s_waitcnt vmcnt(3)")
        pv(slots[k])
        take(k, f"L_vend{k}")
        ld3(slots[k], 48, 62, VLD)
        lticket(1)
    a("s_branch L_v0")
    def shared_first(none):
        a(f"""s_waitcnt lgkmcnt(0)
        s_add_u32 s8, s8, {NSTAT}
        s_cmp_ge_u32 s8, {NUNITS}
        s_cbranch_scc1 {none}
        s_mul_i32 s62, s8, 3072""")
    a.label("L_vend1")
    a("s_mov_b32 s8, 1\ns_atomic_add s8, s[60:61], 0 glc")
    shared_first("L_vnoneA")
    weigh(0)
    a("s_waitcnt vmcnt(0)")
    pv(vAK)
    ticket(); loadK(vAK); loadV(vAV)
    a("s_branch L_loop")
    a.label("L_vend0")
    a("s_mov_b32 s8, 1\ns_atomic_add s8, s[60:61], 0 glc")
    shared_first("L_vnoneB")
    ticket(); loadK(vAK)
    weigh(1)
    a("s_waitcnt vmcnt(4)")
    pv(vAV)
    loadV(vAV)
    a.label("L_loop")
    if JIT == 2: a("s_waitcnt vmcnt(5)\ns_mov_b32 s8, 1\ns_atomic_add s8, s[60:61], 0 glc")
    a("s_waitcnt vmcnt(3)")
    if JIT == 1: a("s_mov_b32 s8, 1\ns_atomic_add s8, s[60:61], 0 glc")
    if not JIT: a(f"v_readfirstlane_b32 s8, v{vTK}")
    qk_dots(vAK)
    if JIT: a("s_waitcnt lgkmcnt(0)")
    a(f"""s_add_u32 s8, s8, {NSTAT}
    s_cmp_ge_u32 s8, {NUNITS}
    s_cbranch_scc1 L_drain
    s_mul_i32 s62, s8, 3072""")
    if STAMP: a("s_memrealtime s[92:93]\ns_lshr_b32 s94, s8, 7\ns_add_u32 m0, s94, 32\ns_waitcnt lgkmcnt(0)\nv_writelane_b32 v126, s92, m0")
    ticket(True); loadK(vAK)
    softmax()
    a("s_waitcnt vmcnt(4)")
    pv(vAV)
    loadV(vAV)
    a("s_branch L_loop")

    a.label("L_drain")
    a("s_setprio 3")
    stamp(10)
    softmax(last=True)
    a.label("L_drain2")
    part_addr()
    a("s_waitcnt vmcnt(0)")
    pv(vAV)
    a.label("L_drain3")
    stamp(11)
    part_write()
    a("s_branch L_end")

    a.label("L_vnoneB")
    a("s_setprio 3")
    stamp(10)
    weigh(1, True)
    a("s_branch L_drain2")
    a.label("L_vnoneA")
    a("s_setprio 3")
    stamp(10)
    weigh(0, True)
    a("s_waitcnt vmcnt(0)")
    pv(vAK)
    part_addr()
    a("s_branch L_drain3")

    for lab in slow:
        a.label(lab + "_again")
        a(f"""s_add_u32 s67, s67, 1
        s_cmp_gt_u32 s67, {SPIN*8}
        s_cbranch_scc1 L_end
        s_branch {lab}""")

    a.label("L_catch2")
    rest_of_buffer(0, 0)
    a.label("L_retired")
    a(f"""v_mov_b32 v52, 0
    v_mov_b32 v53, 1
    s_cmp_eq_u32 s3, 15
    s_cbranch_scc1 L_fwave""")
    a(f"""s_sub_u32 s9, s3, 12
    s_lshl_b32 s8, s9, 8
    v_lshl_add_u32 v4, v0, 2, s8
    v_and_b32 v11, 7, v0
    v_lshlrev_b32 v11, 3, v11
    v_add_u32 v12, {L_PART}, v4
    s_lshl_b32 s8, s4, 3
    s_add_u32 s8, s8, s5
    s_lshl_b32 s8, s8, 10
    s_add_u32 s8, s8, {WS_G3}
    v_add_u32 v4, s8, v4""")
    lds_wait(L_FLAG+4, 1, "L_cnear", 4, vz=52)
    a.label("L_cnear")
    lds_wait(L_FLAG+4, NST, "L_cml", 0, vz=52)
    a.label("L_cml")
    a(f"""ds_read_b64 v[6:7], v11 offset:{L_ML}
    s_waitcnt lgkmcnt(0)
    v_mov_b32 v8, v6""")
    red8('v_max_f32', 8)
    a(f"""v_sub_f32 v6, v6, v8
    v_mul_f32 v6, s42, v6
    v_exp_f32 v6, v6
    v_mov_b32 v40, 0
    v_mov_b32 v41, 0
    v_mul_f32 v9, v7, v6
    s_setprio 3
    s_cmp_lg_u32 s9, 0
    s_cbranch_scc1 L_cwait""")
    red8('v_add_f32', 9)
    a(f"""v_min_u32 v8, -2, v8
    v_min_u32 v9, -2, v9
    s_mov_b64 exec, 1
    global_store_dwordx2 v4, v[8:9], s[40:41] offset:768 sc1
    s_mov_b64 exec, -1""")
    a.label("L_cwait")
    lds_wait(L_FLAG+8, NST, "L_cgo", 0, vz=52)
    a.label("L_cgo")
    for k in range(4): a(f"ds_read2st64_b32 v[{24+2*k}:{25+2*k}], v12 offset0:{6*k} offset1:{6*k+3}")
    for k in range(8):
        if k % 2 == 0: a(f"s_waitcnt lgkmcnt({3-k//2})")
        a(f"v_fmac_f32_dpp v{40+(k&1)}, v6, v{24+k} row_newbcast:{k} row_mask:0xf bank_mask:0xf")
    a(f"""v_add_f32 v40, v40, v41
    v_min_u32 v40, -2, v40
    global_store_dword v4, v40, s[40:41] sc1
    s_mov_b64 exec, 1
    ds_add_u32 v52, v53 offset:{L_FLAG+8}
    s_mov_b64 exec, -1""")
    stamp(12)
    a("s_branch L_end")

    def dma(n, srd, voff, sstep, lbase, pace=None):
        for t in range(n):
            v = voff[t] if isinstance(voff, list) else voff
            a(f"""s_mov_b32 s10, {t*sstep}
            s_add_u32 m0, s11, {lbase + 1024*t}
            buffer_load_dwordx4 v{v}, s[{srd}:{srd+3}], s10 offen {TLD} lds""")
            if pace is not None: a(f"s_waitcnt vmcnt({pace})")
    a.label("L_tail")
    a(f"""s_setprio 0
    v_lshrrev_b32 v2, 4, v0
    v_and_b32 v3, 15, v0
    v_lshrrev_b32 v10, 2, v3
    v_lshl_add_u32 v10, v2, 3, v10
    v_and_b32 v11, 3, v0
    v_mov_b32 v4, 0
    v_lshrrev_b32 v12, 2, v0
    v_and_b32 v13, 31, v0
    v_lshlrev_b32 v13, 2, v13
    s_mov_b32 s14, 0xffff0000
    s_mov_b32 s15, 0xffff0000
    s_mov_b32 s55, 0x20000
    s_mov_b32 s59, 0x20000""")
    if MS: a(f"s_sub_u32 s66, s2, {MB}\ns_cmp_lt_u32 s66, 48\ns_cbranch_scc1 L_notw")
    if P.get('pf2', 0):
        lds_wait(L_KF+4, P.get('pf2at', 150), "L_pf2", 16)
        a.label("L_pf2")
        for rep in range(P['pf2']):
            a(f"s_add_u32 s74, s3, {4*rep}")
            code_touch("L_loop", 8, 74)
            a("s_waitcnt lgkmcnt(0)")
    lds_wait(L_FLAG+4, 1, "L_near", 4)
    a.label("L_near")
    a(f"""s_cmp_lg_u32 s3, 0
    s_cbranch_scc1 L_rolewait
    s_and_b32 s9, s2, 7
    s_mul_i32 s8, s9, {CNT_STRIDE}
    s_add_u32 s8, s8, {WS_CNT + 32*CNT_STRIDE}
    s_add_u32 s60, s40, s8
    s_addc_u32 s61, s41, 0""")
    lds_wait(L_FLAG+4, RTRIG, "L_roleget", 0)
    a.label("L_roleget")
    a(f"""s_mov_b32 s8, 1
    s_atomic_add s8, s[60:61], 0 glc
    s_waitcnt lgkmcnt(0)
    s_lshl_b32 s8, s8, 3
    s_add_u32 s8, s8, s9
    s_add_u32 s8, s8, 1
    v_mov_b32 v5, s8
    ds_write_b32 v4, v5 offset:{L_ROLE}
    s_branch L_rolegot""")
    a.label("L_rolewait")
    lds_wait(L_ROLE, 1, "L_rolegot", 0)
    a.label("L_rolegot")
    if STAMP: a("v_writelane_b32 v126, s8, 26")
    if MS:
        if STAMP: a("s_add_u32 s9, s8, 48\nv_writelane_b32 v126, s9, 26")
        a("s_sub_u32 s64, s8, 1\ns_cmp_ge_u32 s64, 160\ns_cbranch_scc1 L_end")
    else:
        a(f"""s_sub_u32 s66, s8, 1
        s_cmp_lt_u32 s66, 48
        s_cbranch_scc1 L_notw
        s_sub_u32 s64, s66, 48
        s_cmp_ge_u32 s64, 160
        s_cbranch_scc1 L_end""")
    BF = 64
    a(f"""s_mul_i32 s65, s64, 205
    s_lshr_b32 s65, s65, 11
    s_mul_i32 s8, s65, 10
    s_sub_u32 s64, s64, s8
    s_lshl_b32 s9, s65, 2
    s_add_u32 s9, s9, s3
    s_mul_i32 s8, s9, {96*1280}
    s_lshl_b32 s10, s64, 7
    s_add_u32 s8, s8, s10
    s_add_u32 s52, s24, s8
    s_addc_u32 s53, s25, 0
    s_sub_u32 s54, {6144*1280}, s8
    v_lshrrev_b32 v14, 3, v0
    v_mul_u32_u24 v14, 1280, v14
    v_and_b32 v16, 7, v0
    v_lshl_add_u32 v14, v16, 4, v14
    s_mul_i32 s11, s3, 12288""")
    if RTRIG >= TRIG:
        dma(12, 52, 14, 8*1280, L_W)
        stamp(24)
    a(f"""v_lshlrev_b32 v15, 7, v10
    v_lshl_add_u32 v15, v11, 3, v15
    v_add_u32 v15, s11, v15
    s_lshr_b32 s9, s9, 1
    s_lshl_b32 s9, s9, 13
    s_add_u32 s9, s9, {WS_G3}
    v_lshl_add_u32 v16, v16, 10, s9
    s_and_b32 s8, s3, 1
    s_mul_i32 s8, s8, 384
    s_add_u32 s9, s9, s8
    v_lshlrev_b32 v17, 11, v2
    v_lshl_add_u32 v17, v3, 3, v17
    v_add_u32 v17, s9, v17
    s_mul_i32 s8, s3, 384
    v_and_b32 v19, 1, v2
    v_lshl_add_u32 v18, v3, 1, v19
    v_lshl_add_u32 v18, v18, 1, s8
    v_lshrrev_b32 v19, 5, v0
    v_lshl_add_u32 v12, v19, 7, v18
    v_lshl_add_u32 v19, v2, 4, s8
    v_lshlrev_b32 v13, 2, v0
    s_lshl_b32 s8, s3, 8
    v_add_u32 v20, s8, v13
    s_mul_i32 s8, s65, 2560
    s_lshl_b32 s10, s64, 8
    s_add_u32 s8, s8, s10
    s_add_u32 s8, s8, {WS_G4}
    v_add_u32 v21, s8, v13
    s_mov_b32 s12, 0
    s_mov_b32 s13, -1
    s_setprio 2""")
    def g3_loads():
        for t in range(3):
            for b in range(2):
                r = 112 + 4*t + 2*b
                a(f"global_load_dwordx2 v[{r}:{r+1}], v17, s[40:41] offset:{1024*b+128*t} sc1")
    if RTRIG < TRIG:
        lds_wait(L_FLAG+4, TRIG, "L_wgo", 0)
        a.label("L_wgo")
        dma(12, 52, 14, 8*1280, L_W)
        stamp(24)
    lab = a.newlabel('ML'); a.label(lab)
    a("global_load_dwordx2 v[6:7], v16, s[40:41] offset:768 sc1")
    g3_loads()
    a("""s_waitcnt vmcnt(0)
    v_max_u32 v8, v6, v7
    v_cmp_eq_u32 vcc, -1, v8""")
    spin_tail(lab)
    stamp(25)
    for ks in range(3):
        for nt in range(4):
            for hf in range(2):
                r = BF + 16*ks + 4*nt + 2*hf
                a(f"ds_read_b64_tr_b16 v[{r}:{r+1}], v15 offset:{L_W + 4096*ks + 512*hf + 32*nt}")
    a("v_mov_b32 v8, v6")
    red8('v_max_f32', 8)
    a(f"""v_sub_f32 v6, v6, v8
    v_mul_f32 v6, s42, v6
    v_exp_f32 v6, v6
    v_mul_f32 v7, v7, v6""")
    red8('v_add_f32', 7)
    a("v_rcp_f32 v7, v7\nv_mul_f32 v6, v6, v7")
    for r in range(4):
        a(f"v_mov_b32_dpp v8, v6 row_newbcast:{2*r} row_mask:{hex(1<<r)} bank_mask:0xf")
        a(f"v_mov_b32_dpp v22, v6 row_newbcast:{2*r+1} row_mask:{hex(1<<r)} bank_mask:0xf")
    a("s_mov_b32 s70, 0\ns_waitcnt lgkmcnt(0)\ns_branch L_g3chk")
    lab = a.newlabel('G3'); a.label(lab)
    a("s_cmp_lg_u32 s70, 0\ns_cbranch_scc1 L_g3ld\ns_mov_b32 s70, 1")
    lds_wait(L_FLAG+8, NST+3, "L_g3ld", 1)
    a.label("L_g3ld")
    stamp(30)
    a("s_mov_b64 exec, s[68:69]")
    g3_loads()
    a("s_mov_b64 exec, -1")
    a.label("L_g3chk")
    a("s_waitcnt vmcnt(0)")
    for t in range(3):
        a(f"v_pk_mul_f32 v[{48+2*t}:{49+2*t}], v[{112+4*t}:{113+4*t}], v[8:9] op_sel_hi:[1,0]")
    for t in range(3):
        a(f"v_pk_fma_f32 v[{48+2*t}:{49+2*t}], v[{114+4*t}:{115+4*t}], v[22:23], v[{48+2*t}:{49+2*t}] op_sel_hi:[1,0,1]")
    a("v_pk_add_f32 v[56:57], v[48:49], v[50:51]\nv_pk_add_f32 v[56:57], v[56:57], v[52:53]")
    nan_retry([56, 57], list(range(112, 124)), lab, 60, True)
    stamp(13)
    a("""v_mov_b32 v54, v50
    v_mov_b32 v55, v51
    v_permlane32_swap_b32 v48, v52
    v_permlane32_swap_b32 v49, v53
    v_permlane32_swap_b32 v50, v54
    v_permlane32_swap_b32 v51, v55
    v_pk_add_f32 v[48:49], v[48:49], v[52:53]
    v_pk_add_f32 v[50:51], v[50:51], v[54:55]""")
    rs_step(4, [(48, 49), (50, 51)])
    a(f"""v_cvt_pk_bf16_f32 v48, v48, v48
    v_cvt_pk_bf16_f32 v50, v50, v50
    ds_write_b16 v12, v48 offset:{L_O}
    ds_write_b16 v18, v50 offset:{L_O + 64}""")
    for ks in range(3): a(f"ds_read_b128 v[{24+4*ks}:{27+4*ks}], v19 offset:{L_O + 64*ks}")
    for ks in range(3):
        a(f"s_waitcnt lgkmcnt({2-ks})")
        for nt in range(4):
            c = '0' if ks == 0 else f"v[{40+4*nt}:{43+4*nt}]"
            a(f"v_mfma_f32_16x16x32_bf16 v[{40+4*nt}:{43+4*nt}], v[{24+4*ks}:{27+4*ks}], v[{BF+16*ks+4*nt}:{BF+16*ks+4*nt+3}], {c}")
    a(f"""v_cndmask_b32 v56, v40, v44, s[14:15]
    v_cndmask_b32 v57, v48, v52, s[14:15]
    v_cndmask_b32 v56, v56, v57, s[12:13]
    ds_write_b32 v20, v56 offset:{L_WP}
    s_waitcnt lgkmcnt(0)
    s_barrier
    s_cmp_lg_u32 s3, 0
    s_cbranch_scc1 L_end
    ds_read2st64_b32 v[24:25], v13 offset0:{L_WP//256} offset1:{L_WP//256+1}
    ds_read2st64_b32 v[26:27], v13 offset0:{L_WP//256+2} offset1:{L_WP//256+3}
    s_waitcnt lgkmcnt(1)
    v_add_f32 v24, v24, v25
    s_waitcnt lgkmcnt(0)
    v_add_f32 v26, v26, v27
    v_add_f32 v24, v24, v26
    v_min_u32 v24, -2, v24
    global_store_dword v21, v24, s[40:41] sc1""")
    stamp(14)
    a("s_branch L_end")

    a.label("L_notw")
    if MS and STAMP: a("s_add_u32 s9, s66, 1\nv_writelane_b32 v126, s9, 26")

    B1, B2 = 48, 88
    a(f"""s_mul_i32 s8, s3, {160*3072}
    s_lshl_b32 s9, s66, 6
    s_add_u32 s8, s8, s9
    s_add_u32 s52, s28, s8
    s_addc_u32 s53, s29, 0
    s_sub_u32 s54, {640*3072}, s8
    s_mul_i32 s8, s66, {32*1280}
    s_mul_i32 s9, s3, 320
    s_add_u32 s8, s8, s9
    s_add_u32 s56, s30, s8
    s_addc_u32 s57, s31, 0
    s_sub_u32 s58, {1536*1280}, s8
    v_mul_u32_u24 v14, 3072, v12
    v_lshl_add_u32 v14, v11, 4, v14
    s_mul_i32 s11, s3, 10240""")
    if not MS:
        dma(10, 52, 14, 16*3072, L_W)
        stamp(24)
    a(f"""    v_lshlrev_b32 v15, 6, v10
    v_lshl_add_u32 v15, v11, 3, v15
    v_add_u32 v15, s11, v15
    v_mul_u32_u24 v16, 320, v10
    v_lshl_add_u32 v16, v11, 3, v16
    v_add_u32 v16, s11, v16
    v_add_u32 v16, {L_W2}, v16""")
    W2A = 30
    for t in range(10):
        a(f"""v_add_u32 v5, {64*t}, v0
        v_mul_u32_u24 v6, 3277, v5
        v_lshrrev_b32 v6, 16, v6
        v_mul_u32_u24 v7, 960, v6
        v_lshl_add_u32 v{W2A+t}, v5, 4, v7""")
    dma(10, 56, [W2A+t for t in range(10)], 0, L_W2, 1 if MS else None)
    a(f"""v_and_b32 v5, 1, v2
    v_lshl_add_u32 v5, v3, 1, v5
    v_lshrrev_b32 v6, 5, v0
    v_lshl_add_u32 v6, v6, 6, v5
    v_add_u32 v7, 128, v5
    s_mul_i32 s8, s3, 160
    v_lshl_add_u32 v17, v6, 1, s9
    v_lshl_add_u32 v18, v7, 1, s9
    v_add_u32 v6, s8, v6
    v_add_u32 v7, s8, v7
    v_lshlrev_b32 v19, 2, v6
    v_lshlrev_b32 v20, 2, v7
    v_lshlrev_b32 v8, 2, v0
    global_load_ushort v40, v17, s[16:17]
    global_load_ushort v41, v17, s[16:17] offset:64
    global_load_ushort v42, v18, s[16:17]""")
    for t in range(5): a(f"global_load_dword v{24+t}, v8, s[16:17] offset:{256*t}")
    a(f"""v_lshlrev_b32 v6, 3, v6
    v_lshlrev_b32 v7, 3, v7
    v_add_u32 v6, {WS_GR}, v6
    v_add_u32 v7, {WS_GR}, v7
    v_add_u32 v8, 5120, v6
    v_add_u32 v9, 5120, v7
    v_add_u32 v21, 10240, v6
    v_add_u32 v22, 10240, v7
    s_waitcnt lgkmcnt(0)
    s_add_u32 s6, s6, {hex(TAGC)}""")
    if MS:
        lds_wait(L_KF+4, 140, "L_mmid", 16)
        a.label("L_mmid")
    lab = a.newlabel('GR'); a.label(lab)
    GRB = 88
    srcs = [(6, 0), (6, 256), (7, 0), (8, 0), (8, 256), (9, 0), (21, 0), (21, 256), (22, 0)]
    for i, (v, o) in enumerate(srcs): a(f"global_load_dwordx2 v[{GRB+2*i}:{GRB+2*i+1}], v{v}, s[40:41] offset:{o} sc1")
    a(f"s_waitcnt vmcnt(0)\nv_xor_b32 v5, s6, v{GRB+1}")
    for i in range(1, 9): a(f"v_bitop3_b32 v5, v5, v{GRB+2*i+1}, s6 bitop3:0xf6")
    a("v_cmp_ne_u32 vcc, 0, v5")
    spin_tail(lab, 32 if MS else 4)
    for j in range(3):
        a(f"""v_lshlrev_b32 v{40+j}, 16, v{40+j}
        v_mov_b32 v{43+j}, v{GRB+2*j}
        v_mov_b32 v{120+j}, v{GRB+6+2*j}
        v_add_f32 v{123+j}, 1.0, v{GRB+12+2*j}""")
        rbf(123+j, 123+j)
    a("v_mov_b32 v46, 0")
    for t in range(5): a(f"v_lshlrev_b32 v5, 16, v{24+t}\nv_and_b32 v6, s7, v{24+t}\nv_add_f32 v46, v46, v5\nv_add_f32 v46, v46, v6")
    red16('v_add_f32', [46]); red_hi('v_add_f32', [46], [5])
    a(f"""v_mul_f32 v46, {hex(f2u(1/640))}, v46
    v_mul_u32_u24 v21, 10240, v2
    v_lshl_add_u32 v21, v3, 3, v21
    s_mul_i32 s8, s3, 640
    s_add_u32 s9, s8, {WS_G4}
    v_add_u32 v21, s9, v21
    s_mul_i32 s9, s66, 2560
    s_add_u32 s8, s8, s9
    s_add_u32 s8, s8, {WS_G5}
    v_lshl_add_u32 v22, v0, 2, s8
    s_mul_i32 s8, s3, 320
    v_lshl_add_u32 v23, v2, 4, s8
    s_lshl_b32 s8, s3, 7
    v_add_u32 v47, s8, v13
    s_lshl_b32 s8, s3, 3
    v_mov_b32 v9, s8
    s_lshl_b32 s8, s3, 6
    v_lshrrev_b32 v12, 1, v13
    v_add_u32 v12, s8, v12
    s_add_u32 s8, s8, {L_U}
    v_lshl_add_u32 v5, v2, 4, s8
    v_lshrrev_b32 v6, 2, v3
    v_mov_b32 v7, {L_ZERO}""")
    for g in range(4):
        a(f"v_cmp_eq_u32 vcc, {g}, v6\nv_cndmask_b32 v{[2,3,10,11][g]}, v7, v5, vcc")
    if MS == 2:
        dma(10, 52, 14, 16*3072, L_W, 1)
    if MS == 1:
        lds_wait(L_FLAG+4, 1, "L_mnear", 4)
        a.label("L_mnear")
        lds_wait(L_FLAG+4, NST, "L_mgo", 0)
        a.label("L_mgo")
        dma(10, 52, 14, 16*3072, L_W)
        stamp(24)
    a("s_setprio 2\ns_waitcnt vmcnt(0)")
    for ks in range(5):
        for nt in range(2):
            for hf in range(2):
                r = B1 + 8*ks + 4*nt + 2*hf
                a(f"ds_read_b64_tr_b16 v[{r}:{r+1}], v15 offset:{L_W + 2048*ks + 256*hf + 32*nt}")
    B2R = [B2 + 4*nt for nt in range(8)] + [24, 28]
    a("s_waitcnt vmcnt(0)")
    stamp(25)
    XR = [B2 + 2*i for i in range(16)] + [32, 34, 36, 38]
    raw = [r+k for r in XR for k in range(2)]
    a("v_add_u32 v14, 5120, v21")
    for r in raw: a(f"v_mov_b32 v{r}, -1")
    lab = a.newlabel('G4')
    a("s_mov_b64 s[68:69], -1")
    if IND:
        a(f"""v_mul_u32_u24 v6, 52, v0
        v_lshrrev_b32 v6, 8, v6
        v_mul_u32_u24 v7, {2560 - 640}, v6
        v_lshl_add_u32 v7, v0, 7, v7
        s_mul_i32 s8, s3, 640
        s_add_u32 s8, s8, {WS_G4 + 124}
        v_add_u32 v7, s8, v7
        v_add_u32 v8, {8*2560}, v7""")
        lds_wait(L_FLAG+8, NST+3, "L_ind0", 1)
        a.label("L_ind0")
        a("s_mov_b32 exec_hi, 0xff")
        a.label("L_ind")
        a(f"""global_load_dword v5, v7, s[40:41] sc1
        global_load_dword v6, v8, s[40:41] sc1
        s_add_u32 s67, s67, 1
        s_cmp_gt_u32 s67, {SPIN}
        s_cbranch_scc1 L_end
        s_waitcnt vmcnt(0)
        v_max_u32 v5, v5, v6
        v_cmp_eq_u32 vcc, -1, v5
        s_cbranch_vccnz L_ind""")
    else:
        lds_wait(L_FLAG+8, NST+3, lab, 1)
    a.label(lab)
    stamp(30)
    a("s_mov_b64 exec, s[68:69]")
    for t in range(5):
        for b in range(4):
            r = XR[4*t+b]
            a(f"global_load_dwordx2 v[{r}:{r+1}], v{21 if b < 2 else 14}, s[40:41] offset:{2560*(b&1)+128*t} sc1")
    a(f"s_mov_b64 exec, -1\ns_waitcnt vmcnt({20*(PD-1)})")
    YR = [24, 28, 26, 30, 4]
    for t in range(5): a(f"v_pk_add_f32 v[{YR[t]}:{YR[t]+1}], v[{XR[4*t]}:{XR[4*t]+1}], v[{XR[4*t+1]}:{XR[4*t+1]+1}]")
    for t in range(5): a(f"v_pk_add_f32 v[{YR[t]}:{YR[t]+1}], v[{YR[t]}:{YR[t]+1}], v[{XR[4*t+2]}:{XR[4*t+2]+1}]")
    for t in range(5): a(f"v_pk_add_f32 v[{YR[t]}:{YR[t]+1}], v[{YR[t]}:{YR[t]+1}], v[{XR[4*t+3]}:{XR[4*t+3]+1}]")
    a("""v_pk_add_f32 v[6:7], v[24:25], v[28:29]
    v_pk_add_f32 v[126:127], v[26:27], v[30:31]
    v_pk_add_f32 v[6:7], v[6:7], v[4:5]
    v_pk_add_f32 v[6:7], v[6:7], v[126:127]""".replace("v[126:127]", "v[44:45]" if False else "v[122:123]") if False else """v_pk_add_f32 v[6:7], v[24:25], v[28:29]
    v_pk_add_f32 v[6:7], v[6:7], v[26:27]
    v_pk_add_f32 v[6:7], v[6:7], v[30:31]
    v_pk_add_f32 v[6:7], v[6:7], v[4:5]""")
    nan_retry([6, 7], raw, lab, 8, True)
    stamp(15)
    a("v_mov_b32 v6, v4\nv_mov_b32 v7, v5")
    for x, y in ((24, 26), (28, 30), (4, 6)):
        a(f"v_permlane32_swap_b32 v{x}, v{y}\nv_permlane32_swap_b32 v{x+1}, v{y+1}")
    for x, y in ((24, 26), (28, 30), (4, 6)): a(f"v_pk_add_f32 v[{x}:{x+1}], v[{x}:{x+1}], v[{y}:{y+1}]")
    rs_step(4, [(24, 25), (28, 29), (4, 5)])
    C3 = [24, 28, 4]
    for c in C3: rbf(c, c)
    for j, c in enumerate(C3): a(f"v_mul_f32 v{c}, v{43+j}, v{c}")
    for c in C3: rbf(c, c)
    for j, c in enumerate(C3): a(f"v_add_f32 v{c}, v{40+j}, v{c}")
    for c in C3: rbf(c, c)
    a(f"""v_sub_f32 v25, v24, v46
    v_sub_f32 v29, v28, v46
    v_sub_f32 v5, v4, v46
    ds_write_b32 v19, v24 offset:{L_X2}
    ds_write_b32 v19, v28 offset:{L_X2+128}
    ds_write_b32 v20, v4 offset:{L_X2}
    v_mul_f32 v26, 0.5, v5
    v_add_f32 v30, v25, v29
    v_mul_f32 v31, v25, v25
    v_add_f32 v30, v30, v26
    v_fmac_f32 v31, v29, v29
    v_fmac_f32 v31, v26, v5""")
    red16('v_add_f32', [30, 31]); red_hi('v_add_f32', [30, 31], [6, 7])
    a(f"""ds_write_b64 v9, v[30:31] offset:{L_ST}
    v_mov_b32 v8, 0
    s_waitcnt vmcnt(0) lgkmcnt(0)""")
    if MST: stamp(48)
    a(f"""
    s_barrier
    ds_read_b128 v[32:35], v8 offset:{L_ST}
    ds_read_b128 v[36:39], v8 offset:{L_ST+16}""")
    if MST: stamp(49)
    a(f"""""")
    a(f"""s_waitcnt lgkmcnt(0)
    v_pk_add_f32 v[32:33], v[32:33], v[34:35]
    v_pk_add_f32 v[36:37], v[36:37], v[38:39]
    v_pk_add_f32 v[32:33], v[32:33], v[36:37]
    v_mul_f32 v32, {hex(f2u(1/640))}, v32
    v_mul_f32 v33, {hex(f2u(1/640))}, v33
    v_fma_f32 v33, -v32, v32, v33
    v_add_f32 v32, v32, v46
    v_max_f32 v33, 0, v33""")
    rbf(32, 32); rbf(33, 33)
    a(f"v_add_f32 v33, {hex(f2u(1e-5))}, v33")
    for c in C3: a(f"v_sub_f32 v{c}, v{c}, v32")
    rbf(33, 33)
    a("v_sqrt_f32 v33, v33")
    for c in C3: rbf(c, c)
    rbf(33, 33)
    a("v_rcp_f32 v33, v33")
    for c in C3: a(f"v_mul_f32 v{c}, v{c}, v33")
    for c in C3: rbf(c, c)
    for j, c in enumerate(C3): a(f"v_mul_f32 v{c}, v{c}, v{123+j}")
    for c in C3: rbf(c, c)
    for j, c in enumerate(C3): a(f"v_add_f32 v{c}, v{c}, v{120+j}")
    for c in C3: a(f"v_cvt_pk_bf16_f32 v{c}, v{c}, v{c}")
    a(f"""ds_write_b16 v17, v24 offset:{L_O}
    ds_write_b16 v17, v28 offset:{L_O+64}
    ds_write_b16 v18, v4 offset:{L_O}""")
    if MST: stamp(50)
    a(f"""""")
    A1 = [24, 28, 32, 36, 40]
    for ks in range(5): a(f"ds_read_b128 v[{A1[ks]}:{A1[ks]+3}], v23 offset:{L_O + 64*ks}")
    D1 = [4, 120]
    for ks in range(5):
        a(f"s_waitcnt lgkmcnt({4-ks})")
        for nt in range(2):
            c = '0' if ks == 0 else f"v[{D1[nt]}:{D1[nt]+3}]"
            a(f"v_mfma_f32_16x16x32_bf16 v[{D1[nt]}:{D1[nt]+3}], v[{A1[ks]}:{A1[ks]+3}], v[{B1+8*ks+4*nt}:{B1+8*ks+4*nt+3}], {c}")
    for nt in range(10):
        for hf in range(2):
            r = B2R[nt] + 2*hf
            a(f"ds_read_b64_tr_b16 v[{r}:{r+1}], v16 offset:{1280*hf + 32*nt}")
    a(f"""v_cndmask_b32 v8, v4, v120, s[14:15]
    ds_write_b32 v47, v8 offset:{L_WP}
    s_waitcnt lgkmcnt(0)""")
    if MST: stamp(51)
    a(f"""
    s_barrier
    ds_read_b32 v32, v13 offset:{L_WP}
    ds_read_b32 v33, v13 offset:{L_WP+128}
    ds_read_b32 v34, v13 offset:{L_WP+256}
    ds_read_b32 v35, v13 offset:{L_WP+384}""")
    if MST: stamp(52)
    a(f"""
    s_waitcnt lgkmcnt(2)
    v_add_f32 v32, v32, v33
    s_waitcnt lgkmcnt(0)
    v_add_f32 v34, v34, v35
    v_add_f32 v32, v32, v34""")
    rbf(32, 32)
    a(f"""v_mul_f32 v33, s42, v32
    v_exp_f32 v33, -v33
    v_add_f32 v33, 1.0, v33
    v_rcp_f32 v33, v33
    v_mul_f32 v32, v32, v33
    v_cvt_pk_bf16_f32 v32, v32, v32
    ds_write_b16 v12, v32 offset:{L_U}""")
    if MST: stamp(53)
    a(f"""""")
    A2 = [48, 52, 56, 60]
    for g in range(4): a(f"ds_read_b128 v[{A2[g]}:{A2[g]+3}], v{[2,3,10,11][g]}")
    D2 = [64, 68, 72]
    for g in range(4):
        a(f"s_waitcnt lgkmcnt({3-g})")
        for j in range(3):
            nt = 4*j + g
            if nt >= 10: continue
            c = '0' if g == 0 else f"v[{D2[j]}:{D2[j]+3}]"
            a(f"v_mfma_f32_16x16x32_bf16 v[{D2[j]}:{D2[j]+3}], v[{A2[g]}:{A2[g]+3}], v[{B2R[nt]}:{B2R[nt]+3}], {c}")
    a(f"""v_min_u32 v76, -2, v72
    s_mov_b32 exec_hi, 0
    global_store_dword v22, v76, s[40:41] offset:512 sc1
    s_mov_b64 exec, -1
    v_min_u32 v77, -2, v64
    v_min_u32 v78, -2, v68
    global_store_dword v22, v77, s[40:41] sc1
    global_store_dword v22, v78, s[40:41] offset:256 sc1""")
    stamp(16)
    a("s_branch L_end")

    a.label("L_fwave")
    if MS: a(f"s_sub_u32 s8, s2, {MB-1}")
    else:
        lds_wait(L_ROLE, 1, "L_frole", 4, vz=52)
        a.label("L_frole")
    a(f"""s_sub_u32 s66, s8, 1
    s_cmp_ge_u32 s66, 40
    s_cbranch_scc1 L_end
    v_and_b32 v4, 3, v0
    v_lshrrev_b32 v5, 4, v0
    v_lshl_add_u32 v6, v4, 2, v5
    s_lshl_b32 s8, s66, 4
    v_add_u32 v6, s8, v6
    v_lshlrev_b32 v7, 3, v6
    v_add_u32 v7, {WS_GR + 1920*8}, v7
    s_waitcnt lgkmcnt(0)
    s_add_u32 s6, s6, {hex(TAGC)}""")
    if MS:
        lds_wait(L_KF+4, 140, "L_fmid", 16, vz=52)
        a.label("L_fmid")
    lab = a.newlabel('GF'); a.label(lab)
    a(f"""global_load_dwordx2 v[50:51], v7, s[40:41] sc1
    s_waitcnt vmcnt(0)
    v_cmp_ne_u32 vcc, s6, v51""")
    spin_tail(lab, 32 if MS else 4)
    a(f"""v_lshlrev_b32 v8, 2, v6
    v_lshrrev_b32 v7, 2, v0
    v_mul_u32_u24 v7, 2560, v7
    v_lshl_add_u32 v7, v4, 4, v7
    s_lshl_b32 s8, s66, 6
    s_add_u32 s8, s8, {WS_G5}
    v_add_u32 v7, s8, v7
    v_add_u32 v52, {16*2560}, v7
    v_add_u32 v53, {32*2560}, v7
    v_lshlrev_b32 v6, 1, v6
    v_mov_b32 v4, {WS_EPOCH}
    v_mov_b32 v5, s6""")
    for r in range(24, 36): a(f"v_mov_b32 v{r}, -1")
    a(f"""s_barrier
    ds_read_b32 v48, v8 offset:{L_X2}
    s_waitcnt lgkmcnt(0)
    s_barrier""")
    a("s_mov_b64 s[68:69], -1")
    lab = a.newlabel('G5'); a.label(lab)
    stamp(30)
    a(f"""s_mov_b64 exec, s[68:69]
    global_load_dwordx4 v[24:27], v7, s[40:41] sc1
    global_load_dwordx4 v[28:31], v52, s[40:41] sc1
    global_load_dwordx4 v[32:35], v53, s[40:41] sc1
    s_mov_b64 exec, -1
    s_waitcnt vmcnt({3*(PDF-1)})
    v_pk_add_f32 v[36:37], v[24:25], v[28:29]
    v_pk_add_f32 v[38:39], v[26:27], v[30:31]
    v_pk_add_f32 v[36:37], v[36:37], v[32:33]
    v_pk_add_f32 v[38:39], v[38:39], v[34:35]
    v_pk_add_f32 v[42:43], v[36:37], v[38:39]""")
    nan_retry([42, 43], list(range(24, 36)), lab, 40, True)
    stamp(17)
    rs_step(5, [(36, 38), (37, 39)])
    rs_step(4, [(36, 37)])
    dpp('v_add_f32', 36, 36, 36, 'row_ror:8'); dpp('v_add_f32', 36, 36, 36, 'row_ror:4')
    rbf(36, 36)
    a("v_mul_f32 v36, v50, v36"); rbf(36, 36)
    a(f"""v_add_f32 v36, v48, v36
    v_cvt_pk_bf16_f32 v36, v36, v36
    s_mov_b32 exec_lo, 0x000f000f
    s_mov_b32 exec_hi, 0x000f000f
    global_store_short v6, v36, s[36:37] {P.get('ost', '')}
    s_cmp_lg_u32 s66, 0
    s_cbranch_scc1 L_fend
    s_mov_b64 exec, 1
    global_store_dword v4, v5, s[40:41] sc1""")
    if P.get('dbgt'):
        a("""s_memrealtime s[92:93]
        s_waitcnt lgkmcnt(0)
        s_sub_u32 s92, s92, s98
        v_mov_b32 v4, 0
        v_mov_b32 v8, s92
        v_mov_b32 v9, s2
        global_store_dwordx2 v4, v[8:9], s[38:39]""")
    a.label("L_fend")
    a("s_mov_b64 exec, -1")
    stamp(18)
    a.label("L_end")
    if STAMP:
        a(f"""s_mov_b64 exec, -1
        v_writelane_b32 v126, s67, 27
        v_writelane_b32 v126, s63, 28
        v_writelane_b32 v126, s95, 29
        s_lshl_b32 s8, s2, 4
        s_add_u32 s8, s8, s3
        s_lshl_b32 s8, s8, 8
        s_add_u32 s8, s8, {WS_ST}
        v_lshl_add_u32 v4, v0, 2, s8
        global_store_dword v4, v126, s[40:41]""")
    a.label("L_exit")
    a("s_endpgm")

    body = a.text()
    out = HEADER
    out += f"; @launch grid=(256,1,1) block=(1024,1,1) lds={LDS_BYTES}\n"
    out += '.amdgcn_target "amdgcn-amd-amdhsa--gfx950"\n.text\n'
    out += f".globl {KN}\n.p2align 8\n.type {KN},@function\n{KN}:\n" + body
    out += f""".section .rodata,"a"
.p2align 6
.amdhsa_kernel {KN}
  .amdhsa_next_free_vgpr 128
  .amdhsa_next_free_sgpr 102
  .amdhsa_accum_offset 128
  .amdhsa_group_segment_fixed_size 0
  .amdhsa_kernarg_size 104
  .amdhsa_user_sgpr_count 2
  .amdhsa_user_sgpr_kernarg_segment_ptr 1
  .amdhsa_system_sgpr_workgroup_id_x 1
  .amdhsa_float_denorm_mode_32 3
.end_amdhsa_kernel
"""
    return out

if __name__ == '__main__':
    import json
    P = json.loads(sys.argv[2]) if len(sys.argv) > 2 else {}
    open(sys.argv[1], 'w').write(gen(P))
```

```python
import sys, math
from asmlib import Asm, f2u

KN = "adaLN_cond__gqa_block_cached__dense_activation_silu__decode_kernel"
HEADER = open('adaLN_cond__gqa_block_cached__dense_activation_silu__decode.s.ref').read().split('; Override')[0]

WS_EPOCH = 0
WS_CNT = 0x1000; CNT_STRIDE = 1152
WS_BOARD = 0xC000
WS_GM = 0x10000
WS_GR = WS_GM + 1280*8
WS_G1 = 0x20000
WS_GQ = 0x30000
WS_G3 = 0x100000
WS_G5 = WS_G3 + 0x40000
WS_G4 = WS_G5 + 48*2560
WS_ST = 0x200000
TAGC = 0x9E3779B9
NUNITS = 2048
HEADB = 16384*384
L_Q = 0
L_FLAG = 512
L_ZERO = 528
L_ROLE = L_FLAG + 12
L_KF = 544
L_ML = 576
L_ST = 704
L_O = 1024
L_U = 2560
L_WP = 3072
L_X2 = 4096
L_PART = 6912
L_TP = 6912
L_W = 16384
L_W2 = L_W + 73728
L_SC = L_W2 + 41984
LDS_BYTES = L_SC + 8192

DOC = '''; One persistent launch, 256 workgroups x 16 waves (one workgroup per CU). Workgroup id -> head h (8 workgroups each) and role 0..7.
;             (online softmax, running true maximum); the last ~16 % of each head goes out by ticket for load balance.
'''

def gen(P):
    a = Asm()
    NST = 8
    PW = P.get('pw', 3)
    SLOW = {int(k): v for k, v in P.get('slow', {1: 0, 3: 1}).items()}
    STAMP = P.get('stamp', 0); MST = P.get('mst', 0)
    SPIN = P.get('spin', 400000)
    NLK = P.get('nlk', 2)
    NF = 6 + NLK
    SN = P.get('sn', 228); SQ = P.get('sq', 196)
    SX = P.get('sx', SN - 12)
    SM = P.get('sm', SN)
    NSTAT = 3*SQ + 2*SN + 2*SM + SX
    MB = P.get('mb', 160)
    assert NSTAT <= NUNITS and max(SN, SQ) <= 256 and SN >= 12*NF + 32 and SQ >= 32
    MS = P.get('ms', 0)
    PD = P.get('pd', 1); PDF = P.get('pdf', 2)
    TRIG = RTRIG = MTRIG = NST; W2E = 1; IND = 0; HN = 0; JIT = 0
    LD = P.get('ld', 'nt'); TLD = P.get('tld', ''); XLD = P.get('xld', LD); KLD = P.get('kld', LD); VLD = P.get('vld', LD)

    vL, vOFF = 0, 1
    vT = list(range(2, 10))
    vQ = 10
    vM, vLS = 22, 23
    vACC = 24
    vAK, vAV = 48, 60
    vB = [72, 96]
    vU = 120
    vTK = 127
    vSC = 8

    def stamp(k, cond_wave=None, r=None):
        if not STAMP: return
        a(f"""s_memrealtime s[92:93]
        s_waitcnt lgkmcnt(0)
        v_writelane_b32 v126, s92, {k}""")

    def rbf(d, s):
        a(f"v_cvt_pk_bf16_f32 v{d}, v{s}, v{s}\nv_and_b32 v{d}, s7, v{d}")

    def dpp(op, d, s0, s1, ctl):
        a(f"{op}_dpp v{d}, v{s0}, v{s1} {ctl} row_mask:0xf bank_mask:0xf")

    def red8(op, x):
        dpp(op, x, x, x, "quad_perm:[1,0,3,2]"); dpp(op, x, x, x, "quad_perm:[2,3,0,1]"); dpp(op, x, x, x, "row_half_mirror")
    def red16(op, xs):
        for ctl in ("quad_perm:[1,0,3,2]", "quad_perm:[2,3,0,1]", "row_half_mirror", "row_mirror"):
            for x in xs: dpp(op, x, x, x, ctl)
    def red_hi(op, xs, ts, bits=(4, 5)):
        for b in bits:
            sw = 'v_permlane16_swap_b32' if b == 4 else 'v_permlane32_swap_b32'
            for x, t in zip(xs, ts): a(f"v_mov_b32 v{t}, v{x}")
            for x, t in zip(xs, ts): a(f"{sw} v{x}, v{t}")
            for x, t in zip(xs, ts): a(f"{op} v{x}, v{x}, v{t}")
    def rs_step(bit, pairs):
        sw = 'v_permlane16_swap_b32' if bit == 4 else 'v_permlane32_swap_b32'
        for x, y in pairs: a(f"{sw} v{x}, v{y}")
        for x, y in pairs: a(f"v_add_f32 v{x}, v{x}, v{y}")

    def spin_tail(lab_retry, slp=1):
        done = a.newlabel('GD')
        a(f"""s_cbranch_vccz {done}
        s_add_u32 s67, s67, 1
        s_cmp_gt_u32 s67, {SPIN}
        s_cbranch_scc1 L_end
        s_sleep {slp}
        s_branch {lab_retry}""")
        a.label(done)

    def tile_dots(acc, tile, nrb, chi, clo):
        for rb in range(nrb):
            for d in range(4):
                a(f"v_dot2c_f32_bf16 v{acc+2*d}, v{tile+4*rb+d}, v{clo[rb]}")
                a(f"v_dot2c_f32_bf16 v{acc+2*d+1}, v{tile+4*rb+d}, v{chi[rb]}")
    def tile_reduce8(acc, sel):
        rs_step(5, [(acc+i, acc+4+i) for i in range(4)])
        rs_step(4, [(acc+i, acc+2+i) for i in range(2)])
        dpp('v_add_f32', acc, acc, acc, 'row_ror:8'); dpp('v_add_f32', acc+1, acc+1, acc+1, 'row_ror:8')
        a(f"v_cndmask_b32 v{acc}, v{acc}, v{acc+1}, {sel}")
    def tile_reduce4(acc):
        rs_step(5, [(acc+i, acc+4+i) for i in range(4)])
        rs_step(4, [(acc+i, acc+2+i) for i in range(2)])
        for ctl in ('row_ror:8', 'row_ror:4'):
            dpp('v_add_f32', acc, acc, acc, ctl); dpp('v_add_f32', acc+1, acc+1, acc+1, ctl)

    def loadK(r):
        for j in range(3): a(f"buffer_load_dwordx4 v[{r+4*j}:{r+4*j+3}], v{vOFF}, s[44:47], s62 offen offset:{128*j} {KLD}")
    def loadV(r):
        for j in range(3): a(f"buffer_load_dwordx4 v[{r+4*j}:{r+4*j+3}], v{vOFF}, s[48:51], s62 offen offset:{128*j} {VLD}")
    def ticket(prog=False):
        if JIT: return
        a("s_mov_b64 exec, 1")
        if prog and HN: a(f"ds_max_u32 v{vU+4}, v{vTK} offset:{L_PROG}")
        a(f"""global_atomic_add v{vTK}, v{vU+4}, v{vU+5}, s[60:61] sc0
        s_mov_b64 exec, -1""")
    def qk_dots(K):
        t0, t1, t2 = vT[0], vT[1], vT[2]
        a(f"v_mov_b32 v{t0}, 0\nv_mov_b32 v{t1}, 0\nv_mov_b32 v{t2}, 0")
        for r in range(4):
            for j in range(3):
                a(f"v_dot2c_f32_bf16 v{vT[j]}, v{K+4*j+r}, v{vQ+4*j+r}")
    def softmax(last=False, scored=False):
        t0, t1, t2, t3, p, al = vT[0], vT[1], vT[2], vT[3], vT[4], vU+2
        if not scored:
            a(f"v_add_f32 v{t0}, v{t0}, v{t1}\nv_add_f32 v{t0}, v{t0}, v{t2}")
            red8('v_add_f32', t0)
            rbf(t0, t0)
            a(f"v_mul_f32 v{t0}, s43, v{t0}")
            rbf(t0, t0)
        a(f"v_max_f32 v{t1}, v{vM}, v{t0}")
        if last:
            dpp('v_max_f32', t1, t1, t1, 'row_ror:8')
            red_hi('v_max_f32', [t1], [t2])
        a(f"""v_sub_f32 v{t2}, v{vM}, v{t1}
        v_sub_f32 v{t3}, v{t0}, v{t1}
        v_mul_f32 v{t2}, s42, v{t2}
        v_mul_f32 v{t3}, s42, v{t3}
        v_exp_f32 v{al}, v{t2}
        v_exp_f32 v{p}, v{t3}
        v_mov_b32 v{vM}, v{t1}
        v_fma_f32 v{vLS}, v{vLS}, v{al}, v{p}""")
        if last:
            dpp('v_add_f32', vLS, vLS, vLS, 'row_ror:8')
            red_hi('v_add_f32', [vLS], [t2])
            a(f"""s_lshl_b32 s8, s3, 3
            v_mov_b32 v{t2}, s8
            v_mov_b32 v{t0}, 0
            v_mov_b32 v{t1}, 1
            s_mov_b64 exec, 1
            ds_write_b64 v{t2}, v[{vM}:{vLS}] offset:{L_ML-32}
            ds_add_u32 v{t0}, v{t1} offset:{L_FLAG+4}
            s_mov_b64 exec, -1""")
        for i in range(12):
            r = vACC + 2*i
            a(f"v_pk_mul_f32 v[{r}:{r+1}], v[{r}:{r+1}], v[{al}:{al+1}] op_sel_hi:[1,0]")
    def lds_wait(off, val, lab, slp, cmp='ge', vz=4, vd=5):
        top = a.newlabel('LW'); a.label(top)
        a(f"""ds_read_b32 v{vd}, v{vz} offset:{off}
        s_waitcnt lgkmcnt(0)
        v_readfirstlane_b32 s8, v{vd}
        s_cmp_ge_u32 s8, {val}
        s_cbranch_scc1 {lab}
        s_add_u32 s67, s67, 1
        s_cmp_gt_u32 s67, {SPIN*8}
        s_cbranch_scc1 L_end""")
        if slp: a(f"s_sleep {slp}")
        a(f"s_branch {top}")
    def part_addr():
        a(f"""v_lshrrev_b32 v52, 3, v0
        v_and_b32 v53, 7, v0
        v_mul_u32_u24 v52, 3, v52
        s_mul_i32 s8, s3, 768
        s_add_u32 s8, s8, {L_PART-4*768}
        v_lshl_add_u32 v53, v53, 5, s8
        s_mov_b32 s12, 0xff00ff00
        s_mov_b32 s13, 0xff00ff00""")
        for i in range(3):
            a(f"""v_add_u32 v54, {i}, v52
            v_lshrrev_b32 v55, 3, v54
            v_and_b32 v54, 7, v54
            v_lshl_add_u32 v55, v55, 8, v53
            v_lshl_add_u32 v{48+i}, v54, 2, v55""")
        a("v_mov_b32 v52, 0\nv_mov_b32 v53, 1")
    def part_write():
        for i in range(12): a(f"v_permlane32_swap_b32 v{vACC+i}, v{vACC+12+i}")
        for i in range(0, 12, 2): a(f"v_pk_add_f32 v[{vACC+i}:{vACC+i+1}], v[{vACC+i}:{vACC+i+1}], v[{vACC+12+i}:{vACC+13+i}]")
        for i in range(6): a(f"v_permlane16_swap_b32 v{vACC+i}, v{vACC+6+i}")
        for i in range(0, 6, 2): a(f"v_pk_add_f32 v[{vACC+i}:{vACC+i+1}], v[{vACC+i}:{vACC+i+1}], v[{vACC+6+i}:{vACC+7+i}]")
        for i in range(6): dpp('v_add_f32', vACC+i, vACC+i, vACC+i, 'row_ror:8')
        for i in range(3): a(f"v_cndmask_b32 v{vACC+i}, v{vACC+i}, v{vACC+3+i}, s[12:13]")
        for i in range(3): a(f"ds_write_b32 v{48+i}, v{vACC+i}")
        a(f"""s_mov_b64 exec, 1
        ds_add_u32 v52, v53 offset:{L_FLAG+8}
        s_mov_b64 exec, -1""")
    def nan_retry(regs, raw, lab, tmp, masked=False):
        done = a.newlabel('NR')
        if len(regs) == 1: a(f"v_cmp_u_f32 vcc, v{regs[0]}, v{regs[0]}")
        elif len(regs) == 2: a(f"v_cmp_u_f32 vcc, v{regs[0]}, v{regs[1]}")
        else: a(f"v_add_f32 v{tmp}, v{regs[0]}, v{regs[1]}\nv_cmp_u_f32 vcc, v{tmp}, v{regs[2]}")
        a(f"s_cbranch_vccz {done}")
        if masked: a("s_mov_b64 s[68:69], vcc")
        a(f"""s_add_u32 s67, s67, 1
        s_and_b32 s8, s67, 15
        s_cbranch_scc1 {lab}
        s_cmp_gt_u32 s67, {SPIN}
        s_cbranch_scc1 L_end
        s_cmp_eq_u32 s63, 1
        s_cbranch_scc1 {done}""")
        a(f"v_mov_b32 v{tmp}, v{raw[0]}")
        for i in range(1, len(raw), 2):
            if i+1 < len(raw): a(f"v_max3_u32 v{tmp}, v{tmp}, v{raw[i]}, v{raw[i+1]}")
            else: a(f"v_max_u32 v{tmp}, v{tmp}, v{raw[i]}")
        a(f"""v_cmp_eq_u32 vcc, -1, v{tmp}
        s_cbranch_vccnz {lab}
        s_mov_b32 s63, 1
        s_branch {lab}""")
        a.label(done)
    def pv(V):
        p = vT[4]
        for i in range(12):
            t = vU + 2*(i & 1)
            r = vACC + 2*i
            a(f"""v_lshlrev_b32 v{t}, 16, v{V+i}
            v_and_b32 v{t+1}, s7, v{V+i}
            v_pk_fma_f32 v[{r}:{r+1}], v[{t}:{t+1}], v[{p}:{p+1}], v[{r}:{r+1}] op_sel_hi:[1,0,1]""")

    if STAMP: a("s_memrealtime s[98:99]\nv_mov_b32 v126, 0\ns_mov_b32 s95, 0")
    if P.get('dbgt'): a("s_memrealtime s[98:99]")
    a(f"""s_cmp_ge_u32 s2, 256
    s_cbranch_scc1 L_exit
    s_load_dwordx16 s[16:31], s[0:1], 0
    s_load_dwordx8 s[32:39], s[0:1], 64
    s_load_dwordx2 s[40:41], s[0:1], 96
    v_lshrrev_b32 v1, 6, v0
    v_readfirstlane_b32 s3, v1
    v_and_b32 v0, 63, v0""")
    if P.get('warm', 0):
        a(f"""s_cmp_ge_u32 s2, {P.get('warmwg', 16)}
        s_cbranch_scc1 L_nowarm
        s_cmp_lg_u32 s3, 15
        s_cbranch_scc1 L_nowarm
        s_getpc_b64 s[52:53]""")
        a.label("L_pc")
        a(f"""s_sub_u32 s52, s52, L_pc-{KN}
        s_subb_u32 s53, s53, 0
        s_mov_b32 s54, L_exit+4-{KN}
        s_mov_b32 s55, 0x20000
        v_lshlrev_b32 v5, 4, v0""")
        for i in range(P.get('warm')):
            a(f"s_mov_b32 s8, {1024*i}\nbuffer_load_dwordx4 v[120:123], v5, s[52:55], s8 offen")
        a.label("L_nowarm")
    a(f"""s_lshr_b32 s4, s2, 3
    s_lshl_b32 s5, s2, 2
    s_add_u32 s4, s4, s5
    s_and_b32 s4, s4, 31
    s_lshr_b32 s5, s2, 5
    s_mov_b32 s7, 0xffff0000
    s_mov_b32 s42, {hex(f2u(math.log2(math.e)))}
    s_mov_b32 s43, {hex(f2u(192 ** -0.5))}
    s_mov_b32 s67, 0
    s_mov_b32 s63, 0
    v_lshrrev_b32 v2, 3, v0
    v_and_b32 v3, 7, v0
    v_mul_u32_u24 v1, 384, v2
    v_lshl_add_u32 v1, v3, 4, v1
    s_mul_i32 s8, s4, {HEADB}
    s_mov_b32 s46, {HEADB}
    s_mov_b32 s47, 0x20000
    s_mov_b32 s50, {HEADB}
    s_mov_b32 s51, 0x20000
    s_mov_b32 s55, 0x20000
    s_mov_b32 s59, 0x20000
    s_mul_i32 s9, s4, {CNT_STRIDE}
    s_add_u32 s9, s9, {WS_CNT}
    v_mov_b32 v4, 0
    v_mov_b32 v5, 0
    v_mov_b32 v6, 0
    v_mov_b32 v7, 0
    ds_write_b128 v4, v[4:7] offset:{L_FLAG}
    ds_write_b128 v4, v[4:7] offset:{L_ZERO}
    s_cmp_lt_u32 s5, 3
    s_cselect_b32 s10, 16, {12*NF + 16}
    v_mov_b32 v8, s10
    v_mov_b32 v9, 16
    ds_write_b64 v4, v[8:9] offset:{L_KF}
    v_mov_b32 v10, -1
    v_mov_b32 v11, -1
    v_lshlrev_b32 v12, 3, v0
    v_lshl_add_u32 v12, s3, 9, v12
    v_add_u32 v12, {L_SC}, v12
    ds_write_b64 v12, v[10:11]
    s_waitcnt lgkmcnt(0)
    s_barrier""")
    if STAMP: a("v_writelane_b32 v126, s98, 22")
    stamp(23)
    a(f"""s_add_u32 s44, s18, s8
    s_addc_u32 s45, s19, 0
    s_add_u32 s48, s20, s8
    s_addc_u32 s49, s21, 0
    s_add_u32 s60, s40, s9
    s_addc_u32 s61, s41, 0
    s_load_dword s6, s[40:41], {WS_EPOCH}
    s_mov_b32 s12, 0xff00ff00
    s_mov_b32 s13, 0xff00ff00
    s_cmp_lt_u32 s5, 3
    s_cbranch_scc1 L_qtile
    s_lshr_b32 s9, s2, 3
    s_and_b32 s8, s9, 3
    s_cmp_eq_u32 s8, 3
    s_cbranch_scc1 L_roles
    s_sub_u32 s9, s5, 3
    s_mul_i32 s9, s9, 3
    s_add_u32 s9, s9, s8
    s_cmp_ge_u32 s9, 10
    s_cbranch_scc1 L_roles""")
    TILE = 48; CH = 24; CL = 30; TA = 40
    def tile_loads(stride, n=5):
        a(f"""s_mul_i32 s10, s3, {8*n*stride}
        v_mul_u32_u24 v4, {stride}, v2
        v_lshl_add_u32 v4, v3, 4, v4""")
        for t in range(n):
            a(f"buffer_load_dwordx4 v[{TILE+4*t}:{TILE+4*t+3}], v4, s[52:55], s10 offen {LD}")
            if t < n-1: a(f"s_add_u32 s10, s10, {8*stride}")
    def tile_finish(n=5, nwv=16, join=None):
        tile_dots(TA, TILE, n, [CH+t for t in range(n)], [CL+t for t in range(n)])
        tile_reduce8(TA, 's[12:13]')
        a(f"""ds_write_b32 v5, v{TA} offset:{L_TP}""")
        stamp(20)
        if join: a.label(join)
        a(f"""s_waitcnt vmcnt(0) lgkmcnt(0)
        s_barrier""")
        stamp(21)
        a(f"""s_cmp_lg_u32 s3, 0
        s_cbranch_scc1 L_tilebar
        v_lshlrev_b32 v5, 2, v0
        v_add_u32 v5, {L_TP}, v5""")
        for k in range(nwv//2): a(f"ds_read2st64_b32 v[{24+2*k}:{25+2*k}], v5 offset0:{2*k} offset1:{2*k+1}")
        for k in range(nwv//2):
            a(f"s_waitcnt lgkmcnt({nwv//2-1-k})")
            a(f"v_add_f32 v{24+2*k}, v{24+2*k}, v{25+2*k}")
            if k & 1: a(f"v_add_f32 v{22+2*k}, v{22+2*k}, v{24+2*k}")
        tops = [24+4*k for k in range((nwv//2+1)//2)]
        while len(tops) > 1:
            nxt = []
            for i in range(0, len(tops)-1, 2):
                a(f"v_add_f32 v{tops[i]}, v{tops[i]}, v{tops[i+1]}"); nxt.append(tops[i])
            if len(tops) & 1: nxt.append(tops[-1])
            tops = nxt
    def tile_ldsaddr():
        a(f"""v_lshl_add_u32 v5, v3, 3, v2
        s_lshl_b32 s8, s3, 8
        v_lshl_add_u32 v5, v5, 2, s8""")
        for i in range(8): a(f"v_mov_b32 v{TA+i}, 0")
    a.label("L_modtile")
    a(f"""s_lshl_b32 s9, s9, 3
    s_and_b32 s8, s2, 7
    s_add_u32 s9, s9, s8
    s_cmp_ge_u32 s3, 10
    s_cbranch_scc1 L_poison
    s_lshr_b32 s11, s9, 2
    s_and_b32 s15, s9, 3
    s_lshl_b32 s14, s11, 7
    s_mul_i32 s8, s15, {160*7680}
    s_add_u32 s14, s14, s8
    s_add_u32 s52, s34, s14
    s_addc_u32 s53, s35, 0
    s_sub_u32 s54, {640*7680}, s14
    s_mul_i32 s14, s15, 320
    s_lshl_b32 s8, s3, 5
    s_add_u32 s14, s14, s8
    v_lshl_add_u32 v7, v2, 1, s14""")
    for t in range(2): a(f"global_load_ushort v{CH+t}, v7, s[32:33] offset:{16*t}")
    tile_loads(7680, 2)
    tile_ldsaddr()
    a(f"""s_mul_i32 s14, s15, 10240
    s_lshl_b32 s8, s11, 9
    s_add_u32 s14, s14, s8
    s_add_u32 s14, s14, {WS_G1}
    v_lshl_add_u32 v6, v0, 3, s14
    s_waitcnt vmcnt(2)""")
    for t in range(2):
        x, u = CH+t, CL+t
        a(f"""v_lshlrev_b32 v{x}, 16, v{x}
        v_mul_f32 v{u}, s42, v{x}
        v_exp_f32 v{u}, -v{u}
        v_add_f32 v{u}, 1.0, v{u}
        v_rcp_f32 v{u}, v{u}
        v_mul_f32 v{x}, v{x}, v{u}""")
        rbf(x, x)
        a(f"v_lshrrev_b32 v{u}, 16, v{x}")
    a("s_waitcnt vmcnt(0)")
    stamp(19)
    tile_finish(2, 10, "L_modjoin")
    a(f"""s_add_u32 s8, s6, {hex(TAGC)}
    v_mov_b32 v25, s8
    global_store_dwordx2 v6, v[24:25], s[40:41] sc1""")
    stamp(6)
    a("s_branch L_tilebar")
    a.label("L_poison")
    a(f"""s_mul_i32 s14, s9, 6
    s_add_u32 s14, s14, s3
    s_lshl_b32 s14, s14, 10
    s_add_u32 s14, s14, {WS_G3 - 10*1024}
    v_lshl_add_u32 v6, v0, 4, s14
    v_mov_b32 v88, -1
    v_mov_b32 v89, -1
    v_mov_b32 v90, -1
    v_mov_b32 v91, -1
    global_store_dwordx4 v6, v[88:91], s[40:41] sc1
    s_cmp_lg_u32 s3, 15
    s_cbranch_scc1 L_modjoin
    s_cmp_lg_u32 s9, 40
    s_cbranch_scc1 L_noboard
    v_lshlrev_b32 v6, 8, v0
    v_add_u32 v6, {WS_BOARD}, v6
    v_mov_b32 v8, 0
    global_store_dword v6, v8, s[40:41] sc1""")
    a.label("L_noboard")
    a(f"""s_cmp_ge_u32 s9, 40
    s_cbranch_scc1 L_modjoin
    s_mul_i32 s14, s9, {CNT_STRIDE}
    s_add_u32 s14, s14, {WS_CNT}
    v_mov_b32 v6, s14
    v_mov_b32 v8, 0
    s_mov_b64 exec, 1
    global_store_dword v6, v8, s[40:41] sc1
    s_mov_b64 exec, -1
    s_branch L_modjoin""")
    a.label("L_qtile")
    a(f"""s_mul_i32 s8, s4, 384
    s_lshl_b32 s9, s5, 7
    s_add_u32 s8, s8, s9
    s_add_u32 s52, s22, s8
    s_addc_u32 s53, s23, 0
    s_sub_u32 s54, {640*12288}, s8
    v_lshlrev_b32 v5, 2, v0
    s_mul_i32 s14, s3, 40
    v_add_u32 v8, s14, v3
    v_lshlrev_b32 v7, 1, v8""")
    for t in range(5): a(f"global_load_dword v{70+t}, v5, s[16:17] offset:{256*t}")
    for t in range(5): a(f"global_load_ushort v{CL+t}, v7, s[16:17] offset:{16*t}")
    tile_loads(12288)
    a("s_barrier")
    a(f"""v_lshlrev_b32 v8, 3, v8
    v_and_b32 v9, 3, v2
    v_mul_u32_u24 v9, 10240, v9
    v_add_u32 v8, v8, v9
    v_lshrrev_b32 v9, 5, v0
    v_mul_u32_u24 v9, 5120, v9
    v_add_u32 v8, v8, v9
    v_add_u32 v8, {WS_G1}, v8
    v_lshlrev_b32 v9, 2, v2""")
    tile_ldsaddr()
    a(f"""v_lshrrev_b32 v10, 1, v0
    v_mul_u32_u24 v11, 43, v10
    v_lshrrev_b32 v11, 7, v11
    v_add_u32 v11, v11, v10
    v_lshlrev_b32 v11, 2, v11
    v_lshlrev_b32 v10, 4, v10
    v_add_u32 v10, 12, v10
    v_and_b32 v12, 1, v0
    v_cmp_eq_u32 s[14:15], 1, v12
    s_mul_i32 s8, s4, 768
    s_lshl_b32 s9, s5, 8
    s_add_u32 s8, s8, s9
    s_add_u32 s8, s8, {WS_GQ}
    v_cndmask_b32 v10, v11, v10, s[14:15]
    v_add_u32 v10, s8, v10
    s_waitcnt vmcnt(5)""")
    for t in range(5):
        a(f"v_lshlrev_b32 v{76+2*t}, 16, v{70+t}\nv_and_b32 v{77+2*t}, s7, v{70+t}")
    a("v_add_f32 v70, v76, v77")
    for i in range(2, 10): a(f"v_add_f32 v70, v70, v{76+i}")
    red16('v_add_f32', [70]); red_hi('v_add_f32', [70], [71])
    a(f"v_mul_f32 v70, {hex(f2u(1/640))}, v70")
    a("v_mov_b32 v72, 0")
    for i in range(10): a(f"v_sub_f32 v{76+i}, v{76+i}, v70\nv_fmac_f32 v72, v{76+i}, v{76+i}")
    red16('v_add_f32', [72]); red_hi('v_add_f32', [72], [71])
    a(f"v_mul_f32 v72, {hex(f2u(1/640))}, v72")
    rbf(70, 70); rbf(72, 72)
    a(f"v_add_f32 v72, {hex(f2u(1e-5))}, v72")
    rbf(72, 72)
    a("v_sqrt_f32 v72, v72")
    rbf(72, 72)
    a("v_rcp_f32 v72, v72")
    for t in range(5):
        r = CL+t
        a(f"v_lshlrev_b32 v{r}, 16, v{r}\nv_sub_f32 v{r}, v{r}, v70")
        rbf(r, r)
        a(f"v_mul_f32 v{r}, v{r}, v72")
        rbf(r, r)
    a(f"s_waitcnt lgkmcnt(0)\ns_add_u32 s11, s6, {hex(TAGC)}")
    stamp(2, 0, 108)
    GG = 88
    lab = a.newlabel('GM'); a.label(lab)
    for t in range(5):
        a(f"global_load_dwordx2 v[{GG+2*t}:{GG+2*t+1}], v8, s[40:41] offset:{64*t} sc1")
    a("s_waitcnt vmcnt(0)")
    a(f"v_xor_b32 v70, s11, v{GG+1}")
    for k in range(1, 5): a(f"v_bitop3_b32 v70, v70, v{GG+2*k+1}, s11 bitop3:0xf6")
    a("v_cmp_ne_u32 vcc, 0, v70")
    spin_tail(lab, P.get('gmslp', 2))
    stamp(3)
    xs = [GG+2*t for t in range(5)]; ys = [GG+2*t+1 for t in range(5)]
    for x in xs: dpp('v_add_f32', x, x, x, 'row_ror:8')
    red_hi('v_add_f32', xs, ys, bits=(4,))
    for x in xs: rbf(x, x)
    for x, y in zip(xs, ys): a(f"v_mov_b32 v{y}, v{x}")
    for x, y in zip(xs, ys): a(f"v_permlane32_swap_b32 v{x}, v{y}")
    for y in ys: a(f"v_add_f32 v{y}, 1.0, v{y}")
    for y in ys: rbf(y, y)
    for t in range(5): a(f"v_mul_f32 v{ys[t]}, v{CL+t}, v{ys[t]}")
    for y in ys: rbf(y, y)
    for x, y in zip(xs, ys): a(f"v_add_f32 v{y}, v{y}, v{x}")
    for y in ys: a(f"v_cvt_pk_bf16_f32 v{y}, v{y}, 0")
    for t in range(5): a(f"ds_bpermute_b32 v{CL+t}, v9, v{ys[t]}")
    for t in range(5): a(f"s_waitcnt lgkmcnt({4-t})\nv_lshlrev_b32 v{CH+t}, 16, v{CL+t}")
    tile_finish()
    a(f"""v_mov_b32_dpp v25, v24 quad_perm:[1,0,3,2] row_mask:0xf bank_mask:0xf
    v_mov_b32 v26, s11
    v_cvt_pk_bf16_f32 v24, v24, v25
    v_cndmask_b32 v24, v24, v26, s[14:15]
    s_mov_b32 exec_lo, 0x557fffff
    s_mov_b32 exec_hi, 0x55555555
    global_store_dword v10, v24, s[40:41] sc1
    s_mov_b64 exec, -1""")
    stamp(4, 0, 108)
    a.label("L_tilebar")
    a("s_barrier")
    a.label("L_roles")
    a(f"""s_cmp_lt_u32 s3, 4
    s_cbranch_scc1 L_chain""")
    slots = [vAK, vAV, vB[0], vB[0]+12, vB[1], vB[1]+12]
    def ld3(r, srd, soff, pol):
        for j in range(3): a(f"buffer_load_dwordx4 v[{r+4*j}:{r+4*j+3}], v{vOFF}, s[{srd}:{srd+3}], s{soff} offen offset:{128*j} {pol}")
    a(f"""s_sub_u32 s9, s3, 4
    v_lshlrev_b32 v{vSC}, 2, v2
    v_add_u32 v{vSC}, {L_SC}, v{vSC}
    s_cmp_ge_u32 s5, 3
    s_cbranch_scc1 L_fill
    s_cmp_ge_u32 s3, {4+NST}
    s_cbranch_scc1 L_retired
    s_mul_i32 s64, s5, {SQ*3072}
    s_mov_b32 s65, {SQ}
    s_mul_i32 s62, s9, 3072
    s_add_u32 s62, s62, s64
    s_lshl_b32 s74, s9, 5
    s_add_u32 s75, s74, 256""")
    ld3(vAK, 44, 62, KLD)
    a(f"s_add_u32 s62, s62, {NST*3072}")
    ld3(vAV, 44, 62, KLD)
    a("s_branch L_filled")
    a.label("L_fill")
    a(f"""s_mul_i32 s64, s5, {SN*3072}
    s_add_u32 s64, s64, {(3*SQ - 3*SN)*3072}
    s_mul_i32 s8, s5, {SM*3072}
    s_add_u32 s8, s8, {(3*SQ + 2*SN - 5*SM)*3072}
    s_movk_i32 s65, {SN}
    s_cmp_ge_u32 s5, 5
    s_cselect_b32 s64, s8, s64
    s_cselect_b32 s65, {SM}, s65
    s_cmp_eq_u32 s5, 7
    s_cselect_b32 s65, {SX}, s65
    s_mul_i32 s62, s9, 3072
    s_add_u32 s62, s62, s64
    s_lshl_b32 s74, s9, 5
    v_add_u32 v{vSC+1}, s74, v{vSC}
    s_add_u32 s74, s74, {12*NF*32}
    s_add_u32 s75, s74, 256
    s_mul_i32 s11, s9, {3072*NLK}""")
    stamp(0)
    issued = 0
    for k in range(NF):
        for j in range(3):
            if issued in SLOW: a(f"s_waitcnt vmcnt({SLOW[issued]})")
            elif issued >= PW: a(f"s_waitcnt vmcnt({PW-1})")
            if k < 6:
                r = slots[k] + 4*j
                a(f"buffer_load_dwordx4 v[{r}:{r+3}], v{vOFF}, s[44:47], s62 offen offset:{128*j} {KLD}")
            else:
                a(f"s_add_u32 m0, s11, {L_W + 3072*(k-6) + 896*j}")
                a(f"buffer_load_dwordx4 v{vOFF}, s[44:47], s62 offen offset:{128*j} {KLD} lds")
            issued += 1
        a(f"s_add_u32 s62, s62, {12*3072}")
    a.label("L_filled")
    a("v_mov_b32 v4, 0")
    stamp(1)
    lds_wait(L_FLAG, 3, "L_qready", 1)

    a.label("L_chain")
    a(f"""s_cmp_eq_u32 s3, 3
    s_cbranch_scc1 L_xwave
    s_setprio 2
    s_mul_i32 s8, s4, 768
    s_lshl_b32 s9, s3, 8
    s_add_u32 s8, s8, s9
    s_add_u32 s8, s8, {WS_GQ}
    s_add_u32 s60, s40, s8
    s_addc_u32 s61, s41, 0
    v_lshlrev_b32 v5, 2, v0
    v_lshl_add_u32 v5, s3, 7, v5
    v_mov_b32 v6, 0
    v_mov_b32 v7, 1
    s_waitcnt lgkmcnt(0)
    s_add_u32 s88, s6, {hex(TAGC)}""")
    def qreg(k):
        if k < 16: return 44 + k
        if k < 32: return 68 + k - 16
        if k < 40: return 8 + k - 32
        return 84 + k - 40
    a.label("L_qpoll")
    a(f"""s_load_dwordx16 s[44:59], s[60:61], 0 glc
    s_load_dwordx16 s[68:83], s[60:61], 64 glc
    s_load_dwordx8 s[8:15], s[60:61], 128 glc
    s_load_dwordx4 s[84:87], s[60:61], 160 glc
    s_waitcnt lgkmcnt(0)
    s_xor_b32 s89, s{qreg(3)}, s88""")
    for g in range(1, 11): a(f"s_xor_b32 s90, s{qreg(4*g+3)}, s88\ns_or_b32 s89, s89, s90")
    a(f"""s_cbranch_scc0 L_qgot
    s_add_u32 s67, s67, 1
    s_cmp_gt_u32 s67, {SPIN}
    s_cbranch_scc1 L_end
    s_sleep 2
    s_branch L_qpoll""")
    a.label("L_qgot")
    for i in range(32): a(f"v_writelane_b32 v4, s{qreg(4*(i//3) + i%3)}, {i}")
    a(f"""s_mov_b32 exec_hi, 0
    ds_write_b32 v5, v4 offset:{L_Q}
    s_mov_b64 exec, 1
    ds_add_u32 v6, v7 offset:{L_FLAG}
    s_mov_b64 exec, -1""")
    stamp(5, 0, 44)
    a("s_branch L_tail")

    a.label("L_xwave")
    XT = 48; XG = 88
    a(f"""s_cmp_lt_u32 s2, 216
    s_cbranch_scc1 L_tail
    s_sub_u32 s9, s2, 196""")
    a.label("L_xrest")
    a(f"""v_mul_u32_u24 v4, 7680, v2
    v_lshl_add_u32 v4, v3, 4, v4
    s_lshl_b32 s14, s9, 7
    s_add_u32 s52, s34, s14
    s_addc_u32 s53, s35, 0
    s_sub_u32 s54, {640*7680}, s14
    s_mov_b32 s10, 0
    s_mov_b32 s11, 0
    v_lshlrev_b32 v7, 1, v2
    v_mov_b32 v6, 0""")
    for i in range(8): a(f"v_mov_b32 v{XG+i}, 0")
    lds_wait(L_FLAG, 3, "L_xrloop", 4, vz=6)
    a.label("L_xrloop")
    for rb in range(10): a(f"global_load_ushort v{24+rb}, v7, s[32:33] offset:{16*rb}")
    for rb in range(10):
        a(f"buffer_load_dwordx4 v[{XT+4*rb}:{XT+4*rb+3}], v4, s[52:55], s10 offen {XLD}")
        a(f"s_add_u32 s10, s10, {8*7680}")
    a("s_waitcnt vmcnt(10)")
    for rb in range(10):
        x, t = 24+rb, 34+rb
        a(f"""v_lshlrev_b32 v{x}, 16, v{x}
        v_mul_f32 v{t}, s42, v{x}
        v_exp_f32 v{t}, -v{t}
        v_add_f32 v{t}, 1.0, v{t}
        v_rcp_f32 v{t}, v{t}
        v_mul_f32 v{x}, v{x}, v{t}""")
        rbf(x, x)
        a(f"v_lshrrev_b32 v{t}, 16, v{x}")
    a("s_waitcnt vmcnt(0)")
    tile_dots(XG, XT, 10, [24+rb for rb in range(10)], [34+rb for rb in range(10)])
    a(f"""v_add_u32 v7, 160, v7
    s_add_u32 s11, s11, 1
    s_cmp_lt_u32 s11, 8
    s_cbranch_scc1 L_xrloop""")
    tile_reduce8(XG, 's[12:13]')
    rbf(XG, XG)
    a(f"""s_lshl_b32 s9, s9, 9
    s_add_u32 s9, s9, {WS_GM}
    s_add_u32 s8, s6, {hex(TAGC)}
    v_lshl_add_u32 v5, v3, 3, v2
    v_lshl_add_u32 v5, v5, 3, s9
    v_mov_b32 v{XG+1}, s8
    global_store_dwordx2 v5, v[{XG}:{XG+1}], s[40:41] sc1""")
    stamp(7, 3, 44)
    a("s_branch L_tail")

    def read_q_init():
        a(f"""v_lshlrev_b32 v4, 4, v3
        ds_read_b128 v[{vQ}:{vQ+3}], v4 offset:{L_Q}
        ds_read_b128 v[{vQ+4}:{vQ+7}], v4 offset:{L_Q+128}
        ds_read_b128 v[{vQ+8}:{vQ+11}], v4 offset:{L_Q+256}
        v_mov_b32 v{vM}, 0xff7fffff
        v_mov_b32 v{vLS}, 0
        v_mov_b32 v{vU+4}, 0
        v_mov_b32 v{vU+5}, 1""")
        for i in range(24): a(f"v_mov_b32 v{vACC+i}, 0")
        a("s_waitcnt lgkmcnt(0)")

    vLT = 126 if not STAMP else 119
    def score(addr, off=0):
        t0, t1, t2 = vT[0], vT[1], vT[2]
        a(f"v_add_f32 v{t0}, v{t0}, v{t1}\nv_add_f32 v{t0}, v{t0}, v{t2}")
        red8('v_add_f32', t0)
        rbf(t0, t0)
        a(f"v_mul_f32 v{t0}, s43, v{t0}")
        rbf(t0, t0)
        a(f"v_min_u32 v{t0}, -2, v{t0}\nds_write_b32 v{addr}, v{t0} offset:{off}")
    def lticket(which):
        a(f"""s_mov_b64 exec, 1
        ds_add_rtn_u32 v{vLT}, v{vU+4}, v{vU+5} offset:{L_KF + 4*which}
        s_mov_b64 exec, -1""")
    def take(k, out):
        a(f"""s_waitcnt lgkmcnt(0)
        v_readfirstlane_b32 s8, v{vLT}
        s_cmp_ge_u32 s8, s65
        s_cbranch_scc1 {out}
        s_mul_i32 s62, s8, 3072
        s_add_u32 s62, s62, s64
        s_lshl_b32 s{74+k}, s8, 5""")
    def rest_of_buffer(first, extra):
        for k in range(first, 6):
            a(f"s_waitcnt vmcnt({3*(NF-1-k) + extra})")
            qk_dots(slots[k]); score(vSC+1, 384*k)
        if NLK:
            a(f"s_waitcnt vmcnt({extra})\nv_lshl_add_u32 v{vU}, v0, 4, s11")
            for k in range(NLK):
                for j in range(3): a(f"ds_read_b128 v[{vB[0]+12*k+4*j}:{vB[0]+12*k+4*j+3}], v{vU} offset:{L_W + 3072*k + 1024*j}")
            for k in range(NLK):
                a(f"s_waitcnt lgkmcnt({3*(NLK-1-k)})" if k == 0 else "s_waitcnt lgkmcnt(0)")
                qk_dots(vB[0]+12*k); score(vSC+1, 384*(6+k))
    a.label("L_qready")
    read_q_init()
    stamp(8)
    a(f"""s_cmp_ge_u32 s3, {4+NST}
    s_cbranch_scc1 L_catch2
    s_cmp_lt_u32 s5, 3
    s_cbranch_scc1 L_kgo""")
    for k in range(2):
        a(f"s_waitcnt vmcnt({3*(NF-1)})")
        qk_dots(slots[k])
        ld3(slots[k], 44, 62, KLD)
        if k == 0: a(f"s_add_u32 s62, s62, {NST*3072}")
        score(vSC+1, 384*k)
    rest_of_buffer(2, 6)
    stamp(9)
    a.label("L_kgo")
    lticket(0)
    a.label("L_kloop")
    for k in range(2):
        a(f"s_waitcnt vmcnt(3)\nv_add_u32 v{vSC+1}, s{74+k}, v{vSC}")
        qk_dots(slots[k])
        take(k, f"L_kend{k}")
        ld3(slots[k], 44, 62, KLD)
        lticket(0)
        score(vSC+1)
    a("s_branch L_kloop")
    def v_fill(k, i):
        a(f"""s_add_u32 s8, s3, {8*i - 4}
        s_mul_i32 s62, s8, 3072
        s_add_u32 s62, s62, s64
        s_lshl_b32 s{74+k}, s8, 5""")
        ld3(slots[k], 48, 62, VLD)
    for k in range(2):
        a.label(f"L_kend{k}")
        stamp(31)
        v_fill(k, 0)
        score(vSC+1)
        a(f"s_waitcnt vmcnt(3)\nv_add_u32 v{vSC+1}, s{75-k}, v{vSC}")
        qk_dots(slots[1-k])
        v_fill(1-k, 1)
        lticket(1)
        score(vSC+1)
        a(f"s_branch L_v{k}")
    slow = []
    def weigh(k, last=False):
        lab = a.newlabel('SC')
        a(f"v_add_u32 v{vSC+1}, s{74+k}, v{vSC}")
        a.label(lab)
        a(f"""ds_read_b32 v{vT[0]}, v{vSC+1}
        s_waitcnt lgkmcnt(0)
        v_cmp_eq_u32 vcc, -1, v{vT[0]}
        s_cbranch_vccnz {lab}_again""")
        slow.append(lab)
        softmax(last, True)
    for k in range(2):
        a.label(f"L_v{k}")
        weigh(k)
        a("s_waitcnt vmcnt(3)")
        pv(slots[k])
        take(k, f"L_vend{k}")
        ld3(slots[k], 48, 62, VLD)
        lticket(1)
    a("s_branch L_v0")
    def shared_first(none):
        a(f"""s_waitcnt lgkmcnt(0)
        s_add_u32 s8, s8, {NSTAT}
        s_cmp_ge_u32 s8, {NUNITS}
        s_cbranch_scc1 {none}
        s_mul_i32 s62, s8, 3072""")
    a.label("L_vend1")
    a("s_mov_b32 s8, 1\ns_atomic_add s8, s[60:61], 0 glc")
    shared_first("L_vnoneA")
    weigh(0)
    a("s_waitcnt vmcnt(0)")
    pv(vAK)
    ticket(); loadK(vAK); loadV(vAV)
    a("s_branch L_loop")
    a.label("L_vend0")
    a("s_mov_b32 s8, 1\ns_atomic_add s8, s[60:61], 0 glc")
    shared_first("L_vnoneB")
    ticket(); loadK(vAK)
    weigh(1)
    a("s_waitcnt vmcnt(4)")
    pv(vAV)
    loadV(vAV)
    a.label("L_loop")
    if JIT == 2: a("s_waitcnt vmcnt(5)\ns_mov_b32 s8, 1\ns_atomic_add s8, s[60:61], 0 glc")
    a("s_waitcnt vmcnt(3)")
    if JIT == 1: a("s_mov_b32 s8, 1\ns_atomic_add s8, s[60:61], 0 glc")
    if not JIT: a(f"v_readfirstlane_b32 s8, v{vTK}")
    qk_dots(vAK)
    if JIT: a("s_waitcnt lgkmcnt(0)")
    a(f"""s_add_u32 s8, s8, {NSTAT}
    s_cmp_ge_u32 s8, {NUNITS}
    s_cbranch_scc1 L_drain
    s_mul_i32 s62, s8, 3072""")
    if STAMP: a("s_memrealtime s[92:93]\ns_lshr_b32 s94, s8, 7\ns_add_u32 m0, s94, 32\ns_waitcnt lgkmcnt(0)\nv_writelane_b32 v126, s92, m0")
    ticket(True); loadK(vAK)
    softmax()
    a("s_waitcnt vmcnt(4)")
    pv(vAV)
    loadV(vAV)
    a("s_branch L_loop")

    a.label("L_drain")
    a("s_setprio 3")
    stamp(10)
    softmax(last=True)
    a.label("L_drain2")
    part_addr()
    a("s_waitcnt vmcnt(0)")
    pv(vAV)
    a.label("L_drain3")
    stamp(11)
    part_write()
    a("s_branch L_end")

    a.label("L_vnoneB")
    a("s_setprio 3")
    stamp(10)
    weigh(1, True)
    a("s_branch L_drain2")
    a.label("L_vnoneA")
    a("s_setprio 3")
    stamp(10)
    weigh(0, True)
    a("s_waitcnt vmcnt(0)")
    pv(vAK)
    part_addr()
    a("s_branch L_drain3")

    for lab in slow:
        a.label(lab + "_again")
        a(f"""s_add_u32 s67, s67, 1
        s_cmp_gt_u32 s67, {SPIN*8}
        s_cbranch_scc1 L_end
        s_branch {lab}""")

    a.label("L_catch2")
    rest_of_buffer(0, 0)
    a.label("L_retired")
    a(f"""v_mov_b32 v52, 0
    v_mov_b32 v53, 1
    s_cmp_eq_u32 s3, 15
    s_cbranch_scc1 L_fwave""")
    a(f"""s_sub_u32 s9, s3, 12
    s_lshl_b32 s8, s9, 8
    v_lshl_add_u32 v4, v0, 2, s8
    v_and_b32 v11, 7, v0
    v_lshlrev_b32 v11, 3, v11
    v_add_u32 v12, {L_PART}, v4
    s_lshl_b32 s8, s4, 3
    s_add_u32 s8, s8, s5
    s_lshl_b32 s8, s8, 10
    s_add_u32 s8, s8, {WS_G3}
    v_add_u32 v4, s8, v4""")
    lds_wait(L_FLAG+4, 1, "L_cnear", 4, vz=52)
    a.label("L_cnear")
    lds_wait(L_FLAG+4, NST, "L_cml", 0, vz=52)
    a.label("L_cml")
    a(f"""ds_read_b64 v[6:7], v11 offset:{L_ML}
    s_waitcnt lgkmcnt(0)
    v_mov_b32 v8, v6""")
    red8('v_max_f32', 8)
    a(f"""v_sub_f32 v6, v6, v8
    v_mul_f32 v6, s42, v6
    v_exp_f32 v6, v6
    v_mov_b32 v40, 0
    v_mov_b32 v41, 0
    v_mul_f32 v9, v7, v6
    s_setprio 3
    s_cmp_lg_u32 s9, 0
    s_cbranch_scc1 L_cwait""")
    red8('v_add_f32', 9)
    a(f"""v_min_u32 v8, -2, v8
    v_min_u32 v9, -2, v9
    s_mov_b64 exec, 1
    global_store_dwordx2 v4, v[8:9], s[40:41] offset:768 sc1
    s_mov_b64 exec, -1""")
    a.label("L_cwait")
    lds_wait(L_FLAG+8, NST, "L_cgo", 0, vz=52)
    a.label("L_cgo")
    for k in range(4): a(f"ds_read2st64_b32 v[{24+2*k}:{25+2*k}], v12 offset0:{6*k} offset1:{6*k+3}")
    for k in range(8):
        if k % 2 == 0: a(f"s_waitcnt lgkmcnt({3-k//2})")
        a(f"v_fmac_f32_dpp v{40+(k&1)}, v6, v{24+k} row_newbcast:{k} row_mask:0xf bank_mask:0xf")
    a(f"""v_add_f32 v40, v40, v41
    v_min_u32 v40, -2, v40
    global_store_dword v4, v40, s[40:41] sc1
    s_mov_b64 exec, 1
    ds_add_u32 v52, v53 offset:{L_FLAG+8}
    s_mov_b64 exec, -1""")
    stamp(12)
    a("s_branch L_end")

    def dma(n, srd, voff, sstep, lbase, pace=None):
        for t in range(n):
            v = voff[t] if isinstance(voff, list) else voff
            a(f"""s_mov_b32 s10, {t*sstep}
            s_add_u32 m0, s11, {lbase + 1024*t}
            buffer_load_dwordx4 v{v}, s[{srd}:{srd+3}], s10 offen {TLD} lds""")
            if pace is not None: a(f"s_waitcnt vmcnt({pace})")
    a.label("L_tail")
    a(f"""s_setprio 0
    v_lshrrev_b32 v2, 4, v0
    v_and_b32 v3, 15, v0
    v_lshrrev_b32 v10, 2, v3
    v_lshl_add_u32 v10, v2, 3, v10
    v_and_b32 v11, 3, v0
    v_mov_b32 v4, 0
    v_lshrrev_b32 v12, 2, v0
    v_and_b32 v13, 31, v0
    v_lshlrev_b32 v13, 2, v13
    s_mov_b32 s14, 0xffff0000
    s_mov_b32 s15, 0xffff0000
    s_mov_b32 s55, 0x20000
    s_mov_b32 s59, 0x20000""")
    if MS: a(f"s_sub_u32 s66, s2, {MB}\ns_cmp_lt_u32 s66, 48\ns_cbranch_scc1 L_notw")
    lds_wait(L_FLAG+4, 1, "L_near", 4)
    a.label("L_near")
    a(f"""s_cmp_lg_u32 s3, 0
    s_cbranch_scc1 L_rolewait
    s_and_b32 s9, s2, 7
    s_mul_i32 s8, s9, {CNT_STRIDE}
    s_add_u32 s8, s8, {WS_CNT + 32*CNT_STRIDE}
    s_add_u32 s60, s40, s8
    s_addc_u32 s61, s41, 0""")
    lds_wait(L_FLAG+4, RTRIG, "L_roleget", 0)
    a.label("L_roleget")
    a(f"""s_mov_b32 s8, 1
    s_atomic_add s8, s[60:61], 0 glc
    s_waitcnt lgkmcnt(0)
    s_lshl_b32 s8, s8, 3
    s_add_u32 s8, s8, s9
    s_add_u32 s8, s8, 1
    v_mov_b32 v5, s8
    ds_write_b32 v4, v5 offset:{L_ROLE}
    s_branch L_rolegot""")
    a.label("L_rolewait")
    lds_wait(L_ROLE, 1, "L_rolegot", 0)
    a.label("L_rolegot")
    if STAMP: a("v_writelane_b32 v126, s8, 26")
    if MS:
        if STAMP: a("s_add_u32 s9, s8, 48\nv_writelane_b32 v126, s9, 26")
        a("s_sub_u32 s64, s8, 1\ns_cmp_ge_u32 s64, 160\ns_cbranch_scc1 L_end")
    else:
        a(f"""s_sub_u32 s66, s8, 1
        s_cmp_lt_u32 s66, 48
        s_cbranch_scc1 L_notw
        s_sub_u32 s64, s66, 48
        s_cmp_ge_u32 s64, 160
        s_cbranch_scc1 L_end""")
    BF = 64
    a(f"""s_mul_i32 s65, s64, 205
    s_lshr_b32 s65, s65, 11
    s_mul_i32 s8, s65, 10
    s_sub_u32 s64, s64, s8
    s_lshl_b32 s9, s65, 2
    s_add_u32 s9, s9, s3
    s_mul_i32 s8, s9, {96*1280}
    s_lshl_b32 s10, s64, 7
    s_add_u32 s8, s8, s10
    s_add_u32 s52, s24, s8
    s_addc_u32 s53, s25, 0
    s_sub_u32 s54, {6144*1280}, s8
    v_lshrrev_b32 v14, 3, v0
    v_mul_u32_u24 v14, 1280, v14
    v_and_b32 v16, 7, v0
    v_lshl_add_u32 v14, v16, 4, v14
    s_mul_i32 s11, s3, 12288""")
    if RTRIG >= TRIG:
        dma(12, 52, 14, 8*1280, L_W)
        stamp(24)
    a(f"""v_lshlrev_b32 v15, 7, v10
    v_lshl_add_u32 v15, v11, 3, v15
    v_add_u32 v15, s11, v15
    s_lshr_b32 s9, s9, 1
    s_lshl_b32 s9, s9, 13
    s_add_u32 s9, s9, {WS_G3}
    v_lshl_add_u32 v16, v16, 10, s9
    s_and_b32 s8, s3, 1
    s_mul_i32 s8, s8, 384
    s_add_u32 s9, s9, s8
    v_lshlrev_b32 v17, 11, v2
    v_lshl_add_u32 v17, v3, 3, v17
    v_add_u32 v17, s9, v17
    s_mul_i32 s8, s3, 384
    v_and_b32 v19, 1, v2
    v_lshl_add_u32 v18, v3, 1, v19
    v_lshl_add_u32 v18, v18, 1, s8
    v_lshrrev_b32 v19, 5, v0
    v_lshl_add_u32 v12, v19, 7, v18
    v_lshl_add_u32 v19, v2, 4, s8
    v_lshlrev_b32 v13, 2, v0
    s_lshl_b32 s8, s3, 8
    v_add_u32 v20, s8, v13
    s_mul_i32 s8, s65, 2560
    s_lshl_b32 s10, s64, 8
    s_add_u32 s8, s8, s10
    s_add_u32 s8, s8, {WS_G4}
    v_add_u32 v21, s8, v13
    s_mov_b32 s12, 0
    s_mov_b32 s13, -1
    s_setprio 2""")
    def g3_loads():
        for t in range(3):
            for b in range(2):
                r = 112 + 4*t + 2*b
                a(f"global_load_dwordx2 v[{r}:{r+1}], v17, s[40:41] offset:{1024*b+128*t} sc1")
    if RTRIG < TRIG:
        lds_wait(L_FLAG+4, TRIG, "L_wgo", 0)
        a.label("L_wgo")
        dma(12, 52, 14, 8*1280, L_W)
        stamp(24)
    lab = a.newlabel('ML'); a.label(lab)
    a("global_load_dwordx2 v[6:7], v16, s[40:41] offset:768 sc1")
    g3_loads()
    a("""s_waitcnt vmcnt(0)
    v_max_u32 v8, v6, v7
    v_cmp_eq_u32 vcc, -1, v8""")
    spin_tail(lab)
    stamp(25)
    for ks in range(3):
        for nt in range(4):
            for hf in range(2):
                r = BF + 16*ks + 4*nt + 2*hf
                a(f"ds_read_b64_tr_b16 v[{r}:{r+1}], v15 offset:{L_W + 4096*ks + 512*hf + 32*nt}")
    a("v_mov_b32 v8, v6")
    red8('v_max_f32', 8)
    a(f"""v_sub_f32 v6, v6, v8
    v_mul_f32 v6, s42, v6
    v_exp_f32 v6, v6
    v_mul_f32 v7, v7, v6""")
    red8('v_add_f32', 7)
    a("v_rcp_f32 v7, v7\nv_mul_f32 v6, v6, v7")
    for r in range(4):
        a(f"v_mov_b32_dpp v8, v6 row_newbcast:{2*r} row_mask:{hex(1<<r)} bank_mask:0xf")
        a(f"v_mov_b32_dpp v22, v6 row_newbcast:{2*r+1} row_mask:{hex(1<<r)} bank_mask:0xf")
    a("s_mov_b32 s70, 0\ns_waitcnt lgkmcnt(0)\ns_branch L_g3chk")
    lab = a.newlabel('G3'); a.label(lab)
    a("s_cmp_lg_u32 s70, 0\ns_cbranch_scc1 L_g3ld\ns_mov_b32 s70, 1")
    lds_wait(L_FLAG+8, NST+3, "L_g3ld", 1)
    a.label("L_g3ld")
    stamp(30)
    a("s_mov_b64 exec, s[68:69]")
    g3_loads()
    a("s_mov_b64 exec, -1")
    a.label("L_g3chk")
    a("s_waitcnt vmcnt(0)")
    for t in range(3):
        a(f"v_pk_mul_f32 v[{48+2*t}:{49+2*t}], v[{112+4*t}:{113+4*t}], v[8:9] op_sel_hi:[1,0]")
    for t in range(3):
        a(f"v_pk_fma_f32 v[{48+2*t}:{49+2*t}], v[{114+4*t}:{115+4*t}], v[22:23], v[{48+2*t}:{49+2*t}] op_sel_hi:[1,0,1]")
    a("v_pk_add_f32 v[56:57], v[48:49], v[50:51]\nv_pk_add_f32 v[56:57], v[56:57], v[52:53]")
    nan_retry([56, 57], list(range(112, 124)), lab, 60, True)
    stamp(13)
    a("""v_mov_b32 v54, v50
    v_mov_b32 v55, v51
    v_permlane32_swap_b32 v48, v52
    v_permlane32_swap_b32 v49, v53
    v_permlane32_swap_b32 v50, v54
    v_permlane32_swap_b32 v51, v55
    v_pk_add_f32 v[48:49], v[48:49], v[52:53]
    v_pk_add_f32 v[50:51], v[50:51], v[54:55]""")
    rs_step(4, [(48, 49), (50, 51)])
    a(f"""v_cvt_pk_bf16_f32 v48, v48, v48
    v_cvt_pk_bf16_f32 v50, v50, v50
    ds_write_b16 v12, v48 offset:{L_O}
    ds_write_b16 v18, v50 offset:{L_O + 64}""")
    for ks in range(3): a(f"ds_read_b128 v[{24+4*ks}:{27+4*ks}], v19 offset:{L_O + 64*ks}")
    for ks in range(3):
        a(f"s_waitcnt lgkmcnt({2-ks})")
        for nt in range(4):
            c = '0' if ks == 0 else f"v[{40+4*nt}:{43+4*nt}]"
            a(f"v_mfma_f32_16x16x32_bf16 v[{40+4*nt}:{43+4*nt}], v[{24+4*ks}:{27+4*ks}], v[{BF+16*ks+4*nt}:{BF+16*ks+4*nt+3}], {c}")
    a(f"""v_cndmask_b32 v56, v40, v44, s[14:15]
    v_cndmask_b32 v57, v48, v52, s[14:15]
    v_cndmask_b32 v56, v56, v57, s[12:13]
    ds_write_b32 v20, v56 offset:{L_WP}
    s_waitcnt lgkmcnt(0)
    s_barrier
    s_cmp_lg_u32 s3, 0
    s_cbranch_scc1 L_end
    ds_read2st64_b32 v[24:25], v13 offset0:{L_WP//256} offset1:{L_WP//256+1}
    ds_read2st64_b32 v[26:27], v13 offset0:{L_WP//256+2} offset1:{L_WP//256+3}
    s_waitcnt lgkmcnt(1)
    v_add_f32 v24, v24, v25
    s_waitcnt lgkmcnt(0)
    v_add_f32 v26, v26, v27
    v_add_f32 v24, v24, v26
    v_min_u32 v24, -2, v24
    global_store_dword v21, v24, s[40:41] sc1""")
    stamp(14)
    a("s_branch L_end")

    a.label("L_notw")
    if MS and STAMP: a("s_add_u32 s9, s66, 1\nv_writelane_b32 v126, s9, 26")

    B1, B2 = 48, 88
    a(f"""s_mul_i32 s8, s3, {160*3072}
    s_lshl_b32 s9, s66, 6
    s_add_u32 s8, s8, s9
    s_add_u32 s52, s28, s8
    s_addc_u32 s53, s29, 0
    s_sub_u32 s54, {640*3072}, s8
    s_mul_i32 s11, s3, 10240
    s_mul_i32 s8, s66, {32*1280}
    s_add_u32 s8, s8, s11
    s_add_u32 s56, s30, s8
    s_addc_u32 s57, s31, 0
    s_mov_b32 s58, 10240
    s_mul_i32 s72, s3, 10496
    v_mov_b32 v31, 0x10000
    v_mul_u32_u24 v14, 3072, v12
    v_lshl_add_u32 v14, v11, 4, v14
""")
    dma(10, 52, 14, 16*3072, L_W)
    for t in range(11):
        a(f"""v_add_u32 v5, {64*t}, v0
        v_mul_u32_u24 v6, 800, v5
        v_lshrrev_b32 v6, 16, v6
        v_mul_u32_u24 v7, 82, v6
        v_sub_u32 v7, v5, v7
        v_lshlrev_b32 v6, 5, v6
        v_lshlrev_b32 v5, 4, v5
        v_sub_u32 v5, v5, v6
        v_cmp_lt_u32 vcc, 79, v7
        v_cndmask_b32 v30, v5, v31, vcc""".replace("v_cndmask_b32 v30, v5, v31, vcc", "v_cndmask_b32 v30, v5, v31, vcc"))
        if t == 10: a("s_mov_b64 exec, 0xffff")
        a(f"""s_add_u32 m0, s72, {L_W2 + 1024*t}
        buffer_load_dwordx4 v30, s[56:59], 0 offen {TLD} lds""")
    a("s_mov_b64 exec, -1")
    stamp(24)
    a(f"""s_mul_i32 s9, s3, 320
    v_lshlrev_b32 v15, 6, v10
    v_lshl_add_u32 v15, v11, 3, v15
    v_add_u32 v15, s11, v15
    v_mul_u32_u24 v16, 1312, v10
    v_lshl_add_u32 v16, v11, 3, v16
    v_add_u32 v16, s9, v16
    v_add_u32 v16, {L_W2}, v16""")
    a(f"""v_and_b32 v5, 1, v2
    v_lshl_add_u32 v5, v3, 1, v5
    v_lshrrev_b32 v6, 5, v0
    v_lshl_add_u32 v6, v6, 6, v5
    v_add_u32 v7, 128, v5
    s_mul_i32 s8, s3, 160
    v_lshl_add_u32 v17, v6, 1, s9
    v_lshl_add_u32 v18, v7, 1, s9
    v_add_u32 v6, s8, v6
    v_add_u32 v7, s8, v7
    v_lshlrev_b32 v19, 2, v6
    v_lshlrev_b32 v20, 2, v7
    v_lshlrev_b32 v8, 2, v0
    global_load_ushort v40, v17, s[16:17]
    global_load_ushort v41, v17, s[16:17] offset:64
    global_load_ushort v42, v18, s[16:17]""")
    for t in range(5): a(f"global_load_dword v{24+t}, v8, s[16:17] offset:{256*t}")
    a(f"""v_lshlrev_b32 v6, 3, v6
    v_lshlrev_b32 v7, 3, v7
    v_add_u32 v6, {WS_GR}, v6
    v_add_u32 v7, {WS_GR}, v7
    v_add_u32 v8, 5120, v6
    v_add_u32 v9, 5120, v7
    v_add_u32 v21, 10240, v6
    v_add_u32 v22, 10240, v7
    s_waitcnt lgkmcnt(0)
    s_add_u32 s6, s6, {hex(TAGC)}""")
    if MS:
        lds_wait(L_KF+4, 140, "L_mmid", 16)
        a.label("L_mmid")
    lab = a.newlabel('GR'); a.label(lab)
    GRB = 88
    srcs = [(6, 0), (6, 256), (7, 0), (8, 0), (8, 256), (9, 0), (21, 0), (21, 256), (22, 0)]
    for i, (v, o) in enumerate(srcs): a(f"global_load_dwordx2 v[{GRB+2*i}:{GRB+2*i+1}], v{v}, s[40:41] offset:{o} sc1")
    a(f"s_waitcnt vmcnt(0)\nv_xor_b32 v5, s6, v{GRB+1}")
    for i in range(1, 9): a(f"v_bitop3_b32 v5, v5, v{GRB+2*i+1}, s6 bitop3:0xf6")
    a("v_cmp_ne_u32 vcc, 0, v5")
    spin_tail(lab, 32 if MS else 4)
    for j in range(3):
        a(f"""v_lshlrev_b32 v{40+j}, 16, v{40+j}
        v_mov_b32 v{43+j}, v{GRB+2*j}
        v_mov_b32 v{120+j}, v{GRB+6+2*j}
        v_add_f32 v{123+j}, 1.0, v{GRB+12+2*j}""")
        rbf(123+j, 123+j)
    a("v_mov_b32 v46, 0")
    for t in range(5): a(f"v_lshlrev_b32 v5, 16, v{24+t}\nv_and_b32 v6, s7, v{24+t}\nv_add_f32 v46, v46, v5\nv_add_f32 v46, v46, v6")
    red16('v_add_f32', [46]); red_hi('v_add_f32', [46], [5])
    a(f"""v_mul_f32 v46, {hex(f2u(1/640))}, v46
    v_mul_u32_u24 v21, 10240, v2
    v_lshl_add_u32 v21, v3, 3, v21
    s_mul_i32 s8, s3, 640
    s_add_u32 s9, s8, {WS_G4}
    v_add_u32 v21, s9, v21
    s_mul_i32 s9, s66, 2560
    s_add_u32 s8, s8, s9
    s_add_u32 s8, s8, {WS_G5}
    v_lshl_add_u32 v22, v0, 2, s8
    s_mul_i32 s8, s3, 320
    v_lshl_add_u32 v23, v2, 4, s8
    s_lshl_b32 s8, s3, 7
    v_add_u32 v47, s8, v13
    s_lshl_b32 s8, s3, 3
    v_mov_b32 v9, s8
    s_lshl_b32 s8, s3, 6
    v_lshrrev_b32 v12, 1, v13
    v_add_u32 v12, s8, v12
    s_add_u32 s8, s8, {L_U}
    v_lshl_add_u32 v5, v2, 4, s8
    v_lshrrev_b32 v6, 2, v3
    v_mov_b32 v7, {L_ZERO}""")
    for g in range(4):
        a(f"v_cmp_eq_u32 vcc, {g}, v6\nv_cndmask_b32 v{[2,3,10,11][g]}, v7, v5, vcc")
    if MS == 2:
        dma(10, 52, 14, 16*3072, L_W, 1)
    if MS == 1:
        lds_wait(L_FLAG+4, 1, "L_mnear", 4)
        a.label("L_mnear")
        lds_wait(L_FLAG+4, NST, "L_mgo", 0)
        a.label("L_mgo")
        dma(10, 52, 14, 16*3072, L_W)
        stamp(24)
    a("s_setprio 2\ns_waitcnt vmcnt(0)")
    for ks in range(5):
        for nt in range(2):
            for hf in range(2):
                r = B1 + 8*ks + 4*nt + 2*hf
                a(f"ds_read_b64_tr_b16 v[{r}:{r+1}], v15 offset:{L_W + 2048*ks + 256*hf + 32*nt}")
    B2R = [B2 + 4*nt for nt in range(8)] + [24, 28]
    a("s_waitcnt vmcnt(0)")
    stamp(25)
    XR = [B2 + 2*i for i in range(16)] + [32, 34, 36, 38]
    raw = [r+k for r in XR for k in range(2)]
    a("v_add_u32 v14, 5120, v21")
    for r in raw: a(f"v_mov_b32 v{r}, -1")
    lab = a.newlabel('G4')
    for b in range(4): a(f"s_mov_b64 s[{84+2*b}:{85+2*b}], -1")
    lds_wait(L_FLAG+8, NST+3, lab, 1)
    again = a.newlabel('G4R'); a.label(again)
    for b in range(4):
        rr = [XR[4*t+b]+k for t in range(5) for k in range(2)]
        a(f"v_max3_u32 v{6+(b&1)}, v{rr[0]}, v{rr[1]}, v{rr[2]}")
        for i in range(3, 9, 2): a(f"v_max3_u32 v{6+(b&1)}, v{6+(b&1)}, v{rr[i]}, v{rr[i+1]}")
        a(f"v_max_u32 v{6+(b&1)}, v{6+(b&1)}, v{rr[9]}\nv_cmp_eq_u32 s[{84+2*b}:{85+2*b}], -1, v{6+(b&1)}")
    a(f"""s_or_b64 s[68:69], s[84:85], s[86:87]
    s_or_b64 s[70:71], s[88:89], s[90:91]
    s_or_b64 s[68:69], s[68:69], s[70:71]
    s_cbranch_scc0 L_g4nan
    s_add_u32 s67, s67, 1
    s_cmp_gt_u32 s67, {SPIN}
    s_cbranch_scc1 L_end""")
    a.label(lab)
    stamp(30)
    for b in range(4):
        a(f"s_mov_b64 exec, s[{84+2*b}:{85+2*b}]\ns_cbranch_execz L_g4s{b}")
        for t in range(5):
            r = XR[4*t+b]
            a(f"global_load_dwordx2 v[{r}:{r+1}], v{21 if b < 2 else 14}, s[40:41] offset:{2560*(b&1)+128*t} sc1")
        a.label(f"L_g4s{b}")
    a("s_mov_b64 exec, -1\ns_waitcnt vmcnt(0)")
    YR = [24, 28, 26, 30, 4]
    for t in range(5): a(f"v_pk_add_f32 v[{YR[t]}:{YR[t]+1}], v[{XR[4*t]}:{XR[4*t]+1}], v[{XR[4*t+1]}:{XR[4*t+1]+1}]")
    for t in range(5): a(f"v_pk_add_f32 v[{YR[t]}:{YR[t]+1}], v[{YR[t]}:{YR[t]+1}], v[{XR[4*t+2]}:{XR[4*t+2]+1}]")
    for t in range(5): a(f"v_pk_add_f32 v[{YR[t]}:{YR[t]+1}], v[{YR[t]}:{YR[t]+1}], v[{XR[4*t+3]}:{XR[4*t+3]+1}]")
    a("""v_pk_add_f32 v[6:7], v[24:25], v[28:29]
    v_pk_add_f32 v[126:127], v[26:27], v[30:31]
    v_pk_add_f32 v[6:7], v[6:7], v[4:5]
    v_pk_add_f32 v[6:7], v[6:7], v[126:127]""".replace("v[126:127]", "v[44:45]" if False else "v[122:123]") if False else """v_pk_add_f32 v[6:7], v[24:25], v[28:29]
    v_pk_add_f32 v[6:7], v[6:7], v[26:27]
    v_pk_add_f32 v[6:7], v[6:7], v[30:31]
    v_pk_add_f32 v[6:7], v[6:7], v[4:5]""")
    a(f"v_cmp_u_f32 vcc, v6, v7\ns_cbranch_vccnz {again}")
    a.label("L_g4nan")
    stamp(15)
    a("v_mov_b32 v6, v4\nv_mov_b32 v7, v5")
    for x, y in ((24, 26), (28, 30), (4, 6)):
        a(f"v_permlane32_swap_b32 v{x}, v{y}\nv_permlane32_swap_b32 v{x+1}, v{y+1}")
    for x, y in ((24, 26), (28, 30), (4, 6)): a(f"v_pk_add_f32 v[{x}:{x+1}], v[{x}:{x+1}], v[{y}:{y+1}]")
    rs_step(4, [(24, 25), (28, 29), (4, 5)])
    C3 = [24, 28, 4]
    def rbf3():
        a("""v_cvt_pk_bf16_f32 v25, v24, v28
        v_cvt_pk_bf16_f32 v4, v4, v4
        v_lshlrev_b32 v24, 16, v25
        v_and_b32 v28, s7, v25
        v_and_b32 v4, s7, v4""")
    rbf3()
    for j, c in enumerate(C3): a(f"v_mul_f32 v{c}, v{43+j}, v{c}")
    rbf3()
    for j, c in enumerate(C3): a(f"v_add_f32 v{c}, v{40+j}, v{c}")
    rbf3()
    a(f"""v_sub_f32 v25, v24, v46
    v_sub_f32 v29, v28, v46
    v_sub_f32 v5, v4, v46
    v_mul_f32 v26, 0.5, v5
    v_add_f32 v30, v25, v29
    v_mul_f32 v31, v25, v25
    v_add_f32 v30, v30, v26
    v_fmac_f32 v31, v29, v29
    v_fmac_f32 v31, v26, v5""")
    red16('v_add_f32', [30, 31]); red_hi('v_add_f32', [30, 31], [6, 7])
    a(f"""ds_write_b64 v9, v[30:31] offset:{L_ST}
    ds_write_b32 v19, v24 offset:{L_X2}
    ds_write_b32 v19, v28 offset:{L_X2+128}
    ds_write_b32 v20, v4 offset:{L_X2}
    v_mov_b32 v8, 0
    s_waitcnt vmcnt(0) lgkmcnt(0)""")
    if MST: stamp(48)
    a(f"""
    s_barrier
    ds_read_b128 v[32:35], v8 offset:{L_ST}
    ds_read_b128 v[36:39], v8 offset:{L_ST+16}""")
    if MST: stamp(49)
    a(f"""""")
    a(f"""s_waitcnt lgkmcnt(0)
    v_pk_add_f32 v[32:33], v[32:33], v[34:35]
    v_pk_add_f32 v[36:37], v[36:37], v[38:39]
    v_pk_add_f32 v[32:33], v[32:33], v[36:37]
    v_mul_f32 v32, {hex(f2u(1/640))}, v32
    v_mul_f32 v33, {hex(f2u(1/640))}, v33
    v_fma_f32 v33, -v32, v32, v33
    v_add_f32 v32, v32, v46
    v_max_f32 v33, 0, v33""")
    a(f"""v_cvt_pk_bf16_f32 v34, v32, v33
    v_and_b32 v33, s7, v34
    v_lshlrev_b32 v32, 16, v34
    v_add_f32 v33, {hex(f2u(1e-5))}, v33""")
    for c in C3: a(f"v_sub_f32 v{c}, v{c}, v32")
    rbf(33, 33)
    a("v_sqrt_f32 v33, v33")
    rbf3()
    rbf(33, 33)
    a("v_rcp_f32 v33, v33")
    for c in C3: a(f"v_mul_f32 v{c}, v{c}, v33")
    rbf3()
    for j, c in enumerate(C3): a(f"v_mul_f32 v{c}, v{c}, v{123+j}")
    rbf3()
    for j, c in enumerate(C3): a(f"v_add_f32 v{c}, v{c}, v{120+j}")
    for c in C3: a(f"v_cvt_pk_bf16_f32 v{c}, v{c}, v{c}")
    a(f"""ds_write_b16 v17, v24 offset:{L_O}
    ds_write_b16 v17, v28 offset:{L_O+64}
    ds_write_b16 v18, v4 offset:{L_O}""")
    if MST: stamp(50)
    a(f"""""")
    A1 = [24, 28, 32, 36, 40]
    for ks in range(5): a(f"ds_read_b128 v[{A1[ks]}:{A1[ks]+3}], v23 offset:{L_O + 64*ks}")
    D1 = [4, 120]
    trs = [(nt, hf) for nt in range(10) for hf in range(2)]
    ntr = 0
    for ks in range(5):
        a(f"s_waitcnt lgkmcnt({min(15, 4-ks+ntr)})")
        for nt in range(2):
            c = '0' if ks == 0 else f"v[{D1[nt]}:{D1[nt]+3}]"
            a(f"v_mfma_f32_16x16x32_bf16 v[{D1[nt]}:{D1[nt]+3}], v[{A1[ks]}:{A1[ks]+3}], v[{B1+8*ks+4*nt}:{B1+8*ks+4*nt+3}], {c}")
            for _ in range(2):
                n2, hf = trs[ntr]; ntr += 1
                a(f"ds_read_b64_tr_b16 v[{B2R[n2]+2*hf}:{B2R[n2]+2*hf+1}], v16 offset:{5248*hf + 32*n2}")
    a(f"""v_cndmask_b32 v8, v4, v120, s[14:15]
    ds_write_b32 v47, v8 offset:{L_WP}
    s_waitcnt lgkmcnt(0)""")
    if MST: stamp(51)
    a(f"""
    s_barrier
    ds_read_b32 v32, v13 offset:{L_WP}
    ds_read_b32 v33, v13 offset:{L_WP+128}
    ds_read_b32 v34, v13 offset:{L_WP+256}
    ds_read_b32 v35, v13 offset:{L_WP+384}""")
    if MST: stamp(52)
    a(f"""
    s_waitcnt lgkmcnt(2)
    v_add_f32 v32, v32, v33
    s_waitcnt lgkmcnt(0)
    v_add_f32 v34, v34, v35
    v_add_f32 v32, v32, v34""")
    rbf(32, 32)
    a(f"""v_mul_f32 v33, s42, v32
    v_exp_f32 v33, -v33
    v_add_f32 v33, 1.0, v33
    v_rcp_f32 v33, v33
    v_mul_f32 v32, v32, v33
    v_cvt_pk_bf16_f32 v32, v32, v32
    ds_write_b16 v12, v32 offset:{L_U}""")
    if MST: stamp(53)
    a(f"""""")
    A2 = [48, 52, 56, 60]
    for g in range(4): a(f"ds_read_b128 v[{A2[g]}:{A2[g]+3}], v{[2,3,10,11][g]}")
    D2 = [64, 68, 72]
    for g in range(4):
        a(f"s_waitcnt lgkmcnt({3-g})")
        for j in range(3):
            nt = 4*j + g
            if nt >= 10: continue
            c = '0' if g == 0 else f"v[{D2[j]}:{D2[j]+3}]"
            a(f"v_mfma_f32_16x16x32_bf16 v[{D2[j]}:{D2[j]+3}], v[{A2[g]}:{A2[g]+3}], v[{B2R[nt]}:{B2R[nt]+3}], {c}")
    a(f"""v_min_u32 v76, -2, v72
    s_mov_b32 exec_hi, 0
    global_store_dword v22, v76, s[40:41] offset:512 sc1
    s_mov_b64 exec, -1
    v_min_u32 v77, -2, v64
    v_min_u32 v78, -2, v68
    global_store_dword v22, v77, s[40:41] sc1
    global_store_dword v22, v78, s[40:41] offset:256 sc1""")
    stamp(16)
    a("s_branch L_end")

    a.label("L_fwave")
    if MS: a(f"s_sub_u32 s8, s2, {MB-1}")
    else:
        lds_wait(L_ROLE, 1, "L_frole", 4, vz=52)
        a.label("L_frole")
    a(f"""s_sub_u32 s66, s8, 1
    s_cmp_ge_u32 s66, 40
    s_cbranch_scc1 L_end
    v_and_b32 v4, 3, v0
    v_lshrrev_b32 v5, 4, v0
    v_lshl_add_u32 v6, v4, 2, v5
    s_lshl_b32 s8, s66, 4
    v_add_u32 v6, s8, v6
    v_lshlrev_b32 v7, 3, v6
    v_add_u32 v7, {WS_GR + 1920*8}, v7
    s_waitcnt lgkmcnt(0)
    s_add_u32 s6, s6, {hex(TAGC)}""")
    if MS:
        lds_wait(L_KF+4, 140, "L_fmid", 16, vz=52)
        a.label("L_fmid")
    lab = a.newlabel('GF'); a.label(lab)
    a(f"""global_load_dwordx2 v[50:51], v7, s[40:41] sc1
    s_waitcnt vmcnt(0)
    v_cmp_ne_u32 vcc, s6, v51""")
    spin_tail(lab, 32 if MS else 4)
    a(f"""v_lshlrev_b32 v8, 2, v6
    v_lshrrev_b32 v7, 2, v0
    v_mul_u32_u24 v7, 2560, v7
    v_lshl_add_u32 v7, v4, 4, v7
    s_lshl_b32 s8, s66, 6
    s_add_u32 s8, s8, {WS_G5}
    v_add_u32 v7, s8, v7
    v_add_u32 v52, {16*2560}, v7
    v_add_u32 v53, {32*2560}, v7
    v_lshlrev_b32 v6, 1, v6
    v_mov_b32 v4, {WS_EPOCH}
    v_mov_b32 v5, s6""")
    for r in range(24, 36): a(f"v_mov_b32 v{r}, -1")
    a(f"""s_barrier
    ds_read_b32 v48, v8 offset:{L_X2}
    s_waitcnt lgkmcnt(0)
    s_barrier""")
    a("s_mov_b64 s[68:69], -1")
    lab = a.newlabel('G5'); a.label(lab)
    stamp(30)
    a(f"""s_mov_b64 exec, s[68:69]
    global_load_dwordx4 v[24:27], v7, s[40:41] sc1
    global_load_dwordx4 v[28:31], v52, s[40:41] sc1
    global_load_dwordx4 v[32:35], v53, s[40:41] sc1
    s_mov_b64 exec, -1
    s_waitcnt vmcnt({3*(PDF-1)})
    v_pk_add_f32 v[36:37], v[24:25], v[28:29]
    v_pk_add_f32 v[38:39], v[26:27], v[30:31]
    v_pk_add_f32 v[36:37], v[36:37], v[32:33]
    v_pk_add_f32 v[38:39], v[38:39], v[34:35]
    v_pk_add_f32 v[42:43], v[36:37], v[38:39]""")
    nan_retry([42, 43], list(range(24, 36)), lab, 40, True)
    stamp(17)
    rs_step(5, [(36, 38), (37, 39)])
    rs_step(4, [(36, 37)])
    dpp('v_add_f32', 36, 36, 36, 'row_ror:8'); dpp('v_add_f32', 36, 36, 36, 'row_ror:4')
    rbf(36, 36)
    a("v_mul_f32 v36, v50, v36"); rbf(36, 36)
    a(f"""v_add_f32 v36, v48, v36
    v_cvt_pk_bf16_f32 v36, v36, v36
    s_mov_b32 exec_lo, 0x000f000f
    s_mov_b32 exec_hi, 0x000f000f
    global_store_short v6, v36, s[36:37] {P.get('ost', '')}
    s_cmp_lg_u32 s66, 0
    s_cbranch_scc1 L_fend
    s_mov_b64 exec, 1
    global_store_dword v4, v5, s[40:41] sc1""")
    if P.get('dbgt'):
        a("""s_memrealtime s[92:93]
        s_waitcnt lgkmcnt(0)
        s_sub_u32 s92, s92, s98
        v_mov_b32 v4, 0
        v_mov_b32 v8, s92
        v_mov_b32 v9, s2
        global_store_dwordx2 v4, v[8:9], s[38:39]""")
    a.label("L_fend")
    a("s_mov_b64 exec, -1")
    stamp(18)
    a.label("L_end")
    if STAMP:
        a(f"""s_mov_b64 exec, -1
        v_writelane_b32 v126, s67, 27
        v_writelane_b32 v126, s63, 28
        v_writelane_b32 v126, s95, 29
        s_lshl_b32 s8, s2, 4
        s_add_u32 s8, s8, s3
        s_lshl_b32 s8, s8, 8
        s_add_u32 s8, s8, {WS_ST}
        v_lshl_add_u32 v4, v0, 2, s8
        global_store_dword v4, v126, s[40:41]""")
    a.label("L_exit")
    a("s_endpgm")

    body = a.text()
    out = HEADER
    out += DOC
    out += f"; @launch grid=(256,1,1) block=(1024,1,1) lds={LDS_BYTES}\n"
    out += '.amdgcn_target "amdgcn-amd-amdhsa--gfx950"\n.text\n'
    out += f".globl {KN}\n.p2align 8\n.type {KN},@function\n{KN}:\n" + body
    out += f""".section .rodata,"a"
.p2align 6
.amdhsa_kernel {KN}
  .amdhsa_next_free_vgpr 128
  .amdhsa_next_free_sgpr 102
  .amdhsa_accum_offset 128
  .amdhsa_group_segment_fixed_size 0
  .amdhsa_kernarg_size 104
  .amdhsa_user_sgpr_count 2
  .amdhsa_user_sgpr_kernarg_segment_ptr 1
  .amdhsa_system_sgpr_workgroup_id_x 1
  .amdhsa_float_denorm_mode_32 3
.end_amdhsa_kernel
"""
    return out

if __name__ == '__main__':
    import json
    P = json.loads(sys.argv[2]) if len(sys.argv) > 2 else {}
    open(sys.argv[1], 'w').write(gen(P))
```

```python
import sys, math
from asmlib import Asm, f2u

KN = "adaLN_cond__gqa_block_cached__dense_activation_silu__decode_kernel"
HEADER = open('adaLN_cond__gqa_block_cached__dense_activation_silu__decode.s.ref').read().split('; Override')[0]

WS_EPOCH = 0
WS_CNT = 0x1000; CNT_STRIDE = 1152
WS_BOARD = 0xC000
WS_GM = 0x10000
WS_GR = WS_GM + 1280*8
WS_G1 = 0x20000
WS_GQ = 0x30000
WS_G3 = 0x100000
WS_G5 = WS_G3 + 0x40000
WS_G4 = WS_G5 + 48*2560
WS_ST = 0x200000
TAGC = 0x9E3779B9
NUNITS = 2048
HEADB = 16384*384
L_Q = 0
L_FLAG = 512
L_ZERO = 528
L_ROLE = L_FLAG + 12
L_KF = 544
L_ML = 576
L_ST = 704
L_O = 1024
L_U = 2560
L_WP = 3072
L_X2 = 4096
L_PART = 6912
L_TP = 6912
L_W = 16384
L_W2 = L_W + 73728
L_SC = L_W2 + 41984
LDS_BYTES = L_SC + 8192

DOC = '''; One persistent launch, 256 workgroups x 16 waves (one workgroup per CU). Workgroup id -> head h (8 workgroups each) and role 0..7.
;             (online softmax, running true maximum); the last ~14 % of each head goes out by ticket for load balance.
'''

def gen(P):
    a = Asm()
    NST = 8
    PW = P.get('pw', 4)
    SLOW = {int(k): v for k, v in P.get('slow', {}).items()}
    STAMP = P.get('stamp', 0); MST = P.get('mst', 0)
    SPIN = P.get('spin', 400000)
    NLK = P.get('nlk', 2)
    NF = 6 + NLK
    SN = P.get('sn', 232); SQ = P.get('sq', 200)
    SX = P.get('sx', SN - 12)
    SM = P.get('sm', SN)
    NSTAT = 3*SQ + 2*SN + 2*SM + SX
    MB = P.get('mb', 160)
    assert NSTAT <= NUNITS and max(SN, SQ) <= 256 and SN >= 12*NF + 32 and SQ >= 32
    MS = P.get('ms', 0)
    PD = P.get('pd', 1); PDF = P.get('pdf', 2)
    TRIG = RTRIG = MTRIG = NST; W2E = 1; IND = 0; HN = 0; JIT = 0
    LD = P.get('ld', 'nt'); TLD = P.get('tld', ''); XLD = P.get('xld', LD); KLD = P.get('kld', LD); VLD = P.get('vld', LD)

    vL, vOFF = 0, 1
    vT = list(range(2, 10))
    vQ = 10
    vM, vLS = 22, 23
    vACC = 24
    vAK, vAV = 48, 60
    vB = [72, 96]
    vU = 120
    vTK = 127
    vSC = 8

    def stamp(k, cond_wave=None, r=None):
        if not STAMP: return
        a(f"""s_memrealtime s[92:93]
        s_waitcnt lgkmcnt(0)
        v_writelane_b32 v126, s92, {k}""")

    def rbf(d, s):
        a(f"v_cvt_pk_bf16_f32 v{d}, v{s}, v{s}\nv_and_b32 v{d}, s7, v{d}")

    def dpp(op, d, s0, s1, ctl):
        a(f"{op}_dpp v{d}, v{s0}, v{s1} {ctl} row_mask:0xf bank_mask:0xf")

    def red8(op, x):
        dpp(op, x, x, x, "quad_perm:[1,0,3,2]"); dpp(op, x, x, x, "quad_perm:[2,3,0,1]"); dpp(op, x, x, x, "row_half_mirror")
    def red16(op, xs):
        for ctl in ("quad_perm:[1,0,3,2]", "quad_perm:[2,3,0,1]", "row_half_mirror", "row_mirror"):
            for x in xs: dpp(op, x, x, x, ctl)
    def red_hi(op, xs, ts, bits=(4, 5)):
        for b in bits:
            sw = 'v_permlane16_swap_b32' if b == 4 else 'v_permlane32_swap_b32'
            for x, t in zip(xs, ts): a(f"v_mov_b32 v{t}, v{x}")
            for x, t in zip(xs, ts): a(f"{sw} v{x}, v{t}")
            for x, t in zip(xs, ts): a(f"{op} v{x}, v{x}, v{t}")
    def rs_step(bit, pairs):
        sw = 'v_permlane16_swap_b32' if bit == 4 else 'v_permlane32_swap_b32'
        for x, y in pairs: a(f"{sw} v{x}, v{y}")
        for x, y in pairs: a(f"v_add_f32 v{x}, v{x}, v{y}")

    def spin_tail(lab_retry, slp=1):
        done = a.newlabel('GD')
        a(f"""s_cbranch_vccz {done}
        s_add_u32 s67, s67, 1
        s_cmp_gt_u32 s67, {SPIN}
        s_cbranch_scc1 L_end
        s_sleep {slp}
        s_branch {lab_retry}""")
        a.label(done)

    def tile_dots(acc, tile, nrb, chi, clo):
        for rb in range(nrb):
            for d in range(4):
                a(f"v_dot2c_f32_bf16 v{acc+2*d}, v{tile+4*rb+d}, v{clo[rb]}")
                a(f"v_dot2c_f32_bf16 v{acc+2*d+1}, v{tile+4*rb+d}, v{chi[rb]}")
    def tile_reduce8(acc, sel):
        rs_step(5, [(acc+i, acc+4+i) for i in range(4)])
        rs_step(4, [(acc+i, acc+2+i) for i in range(2)])
        dpp('v_add_f32', acc, acc, acc, 'row_ror:8'); dpp('v_add_f32', acc+1, acc+1, acc+1, 'row_ror:8')
        a(f"v_cndmask_b32 v{acc}, v{acc}, v{acc+1}, {sel}")
    def tile_reduce4(acc):
        rs_step(5, [(acc+i, acc+4+i) for i in range(4)])
        rs_step(4, [(acc+i, acc+2+i) for i in range(2)])
        for ctl in ('row_ror:8', 'row_ror:4'):
            dpp('v_add_f32', acc, acc, acc, ctl); dpp('v_add_f32', acc+1, acc+1, acc+1, ctl)

    def loadK(r):
        for j in range(3): a(f"buffer_load_dwordx4 v[{r+4*j}:{r+4*j+3}], v{vOFF}, s[44:47], s62 offen offset:{128*j} {KLD}")
    def loadV(r):
        for j in range(3): a(f"buffer_load_dwordx4 v[{r+4*j}:{r+4*j+3}], v{vOFF}, s[48:51], s62 offen offset:{128*j} {VLD}")
    def ticket(prog=False):
        if JIT: return
        a("s_mov_b64 exec, 1")
        if prog and HN: a(f"ds_max_u32 v{vU+4}, v{vTK} offset:{L_PROG}")
        a(f"""global_atomic_add v{vTK}, v{vU+4}, v{vU+5}, s[60:61] sc0
        s_mov_b64 exec, -1""")
    def qk_dots(K):
        t0, t1, t2 = vT[0], vT[1], vT[2]
        a(f"v_mov_b32 v{t0}, 0\nv_mov_b32 v{t1}, 0\nv_mov_b32 v{t2}, 0")
        for r in range(4):
            for j in range(3):
                a(f"v_dot2c_f32_bf16 v{vT[j]}, v{K+4*j+r}, v{vQ+4*j+r}")
    def softmax(last=False, scored=False):
        t0, t1, t2, t3, p, al = vT[0], vT[1], vT[2], vT[3], vT[4], vU+2
        if not scored:
            a(f"v_add_f32 v{t0}, v{t0}, v{t1}\nv_add_f32 v{t0}, v{t0}, v{t2}")
            red8('v_add_f32', t0)
            rbf(t0, t0)
            a(f"v_mul_f32 v{t0}, s43, v{t0}")
            rbf(t0, t0)
        a(f"v_max_f32 v{t1}, v{vM}, v{t0}")
        if last:
            dpp('v_max_f32', t1, t1, t1, 'row_ror:8')
            red_hi('v_max_f32', [t1], [t2])
        a(f"""v_sub_f32 v{t2}, v{vM}, v{t1}
        v_sub_f32 v{t3}, v{t0}, v{t1}
        v_mul_f32 v{t2}, s42, v{t2}
        v_mul_f32 v{t3}, s42, v{t3}
        v_exp_f32 v{al}, v{t2}
        v_exp_f32 v{p}, v{t3}
        v_mov_b32 v{vM}, v{t1}
        v_fma_f32 v{vLS}, v{vLS}, v{al}, v{p}""")
        if last:
            dpp('v_add_f32', vLS, vLS, vLS, 'row_ror:8')
            red_hi('v_add_f32', [vLS], [t2])
            a(f"""s_lshl_b32 s8, s3, 3
            v_mov_b32 v{t2}, s8
            v_mov_b32 v{t0}, 0
            v_mov_b32 v{t1}, 1
            s_mov_b64 exec, 1
            ds_write_b64 v{t2}, v[{vM}:{vLS}] offset:{L_ML-32}
            ds_add_u32 v{t0}, v{t1} offset:{L_FLAG+4}
            s_mov_b64 exec, -1""")
        for i in range(12):
            r = vACC + 2*i
            a(f"v_pk_mul_f32 v[{r}:{r+1}], v[{r}:{r+1}], v[{al}:{al+1}] op_sel_hi:[1,0]")
    def lds_wait(off, val, lab, slp, cmp='ge', vz=4, vd=5):
        top = a.newlabel('LW'); a.label(top)
        a(f"""ds_read_b32 v{vd}, v{vz} offset:{off}
        s_waitcnt lgkmcnt(0)
        v_readfirstlane_b32 s8, v{vd}
        s_cmp_ge_u32 s8, {val}
        s_cbranch_scc1 {lab}
        s_add_u32 s67, s67, 1
        s_cmp_gt_u32 s67, {SPIN*8}
        s_cbranch_scc1 L_end""")
        if slp: a(f"s_sleep {slp}")
        a(f"s_branch {top}")
    def part_addr():
        a(f"""v_lshrrev_b32 v52, 3, v0
        v_and_b32 v53, 7, v0
        v_mul_u32_u24 v52, 3, v52
        s_mul_i32 s8, s3, 768
        s_add_u32 s8, s8, {L_PART-4*768}
        v_lshl_add_u32 v53, v53, 5, s8
        s_mov_b32 s12, 0xff00ff00
        s_mov_b32 s13, 0xff00ff00""")
        for i in range(3):
            a(f"""v_add_u32 v54, {i}, v52
            v_lshrrev_b32 v55, 3, v54
            v_and_b32 v54, 7, v54
            v_lshl_add_u32 v55, v55, 8, v53
            v_lshl_add_u32 v{48+i}, v54, 2, v55""")
        a("v_mov_b32 v52, 0\nv_mov_b32 v53, 1")
    def part_write():
        for i in range(12): a(f"v_permlane32_swap_b32 v{vACC+i}, v{vACC+12+i}")
        for i in range(0, 12, 2): a(f"v_pk_add_f32 v[{vACC+i}:{vACC+i+1}], v[{vACC+i}:{vACC+i+1}], v[{vACC+12+i}:{vACC+13+i}]")
        for i in range(6): a(f"v_permlane16_swap_b32 v{vACC+i}, v{vACC+6+i}")
        for i in range(0, 6, 2): a(f"v_pk_add_f32 v[{vACC+i}:{vACC+i+1}], v[{vACC+i}:{vACC+i+1}], v[{vACC+6+i}:{vACC+7+i}]")
        for i in range(6): dpp('v_add_f32', vACC+i, vACC+i, vACC+i, 'row_ror:8')
        for i in range(3): a(f"v_cndmask_b32 v{vACC+i}, v{vACC+i}, v{vACC+3+i}, s[12:13]")
        for i in range(3): a(f"ds_write_b32 v{48+i}, v{vACC+i}")
        a(f"""s_mov_b64 exec, 1
        ds_add_u32 v52, v53 offset:{L_FLAG+8}
        s_mov_b64 exec, -1""")
    def nan_retry(regs, raw, lab, tmp, masked=False):
        done = a.newlabel('NR')
        if len(regs) == 1: a(f"v_cmp_u_f32 vcc, v{regs[0]}, v{regs[0]}")
        elif len(regs) == 2: a(f"v_cmp_u_f32 vcc, v{regs[0]}, v{regs[1]}")
        else: a(f"v_add_f32 v{tmp}, v{regs[0]}, v{regs[1]}\nv_cmp_u_f32 vcc, v{tmp}, v{regs[2]}")
        a(f"s_cbranch_vccz {done}")
        if masked: a("s_mov_b64 s[68:69], vcc")
        a(f"""s_add_u32 s67, s67, 1
        s_and_b32 s8, s67, 15
        s_cbranch_scc1 {lab}
        s_cmp_gt_u32 s67, {SPIN}
        s_cbranch_scc1 L_end
        s_cmp_eq_u32 s63, 1
        s_cbranch_scc1 {done}""")
        a(f"v_mov_b32 v{tmp}, v{raw[0]}")
        for i in range(1, len(raw), 2):
            if i+1 < len(raw): a(f"v_max3_u32 v{tmp}, v{tmp}, v{raw[i]}, v{raw[i+1]}")
            else: a(f"v_max_u32 v{tmp}, v{tmp}, v{raw[i]}")
        a(f"""v_cmp_eq_u32 vcc, -1, v{tmp}
        s_cbranch_vccnz {lab}
        s_mov_b32 s63, 1
        s_branch {lab}""")
        a.label(done)
    def pv(V):
        p = vT[4]
        for i in range(12):
            t = vU + 2*(i & 1)
            r = vACC + 2*i
            a(f"""v_lshlrev_b32 v{t}, 16, v{V+i}
            v_and_b32 v{t+1}, s7, v{V+i}
            v_pk_fma_f32 v[{r}:{r+1}], v[{t}:{t+1}], v[{p}:{p+1}], v[{r}:{r+1}] op_sel_hi:[1,0,1]""")

    if STAMP: a("s_memrealtime s[98:99]\nv_mov_b32 v126, 0\ns_mov_b32 s95, 0")
    if P.get('dbgt'): a("s_memrealtime s[98:99]")
    a(f"""s_cmp_ge_u32 s2, 256
    s_cbranch_scc1 L_exit
    s_load_dwordx16 s[16:31], s[0:1], 0
    s_load_dwordx8 s[32:39], s[0:1], 64
    s_load_dwordx2 s[40:41], s[0:1], 96
    v_lshrrev_b32 v1, 6, v0
    v_readfirstlane_b32 s3, v1
    v_and_b32 v0, 63, v0""")
    if P.get('warm', 0):
        a(f"""s_cmp_ge_u32 s2, {P.get('warmwg', 16)}
        s_cbranch_scc1 L_nowarm
        s_cmp_lg_u32 s3, 15
        s_cbranch_scc1 L_nowarm
        s_getpc_b64 s[52:53]""")
        a.label("L_pc")
        a(f"""s_sub_u32 s52, s52, L_pc-{KN}
        s_subb_u32 s53, s53, 0
        s_mov_b32 s54, L_exit+4-{KN}
        s_mov_b32 s55, 0x20000
        v_lshlrev_b32 v5, 4, v0""")
        for i in range(P.get('warm')):
            a(f"s_mov_b32 s8, {1024*i}\nbuffer_load_dwordx4 v[120:123], v5, s[52:55], s8 offen")
        a.label("L_nowarm")
    a(f"""s_lshr_b32 s4, s2, 3
    s_lshl_b32 s5, s2, 2
    s_add_u32 s4, s4, s5
    s_and_b32 s4, s4, 31
    s_lshr_b32 s5, s2, 5
    s_mov_b32 s7, 0xffff0000
    s_mov_b32 s42, {hex(f2u(math.log2(math.e)))}
    s_mov_b32 s43, {hex(f2u(192 ** -0.5))}
    s_mov_b32 s67, 0
    s_mov_b32 s63, 0
    v_lshrrev_b32 v2, 3, v0
    v_and_b32 v3, 7, v0
    v_mul_u32_u24 v1, 384, v2
    v_lshl_add_u32 v1, v3, 4, v1
    s_mul_i32 s8, s4, {HEADB}
    s_mov_b32 s46, {HEADB}
    s_mov_b32 s47, 0x20000
    s_mov_b32 s50, {HEADB}
    s_mov_b32 s51, 0x20000
    s_mov_b32 s55, 0x20000
    s_mov_b32 s59, 0x20000
    s_mul_i32 s9, s4, {CNT_STRIDE}
    s_add_u32 s9, s9, {WS_CNT}
    v_mov_b32 v4, 0
    v_mov_b32 v5, 0
    v_mov_b32 v6, 0
    v_mov_b32 v7, 0
    s_cmp_lt_u32 s5, 3
    s_cselect_b32 s10, 16, {12*NF + 16}
    v_mov_b32 v8, s10
    v_mov_b32 v9, 16
    s_mov_b64 exec, 1
    ds_write_b128 v4, v[4:7] offset:{L_FLAG}
    ds_write_b128 v4, v[4:7] offset:{L_ZERO}
    ds_write_b64 v4, v[8:9] offset:{L_KF}
    s_mov_b64 exec, -1
    v_mov_b32 v10, -1
    v_mov_b32 v11, -1
    v_lshlrev_b32 v12, 3, v0
    v_lshl_add_u32 v12, s3, 9, v12
    v_add_u32 v12, {L_SC}, v12
    ds_write_b64 v12, v[10:11]
    s_waitcnt lgkmcnt(0)""")
    if not P.get('nobar', 1): a("s_barrier")
    if STAMP: a("v_writelane_b32 v126, s98, 22")
    stamp(23)
    a(f"""s_add_u32 s44, s18, s8
    s_addc_u32 s45, s19, 0
    s_add_u32 s48, s20, s8
    s_addc_u32 s49, s21, 0
    s_add_u32 s60, s40, s9
    s_addc_u32 s61, s41, 0
    s_load_dword s6, s[40:41], {WS_EPOCH}
    s_mov_b32 s12, 0xff00ff00
    s_mov_b32 s13, 0xff00ff00
    s_cmp_lt_u32 s5, 3
    s_cbranch_scc1 L_qtile
    s_lshr_b32 s9, s2, 3
    s_and_b32 s8, s9, 3
    s_cmp_eq_u32 s8, 3
    s_cbranch_scc1 {'L_tilebar' if P.get('nobar', 1) else 'L_roles'}
    s_sub_u32 s9, s5, 3
    s_mul_i32 s9, s9, 3
    s_add_u32 s9, s9, s8
    s_cmp_ge_u32 s9, 10
    s_cbranch_scc1 {'L_tilebar' if P.get('nobar', 1) else 'L_roles'}""")
    TILE = 48; CH = 24; CL = 30; TA = 40
    def tile_loads(stride, n=5):
        a(f"""s_mul_i32 s10, s3, {8*n*stride}
        v_mul_u32_u24 v4, {stride}, v2
        v_lshl_add_u32 v4, v3, 4, v4""")
        for t in range(n):
            a(f"buffer_load_dwordx4 v[{TILE+4*t}:{TILE+4*t+3}], v4, s[52:55], s10 offen {LD}")
            if t < n-1: a(f"s_add_u32 s10, s10, {8*stride}")
    def tile_finish(n=5, nwv=16, join=None):
        tile_dots(TA, TILE, n, [CH+t for t in range(n)], [CL+t for t in range(n)])
        tile_reduce8(TA, 's[12:13]')
        a(f"""ds_write_b32 v5, v{TA} offset:{L_TP}""")
        stamp(20)
        if join: a.label(join)
        a(f"""s_waitcnt vmcnt(0) lgkmcnt(0)
        s_barrier""")
        stamp(21)
        a(f"""s_cmp_lg_u32 s3, 0
        s_cbranch_scc1 L_tilebar
        v_lshlrev_b32 v5, 2, v0
        v_add_u32 v5, {L_TP}, v5""")
        for k in range(nwv//2): a(f"ds_read2st64_b32 v[{24+2*k}:{25+2*k}], v5 offset0:{2*k} offset1:{2*k+1}")
        for k in range(nwv//2):
            a(f"s_waitcnt lgkmcnt({nwv//2-1-k})")
            a(f"v_add_f32 v{24+2*k}, v{24+2*k}, v{25+2*k}")
            if k & 1: a(f"v_add_f32 v{22+2*k}, v{22+2*k}, v{24+2*k}")
        tops = [24+4*k for k in range((nwv//2+1)//2)]
        while len(tops) > 1:
            nxt = []
            for i in range(0, len(tops)-1, 2):
                a(f"v_add_f32 v{tops[i]}, v{tops[i]}, v{tops[i+1]}"); nxt.append(tops[i])
            if len(tops) & 1: nxt.append(tops[-1])
            tops = nxt
    def tile_ldsaddr():
        a(f"""v_lshl_add_u32 v5, v3, 3, v2
        s_lshl_b32 s8, s3, 8
        v_lshl_add_u32 v5, v5, 2, s8""")
        for i in range(8): a(f"v_mov_b32 v{TA+i}, 0")
    a.label("L_modtile")
    a(f"""s_lshl_b32 s9, s9, 3
    s_and_b32 s8, s2, 7
    s_add_u32 s9, s9, s8
    s_cmp_ge_u32 s3, 10
    s_cbranch_scc1 L_poison
    s_lshr_b32 s11, s9, 2
    s_and_b32 s15, s9, 3
    s_lshl_b32 s14, s11, 7
    s_mul_i32 s8, s15, {160*7680}
    s_add_u32 s14, s14, s8
    s_add_u32 s52, s34, s14
    s_addc_u32 s53, s35, 0
    s_sub_u32 s54, {640*7680}, s14
    s_mul_i32 s14, s15, 320
    s_lshl_b32 s8, s3, 5
    s_add_u32 s14, s14, s8
    v_lshl_add_u32 v7, v2, 1, s14""")
    for t in range(2): a(f"global_load_ushort v{CH+t}, v7, s[32:33] offset:{16*t}")
    tile_loads(7680, 2)
    tile_ldsaddr()
    a(f"""s_mul_i32 s14, s15, 10240
    s_lshl_b32 s8, s11, 9
    s_add_u32 s14, s14, s8
    s_add_u32 s14, s14, {WS_G1}
    v_lshl_add_u32 v6, v0, 3, s14
    s_waitcnt vmcnt(2)""")
    for t in range(2):
        x, u = CH+t, CL+t
        a(f"""v_lshlrev_b32 v{x}, 16, v{x}
        v_mul_f32 v{u}, s42, v{x}
        v_exp_f32 v{u}, -v{u}
        v_add_f32 v{u}, 1.0, v{u}
        v_rcp_f32 v{u}, v{u}
        v_mul_f32 v{x}, v{x}, v{u}""")
        rbf(x, x)
        a(f"v_lshrrev_b32 v{u}, 16, v{x}")
    a("s_waitcnt vmcnt(0)")
    stamp(19)
    tile_finish(2, 10, "L_modjoin")
    a(f"""s_add_u32 s8, s6, {hex(TAGC)}
    v_mov_b32 v25, s8
    global_store_dwordx2 v6, v[24:25], s[40:41] sc1""")
    stamp(6)
    a("s_branch L_tilebar")
    a.label("L_poison")
    a(f"""s_mul_i32 s14, s9, 6
    s_add_u32 s14, s14, s3
    s_lshl_b32 s14, s14, 10
    s_add_u32 s14, s14, {WS_G3 - 10*1024}
    v_lshl_add_u32 v6, v0, 4, s14
    v_mov_b32 v88, -1
    v_mov_b32 v89, -1
    v_mov_b32 v90, -1
    v_mov_b32 v91, -1
    global_store_dwordx4 v6, v[88:91], s[40:41] sc1
    s_cmp_lg_u32 s3, 15
    s_cbranch_scc1 L_modjoin
    s_cmp_lg_u32 s9, 40
    s_cbranch_scc1 L_noboard
    v_lshlrev_b32 v6, 8, v0
    v_add_u32 v6, {WS_BOARD}, v6
    v_mov_b32 v8, 0
    global_store_dword v6, v8, s[40:41] sc1""")
    a.label("L_noboard")
    a(f"""s_cmp_ge_u32 s9, 40
    s_cbranch_scc1 L_modjoin
    s_mul_i32 s14, s9, {CNT_STRIDE}
    s_add_u32 s14, s14, {WS_CNT}
    v_mov_b32 v6, s14
    v_mov_b32 v8, 0
    s_mov_b64 exec, 1
    global_store_dword v6, v8, s[40:41] sc1
    s_mov_b64 exec, -1
    s_branch L_modjoin""")
    a.label("L_qtile")
    a(f"""s_mul_i32 s8, s4, 384
    s_lshl_b32 s9, s5, 7
    s_add_u32 s8, s8, s9
    s_add_u32 s52, s22, s8
    s_addc_u32 s53, s23, 0
    s_sub_u32 s54, {640*12288}, s8
    v_lshlrev_b32 v5, 2, v0
    s_mul_i32 s14, s3, 40
    v_add_u32 v8, s14, v3
    v_lshlrev_b32 v7, 1, v8""")
    XF = P.get('xfirst', 0)
    def xloads():
        for t in range(5): a(f"global_load_dword v{70+t}, v5, s[16:17] offset:{256*t}")
        for t in range(5): a(f"global_load_ushort v{CL+t}, v7, s[16:17] offset:{16*t}")
    if XF: xloads()
    tile_loads(12288)
    a("s_barrier")
    if not XF: xloads()
    a(f"""v_lshlrev_b32 v8, 3, v8
    v_and_b32 v9, 3, v2
    v_mul_u32_u24 v9, 10240, v9
    v_add_u32 v8, v8, v9
    v_lshrrev_b32 v9, 5, v0
    v_mul_u32_u24 v9, 5120, v9
    v_add_u32 v8, v8, v9
    v_add_u32 v8, {WS_G1}, v8
    v_lshlrev_b32 v9, 2, v2""")
    tile_ldsaddr()
    a(f"""v_lshrrev_b32 v10, 1, v0
    v_mul_u32_u24 v11, 43, v10
    v_lshrrev_b32 v11, 7, v11
    v_add_u32 v11, v11, v10
    v_lshlrev_b32 v11, 2, v11
    v_lshlrev_b32 v10, 4, v10
    v_add_u32 v10, 12, v10
    v_and_b32 v12, 1, v0
    v_cmp_eq_u32 s[14:15], 1, v12
    s_mul_i32 s8, s4, 768
    s_lshl_b32 s9, s5, 8
    s_add_u32 s8, s8, s9
    s_add_u32 s8, s8, {WS_GQ}
    v_cndmask_b32 v10, v11, v10, s[14:15]
    v_add_u32 v10, s8, v10
    s_waitcnt vmcnt({5 if XF else 0})""")
    for t in range(5):
        a(f"v_lshlrev_b32 v{76+2*t}, 16, v{70+t}\nv_and_b32 v{77+2*t}, s7, v{70+t}")
    a("v_add_f32 v70, v76, v77")
    for i in range(2, 10): a(f"v_add_f32 v70, v70, v{76+i}")
    red16('v_add_f32', [70]); red_hi('v_add_f32', [70], [71])
    a(f"v_mul_f32 v70, {hex(f2u(1/640))}, v70")
    a("v_mov_b32 v72, 0")
    for i in range(10): a(f"v_sub_f32 v{76+i}, v{76+i}, v70\nv_fmac_f32 v72, v{76+i}, v{76+i}")
    red16('v_add_f32', [72]); red_hi('v_add_f32', [72], [71])
    a(f"v_mul_f32 v72, {hex(f2u(1/640))}, v72")
    rbf(70, 70); rbf(72, 72)
    a(f"v_add_f32 v72, {hex(f2u(1e-5))}, v72")
    rbf(72, 72)
    a("v_sqrt_f32 v72, v72")
    rbf(72, 72)
    a("v_rcp_f32 v72, v72")
    for t in range(5):
        r = CL+t
        a(f"v_lshlrev_b32 v{r}, 16, v{r}\nv_sub_f32 v{r}, v{r}, v70")
        rbf(r, r)
        a(f"v_mul_f32 v{r}, v{r}, v72")
        rbf(r, r)
    a(f"s_waitcnt lgkmcnt(0)\ns_add_u32 s11, s6, {hex(TAGC)}")
    stamp(2, 0, 108)
    GG = 88
    lab = a.newlabel('GM'); a.label(lab)
    for t in range(5):
        a(f"global_load_dwordx2 v[{GG+2*t}:{GG+2*t+1}], v8, s[40:41] offset:{64*t} sc1")
    a("s_waitcnt vmcnt(0)")
    a(f"v_xor_b32 v70, s11, v{GG+1}")
    for k in range(1, 5): a(f"v_bitop3_b32 v70, v70, v{GG+2*k+1}, s11 bitop3:0xf6")
    a("v_cmp_ne_u32 vcc, 0, v70")
    spin_tail(lab, P.get('gmslp', 2))
    stamp(3)
    xs = [GG+2*t for t in range(5)]; ys = [GG+2*t+1 for t in range(5)]
    for x in xs: dpp('v_add_f32', x, x, x, 'row_ror:8')
    red_hi('v_add_f32', xs, ys, bits=(4,))
    for x in xs: rbf(x, x)
    for x, y in zip(xs, ys): a(f"v_mov_b32 v{y}, v{x}")
    for x, y in zip(xs, ys): a(f"v_permlane32_swap_b32 v{x}, v{y}")
    for y in ys: a(f"v_add_f32 v{y}, 1.0, v{y}")
    for y in ys: rbf(y, y)
    for t in range(5): a(f"v_mul_f32 v{ys[t]}, v{CL+t}, v{ys[t]}")
    for y in ys: rbf(y, y)
    for x, y in zip(xs, ys): a(f"v_add_f32 v{y}, v{y}, v{x}")
    for y in ys: a(f"v_cvt_pk_bf16_f32 v{y}, v{y}, 0")
    for t in range(5): a(f"ds_bpermute_b32 v{CL+t}, v9, v{ys[t]}")
    for t in range(5): a(f"s_waitcnt lgkmcnt({4-t})\nv_lshlrev_b32 v{CH+t}, 16, v{CL+t}")
    tile_finish()
    a(f"""v_mov_b32_dpp v25, v24 quad_perm:[1,0,3,2] row_mask:0xf bank_mask:0xf
    v_mov_b32 v26, s11
    v_cvt_pk_bf16_f32 v24, v24, v25
    v_cndmask_b32 v24, v24, v26, s[14:15]
    s_mov_b32 exec_lo, 0x557fffff
    s_mov_b32 exec_hi, 0x55555555
    global_store_dword v10, v24, s[40:41] sc1
    s_mov_b64 exec, -1""")
    stamp(4, 0, 108)
    a.label("L_tilebar")
    a("s_barrier")
    a.label("L_roles")
    a(f"""s_cmp_lt_u32 s3, 4
    s_cbranch_scc1 L_chain""")
    slots = [vAK, vAV, vB[0], vB[0]+12, vB[1], vB[1]+12]
    def ld3(r, srd, soff, pol):
        for j in range(3): a(f"buffer_load_dwordx4 v[{r+4*j}:{r+4*j+3}], v{vOFF}, s[{srd}:{srd+3}], s{soff} offen offset:{128*j} {pol}")
    a(f"""s_sub_u32 s9, s3, 4
    v_lshlrev_b32 v{vSC}, 2, v2
    v_add_u32 v{vSC}, {L_SC}, v{vSC}
    s_cmp_ge_u32 s5, 3
    s_cbranch_scc1 L_fill
    s_cmp_ge_u32 s3, {4+NST}
    s_cbranch_scc1 L_retired
    s_mul_i32 s64, s5, {SQ*3072}
    s_mov_b32 s65, {SQ}
    s_mul_i32 s62, s9, 3072
    s_add_u32 s62, s62, s64
    s_lshl_b32 s74, s9, 5
    s_add_u32 s75, s74, 256""")
    ld3(vAK, 44, 62, KLD)
    a(f"s_add_u32 s62, s62, {NST*3072}")
    ld3(vAV, 44, 62, KLD)
    a("s_branch L_filled")
    a.label("L_fill")
    a(f"""s_mul_i32 s64, s5, {SN*3072}
    s_add_u32 s64, s64, {(3*SQ - 3*SN)*3072}
    s_mul_i32 s8, s5, {SM*3072}
    s_add_u32 s8, s8, {(3*SQ + 2*SN - 5*SM)*3072}
    s_movk_i32 s65, {SN}
    s_cmp_ge_u32 s5, 5
    s_cselect_b32 s64, s8, s64
    s_cselect_b32 s65, {SM}, s65
    s_cmp_eq_u32 s5, 7
    s_cselect_b32 s65, {SX}, s65
    s_mul_i32 s62, s9, 3072
    s_add_u32 s62, s62, s64
    s_lshl_b32 s74, s9, 5
    v_add_u32 v{vSC+1}, s74, v{vSC}
    s_add_u32 s74, s74, {12*NF*32}
    s_add_u32 s75, s74, 256
    s_mul_i32 s11, s9, {3072*NLK}""")
    stamp(0)
    issued = 0
    for k in range(NF):
        for j in range(3):
            if issued in SLOW: a(f"s_waitcnt vmcnt({SLOW[issued]})")
            elif issued >= PW: a(f"s_waitcnt vmcnt({PW-1})")
            if k < 6:
                r = slots[k] + 4*j
                a(f"buffer_load_dwordx4 v[{r}:{r+3}], v{vOFF}, s[44:47], s62 offen offset:{128*j} {KLD}")
            else:
                a(f"s_add_u32 m0, s11, {L_W + 3072*(k-6) + 896*j}")
                a(f"buffer_load_dwordx4 v{vOFF}, s[44:47], s62 offen offset:{128*j} {KLD} lds")
            issued += 1
        a(f"s_add_u32 s62, s62, {12*3072}")
    a.label("L_filled")
    a("v_mov_b32 v4, 0")
    stamp(1)
    lds_wait(L_FLAG, 3, "L_qready", 1)

    a.label("L_chain")
    a(f"""s_cmp_eq_u32 s3, 3
    s_cbranch_scc1 L_xwave
    s_setprio 2
    s_mul_i32 s8, s4, 768
    s_lshl_b32 s9, s3, 8
    s_add_u32 s8, s8, s9
    s_add_u32 s8, s8, {WS_GQ}
    s_add_u32 s60, s40, s8
    s_addc_u32 s61, s41, 0
    v_lshlrev_b32 v5, 2, v0
    v_lshl_add_u32 v5, s3, 7, v5
    v_mov_b32 v6, 0
    v_mov_b32 v7, 1
    s_waitcnt lgkmcnt(0)
    s_add_u32 s88, s6, {hex(TAGC)}""")
    def qreg(k):
        if k < 16: return 44 + k
        if k < 32: return 68 + k - 16
        if k < 40: return 8 + k - 32
        return 84 + k - 40
    a.label("L_qpoll")
    a(f"""s_load_dwordx16 s[44:59], s[60:61], 0 glc
    s_load_dwordx16 s[68:83], s[60:61], 64 glc
    s_load_dwordx8 s[8:15], s[60:61], 128 glc
    s_load_dwordx4 s[84:87], s[60:61], 160 glc
    s_waitcnt lgkmcnt(0)
    s_xor_b32 s89, s{qreg(3)}, s88""")
    for g in range(1, 11): a(f"s_xor_b32 s90, s{qreg(4*g+3)}, s88\ns_or_b32 s89, s89, s90")
    a(f"""s_cbranch_scc0 L_qgot
    s_add_u32 s67, s67, 1
    s_cmp_gt_u32 s67, {SPIN}
    s_cbranch_scc1 L_end
    s_sleep 2
    s_branch L_qpoll""")
    a.label("L_qgot")
    for i in range(32): a(f"v_writelane_b32 v4, s{qreg(4*(i//3) + i%3)}, {i}")
    a(f"""s_mov_b32 exec_hi, 0
    ds_write_b32 v5, v4 offset:{L_Q}
    s_mov_b64 exec, 1
    ds_add_u32 v6, v7 offset:{L_FLAG}
    s_mov_b64 exec, -1""")
    stamp(5, 0, 44)
    a("s_branch L_tail")

    a.label("L_xwave")
    XT = 48; XG = 88
    a(f"""s_cmp_lt_u32 s2, 216
    s_cbranch_scc1 L_tail
    s_sub_u32 s9, s2, 196""")
    a.label("L_xrest")
    a(f"""v_mul_u32_u24 v4, 7680, v2
    v_lshl_add_u32 v4, v3, 4, v4
    s_lshl_b32 s14, s9, 7
    s_add_u32 s52, s34, s14
    s_addc_u32 s53, s35, 0
    s_sub_u32 s54, {640*7680}, s14
    s_mov_b32 s10, 0
    s_mov_b32 s11, 0
    v_lshlrev_b32 v7, 1, v2
    v_mov_b32 v6, 0""")
    for i in range(8): a(f"v_mov_b32 v{XG+i}, 0")
    lds_wait(L_FLAG, 3, "L_xrloop", 4, vz=6)
    a.label("L_xrloop")
    for rb in range(10): a(f"global_load_ushort v{24+rb}, v7, s[32:33] offset:{16*rb}")
    for rb in range(10):
        a(f"buffer_load_dwordx4 v[{XT+4*rb}:{XT+4*rb+3}], v4, s[52:55], s10 offen {XLD}")
        a(f"s_add_u32 s10, s10, {8*7680}")
    a("s_waitcnt vmcnt(10)")
    for rb in range(10):
        x, t = 24+rb, 34+rb
        a(f"""v_lshlrev_b32 v{x}, 16, v{x}
        v_mul_f32 v{t}, s42, v{x}
        v_exp_f32 v{t}, -v{t}
        v_add_f32 v{t}, 1.0, v{t}
        v_rcp_f32 v{t}, v{t}
        v_mul_f32 v{x}, v{x}, v{t}""")
        rbf(x, x)
        a(f"v_lshrrev_b32 v{t}, 16, v{x}")
    a("s_waitcnt vmcnt(0)")
    tile_dots(XG, XT, 10, [24+rb for rb in range(10)], [34+rb for rb in range(10)])
    a(f"""v_add_u32 v7, 160, v7
    s_add_u32 s11, s11, 1
    s_cmp_lt_u32 s11, 8
    s_cbranch_scc1 L_xrloop""")
    tile_reduce8(XG, 's[12:13]')
    rbf(XG, XG)
    a(f"""s_lshl_b32 s9, s9, 9
    s_add_u32 s9, s9, {WS_GM}
    s_add_u32 s8, s6, {hex(TAGC)}
    v_lshl_add_u32 v5, v3, 3, v2
    v_lshl_add_u32 v5, v5, 3, s9
    v_mov_b32 v{XG+1}, s8
    global_store_dwordx2 v5, v[{XG}:{XG+1}], s[40:41] sc1""")
    stamp(7, 3, 44)
    a("s_branch L_tail")

    def read_q_init():
        a(f"""v_lshlrev_b32 v4, 4, v3
        ds_read_b128 v[{vQ}:{vQ+3}], v4 offset:{L_Q}
        ds_read_b128 v[{vQ+4}:{vQ+7}], v4 offset:{L_Q+128}
        ds_read_b128 v[{vQ+8}:{vQ+11}], v4 offset:{L_Q+256}
        v_mov_b32 v{vM}, 0xff7fffff
        v_mov_b32 v{vLS}, 0
        v_mov_b32 v{vU+4}, 0
        v_mov_b32 v{vU+5}, 1""")
        for i in range(24): a(f"v_mov_b32 v{vACC+i}, 0")
        a("s_waitcnt lgkmcnt(0)")

    vLT = 126 if not STAMP else 119
    def score(addr, off=0):
        t0, t1, t2 = vT[0], vT[1], vT[2]
        a(f"v_add_f32 v{t0}, v{t0}, v{t1}\nv_add_f32 v{t0}, v{t0}, v{t2}")
        red8('v_add_f32', t0)
        rbf(t0, t0)
        a(f"v_mul_f32 v{t0}, s43, v{t0}")
        rbf(t0, t0)
        a(f"v_min_u32 v{t0}, -2, v{t0}\nds_write_b32 v{addr}, v{t0} offset:{off}")
    def lticket(which):
        a(f"""s_mov_b64 exec, 1
        ds_add_rtn_u32 v{vLT}, v{vU+4}, v{vU+5} offset:{L_KF + 4*which}
        s_mov_b64 exec, -1""")
    def take(k, out):
        a(f"""s_waitcnt lgkmcnt(0)
        v_readfirstlane_b32 s8, v{vLT}
        s_cmp_ge_u32 s8, s65
        s_cbranch_scc1 {out}
        s_mul_i32 s62, s8, 3072
        s_add_u32 s62, s62, s64
        s_lshl_b32 s{74+k}, s8, 5""")
    def rest_of_buffer(first, extra):
        for k in range(first, 6):
            a(f"s_waitcnt vmcnt({3*(NF-1-k) + extra})")
            qk_dots(slots[k]); score(vSC+1, 384*k)
        if NLK:
            a(f"s_waitcnt vmcnt({extra})\nv_lshl_add_u32 v{vU}, v0, 4, s11")
            for k in range(NLK):
                for j in range(3): a(f"ds_read_b128 v[{vB[0]+12*k+4*j}:{vB[0]+12*k+4*j+3}], v{vU} offset:{L_W + 3072*k + 1024*j}")
            for k in range(NLK):
                a(f"s_waitcnt lgkmcnt({3*(NLK-1-k)})" if k == 0 else "s_waitcnt lgkmcnt(0)")
                qk_dots(vB[0]+12*k); score(vSC+1, 384*(6+k))
    a.label("L_qready")
    read_q_init()
    stamp(8)
    a(f"""s_cmp_ge_u32 s3, {4+NST}
    s_cbranch_scc1 L_catch2
    s_cmp_lt_u32 s5, 3
    s_cbranch_scc1 L_kgo""")
    for k in range(2):
        a(f"s_waitcnt vmcnt({3*(NF-1)})")
        qk_dots(slots[k])
        ld3(slots[k], 44, 62, KLD)
        if k == 0: a(f"s_add_u32 s62, s62, {NST*3072}")
        score(vSC+1, 384*k)
    rest_of_buffer(2, 6)
    stamp(9)
    a.label("L_kgo")
    lticket(0)
    a.label("L_kloop")
    for k in range(2):
        a(f"s_waitcnt vmcnt(3)\nv_add_u32 v{vSC+1}, s{74+k}, v{vSC}")
        qk_dots(slots[k])
        take(k, f"L_kend{k}")
        ld3(slots[k], 44, 62, KLD)
        lticket(0)
        score(vSC+1)
    a("s_branch L_kloop")
    def v_fill(k, i):
        a(f"""s_add_u32 s8, s3, {8*i - 4}
        s_mul_i32 s62, s8, 3072
        s_add_u32 s62, s62, s64
        s_lshl_b32 s{74+k}, s8, 5""")
        ld3(slots[k], 48, 62, VLD)
    for k in range(2):
        a.label(f"L_kend{k}")
        stamp(31)
        v_fill(k, 0)
        score(vSC+1)
        a(f"s_waitcnt vmcnt(3)\nv_add_u32 v{vSC+1}, s{75-k}, v{vSC}")
        qk_dots(slots[1-k])
        v_fill(1-k, 1)
        lticket(1)
        score(vSC+1)
        a(f"s_branch L_v{k}")
    slow = []
    def weigh(k, last=False):
        lab = a.newlabel('SC')
        a(f"v_add_u32 v{vSC+1}, s{74+k}, v{vSC}")
        a.label(lab)
        a(f"""ds_read_b32 v{vT[0]}, v{vSC+1}
        s_waitcnt lgkmcnt(0)
        v_cmp_eq_u32 vcc, -1, v{vT[0]}
        s_cbranch_vccnz {lab}_again""")
        slow.append(lab)
        softmax(last, True)
    for k in range(2):
        a.label(f"L_v{k}")
        weigh(k)
        a("s_waitcnt vmcnt(3)")
        pv(slots[k])
        take(k, f"L_vend{k}")
        ld3(slots[k], 48, 62, VLD)
        lticket(1)
    a("s_branch L_v0")
    def shared_first(none):
        a(f"""s_waitcnt lgkmcnt(0)
        s_add_u32 s8, s8, {NSTAT}
        s_cmp_ge_u32 s8, {NUNITS}
        s_cbranch_scc1 {none}
        s_mul_i32 s62, s8, 3072""")
    a.label("L_vend1")
    a("s_mov_b32 s8, 1\ns_atomic_add s8, s[60:61], 0 glc")
    shared_first("L_vnoneA")
    weigh(0)
    a("s_waitcnt vmcnt(0)")
    pv(vAK)
    ticket(); loadK(vAK); loadV(vAV)
    a("s_branch L_loop")
    a.label("L_vend0")
    a("s_mov_b32 s8, 1\ns_atomic_add s8, s[60:61], 0 glc")
    shared_first("L_vnoneB")
    ticket(); loadK(vAK)
    weigh(1)
    a("s_waitcnt vmcnt(4)")
    pv(vAV)
    loadV(vAV)
    a.label("L_loop")
    if JIT == 2: a("s_waitcnt vmcnt(5)\ns_mov_b32 s8, 1\ns_atomic_add s8, s[60:61], 0 glc")
    a("s_waitcnt vmcnt(3)")
    if JIT == 1: a("s_mov_b32 s8, 1\ns_atomic_add s8, s[60:61], 0 glc")
    if not JIT: a(f"v_readfirstlane_b32 s8, v{vTK}")
    qk_dots(vAK)
    if JIT: a("s_waitcnt lgkmcnt(0)")
    a(f"""s_add_u32 s8, s8, {NSTAT}
    s_cmp_ge_u32 s8, {NUNITS}
    s_cbranch_scc1 L_drain
    s_mul_i32 s62, s8, 3072""")
    if STAMP: a("s_memrealtime s[92:93]\ns_lshr_b32 s94, s8, 7\ns_add_u32 m0, s94, 32\ns_waitcnt lgkmcnt(0)\nv_writelane_b32 v126, s92, m0")
    ticket(True); loadK(vAK)
    softmax()
    a("s_waitcnt vmcnt(4)")
    pv(vAV)
    loadV(vAV)
    a("s_branch L_loop")

    a.label("L_drain")
    a("s_setprio 3")
    stamp(10)
    softmax(last=True)
    a.label("L_drain2")
    part_addr()
    a("s_waitcnt vmcnt(0)")
    pv(vAV)
    a.label("L_drain3")
    stamp(11)
    part_write()
    a("s_branch L_end")

    a.label("L_vnoneB")
    a("s_setprio 3")
    stamp(10)
    weigh(1, True)
    a("s_branch L_drain2")
    a.label("L_vnoneA")
    a("s_setprio 3")
    stamp(10)
    weigh(0, True)
    a("s_waitcnt vmcnt(0)")
    pv(vAK)
    part_addr()
    a("s_branch L_drain3")

    for lab in slow:
        a.label(lab + "_again")
        a(f"""s_add_u32 s67, s67, 1
        s_cmp_gt_u32 s67, {SPIN*8}
        s_cbranch_scc1 L_end
        s_branch {lab}""")

    a.label("L_catch2")
    rest_of_buffer(0, 0)
    a.label("L_retired")
    a(f"""v_mov_b32 v52, 0
    v_mov_b32 v53, 1
    s_cmp_eq_u32 s3, 15
    s_cbranch_scc1 L_fwave""")
    a(f"""s_sub_u32 s9, s3, 12
    s_lshl_b32 s8, s9, 8
    v_lshl_add_u32 v4, v0, 2, s8
    v_and_b32 v11, 7, v0
    v_lshlrev_b32 v11, 3, v11
    v_add_u32 v12, {L_PART}, v4
    s_lshl_b32 s8, s4, 3
    s_add_u32 s8, s8, s5
    s_lshl_b32 s8, s8, 10
    s_add_u32 s8, s8, {WS_G3}
    v_add_u32 v4, s8, v4""")
    lds_wait(L_FLAG+4, 1, "L_cnear", 4, vz=52)
    a.label("L_cnear")
    lds_wait(L_FLAG+4, NST, "L_cml", 0, vz=52)
    a.label("L_cml")
    a(f"""ds_read_b64 v[6:7], v11 offset:{L_ML}
    s_waitcnt lgkmcnt(0)
    v_mov_b32 v8, v6""")
    red8('v_max_f32', 8)
    a(f"""v_sub_f32 v6, v6, v8
    v_mul_f32 v6, s42, v6
    v_exp_f32 v6, v6
    v_mov_b32 v40, 0
    v_mov_b32 v41, 0
    v_mul_f32 v9, v7, v6
    s_setprio 3
    s_cmp_lg_u32 s9, 0
    s_cbranch_scc1 L_cwait""")
    red8('v_add_f32', 9)
    a(f"""v_min_u32 v8, -2, v8
    v_min_u32 v9, -2, v9
    s_mov_b64 exec, 1
    global_store_dwordx2 v4, v[8:9], s[40:41] offset:768 sc1
    s_mov_b64 exec, -1""")
    a.label("L_cwait")
    lds_wait(L_FLAG+8, NST, "L_cgo", 0, vz=52)
    a.label("L_cgo")
    for k in range(4): a(f"ds_read2st64_b32 v[{24+2*k}:{25+2*k}], v12 offset0:{6*k} offset1:{6*k+3}")
    for k in range(8):
        if k % 2 == 0: a(f"s_waitcnt lgkmcnt({3-k//2})")
        a(f"v_fmac_f32_dpp v{40+(k&1)}, v6, v{24+k} row_newbcast:{k} row_mask:0xf bank_mask:0xf")
    a(f"""v_add_f32 v40, v40, v41
    v_min_u32 v40, -2, v40
    global_store_dword v4, v40, s[40:41] sc1
    s_mov_b64 exec, 1
    ds_add_u32 v52, v53 offset:{L_FLAG+8}
    s_mov_b64 exec, -1""")
    stamp(12)
    a("s_branch L_end")

    def dma(n, srd, voff, sstep, lbase, pace=None):
        for t in range(n):
            v = voff[t] if isinstance(voff, list) else voff
            a(f"""s_mov_b32 s10, {t*sstep}
            s_add_u32 m0, s11, {lbase + 1024*t}
            buffer_load_dwordx4 v{v}, s[{srd}:{srd+3}], s10 offen {TLD} lds""")
            if pace is not None: a(f"s_waitcnt vmcnt({pace})")
    a.label("L_tail")
    a(f"""s_setprio 0
    v_lshrrev_b32 v2, 4, v0
    v_and_b32 v3, 15, v0
    v_lshrrev_b32 v10, 2, v3
    v_lshl_add_u32 v10, v2, 3, v10
    v_and_b32 v11, 3, v0
    v_mov_b32 v4, 0
    v_lshrrev_b32 v12, 2, v0
    v_and_b32 v13, 31, v0
    v_lshlrev_b32 v13, 2, v13
    s_mov_b32 s14, 0xffff0000
    s_mov_b32 s15, 0xffff0000
    s_mov_b32 s55, 0x20000
    s_mov_b32 s59, 0x20000""")
    if MS: a(f"s_sub_u32 s66, s2, {MB}\ns_cmp_lt_u32 s66, 48\ns_cbranch_scc1 L_notw")
    lds_wait(L_FLAG+4, 1, "L_near", 4)
    a.label("L_near")
    a(f"""s_cmp_lg_u32 s3, 0
    s_cbranch_scc1 L_rolewait
    s_and_b32 s9, s2, 7
    s_mul_i32 s8, s9, {CNT_STRIDE}
    s_add_u32 s8, s8, {WS_CNT + 32*CNT_STRIDE}
    s_add_u32 s60, s40, s8
    s_addc_u32 s61, s41, 0""")
    lds_wait(L_FLAG+4, RTRIG, "L_roleget", 0)
    a.label("L_roleget")
    a(f"""s_mov_b32 s8, 1
    s_atomic_add s8, s[60:61], 0 glc
    s_waitcnt lgkmcnt(0)
    s_lshl_b32 s8, s8, 3
    s_add_u32 s8, s8, s9
    s_add_u32 s8, s8, 1
    v_mov_b32 v5, s8
    ds_write_b32 v4, v5 offset:{L_ROLE}
    s_branch L_rolegot""")
    a.label("L_rolewait")
    lds_wait(L_ROLE, 1, "L_rolegot", 0)
    a.label("L_rolegot")
    if STAMP: a("v_writelane_b32 v126, s8, 26")
    if MS:
        if STAMP: a("s_add_u32 s9, s8, 48\nv_writelane_b32 v126, s9, 26")
        a("s_sub_u32 s64, s8, 1\ns_cmp_ge_u32 s64, 160\ns_cbranch_scc1 L_end")
    else:
        a(f"""s_sub_u32 s66, s8, 1
        s_cmp_lt_u32 s66, 48
        s_cbranch_scc1 L_notw
        s_sub_u32 s64, s66, 48
        s_cmp_ge_u32 s64, 160
        s_cbranch_scc1 L_end""")
    BF = 64
    a(f"""s_mul_i32 s65, s64, 205
    s_lshr_b32 s65, s65, 11
    s_mul_i32 s8, s65, 10
    s_sub_u32 s64, s64, s8
    s_lshl_b32 s9, s65, 2
    s_add_u32 s9, s9, s3
    s_mul_i32 s8, s9, {96*1280}
    s_lshl_b32 s10, s64, 7
    s_add_u32 s8, s8, s10
    s_add_u32 s52, s24, s8
    s_addc_u32 s53, s25, 0
    s_sub_u32 s54, {6144*1280}, s8
    v_lshrrev_b32 v14, 3, v0
    v_mul_u32_u24 v14, 1280, v14
    v_and_b32 v16, 7, v0
    v_lshl_add_u32 v14, v16, 4, v14
    s_mul_i32 s11, s3, 12288""")
    if RTRIG >= TRIG:
        dma(12, 52, 14, 8*1280, L_W)
        stamp(24)
    a(f"""v_lshlrev_b32 v15, 7, v10
    v_lshl_add_u32 v15, v11, 3, v15
    v_add_u32 v15, s11, v15
    s_lshr_b32 s9, s9, 1
    s_lshl_b32 s9, s9, 13
    s_add_u32 s9, s9, {WS_G3}
    v_lshl_add_u32 v16, v16, 10, s9
    s_and_b32 s8, s3, 1
    s_mul_i32 s8, s8, 384
    s_add_u32 s9, s9, s8
    v_lshlrev_b32 v17, 11, v2
    v_lshl_add_u32 v17, v3, 3, v17
    v_add_u32 v17, s9, v17
    s_mul_i32 s8, s3, 384
    v_and_b32 v19, 1, v2
    v_lshl_add_u32 v18, v3, 1, v19
    v_lshl_add_u32 v18, v18, 1, s8
    v_lshrrev_b32 v19, 5, v0
    v_lshl_add_u32 v12, v19, 7, v18
    v_lshl_add_u32 v19, v2, 4, s8
    v_lshlrev_b32 v13, 2, v0
    s_lshl_b32 s8, s3, 8
    v_add_u32 v20, s8, v13
    s_mul_i32 s8, s65, 2560
    s_lshl_b32 s10, s64, 8
    s_add_u32 s8, s8, s10
    s_add_u32 s8, s8, {WS_G4}
    v_add_u32 v21, s8, v13
    s_mov_b32 s12, 0
    s_mov_b32 s13, -1
    s_setprio 2""")
    def g3_loads():
        for t in range(3):
            for b in range(2):
                r = 112 + 4*t + 2*b
                a(f"global_load_dwordx2 v[{r}:{r+1}], v17, s[40:41] offset:{1024*b+128*t} sc1")
    if RTRIG < TRIG:
        lds_wait(L_FLAG+4, TRIG, "L_wgo", 0)
        a.label("L_wgo")
        dma(12, 52, 14, 8*1280, L_W)
        stamp(24)
    lab = a.newlabel('ML'); a.label(lab)
    a("global_load_dwordx2 v[6:7], v16, s[40:41] offset:768 sc1")
    g3_loads()
    a("""s_waitcnt vmcnt(0)
    v_max_u32 v8, v6, v7
    v_cmp_eq_u32 vcc, -1, v8""")
    spin_tail(lab)
    stamp(25)
    for ks in range(3):
        for nt in range(4):
            for hf in range(2):
                r = BF + 16*ks + 4*nt + 2*hf
                a(f"ds_read_b64_tr_b16 v[{r}:{r+1}], v15 offset:{L_W + 4096*ks + 512*hf + 32*nt}")
    a("v_mov_b32 v8, v6")
    red8('v_max_f32', 8)
    a(f"""v_sub_f32 v6, v6, v8
    v_mul_f32 v6, s42, v6
    v_exp_f32 v6, v6
    v_mul_f32 v7, v7, v6""")
    red8('v_add_f32', 7)
    a("v_rcp_f32 v7, v7\nv_mul_f32 v6, v6, v7")
    for r in range(4):
        a(f"v_mov_b32_dpp v8, v6 row_newbcast:{2*r} row_mask:{hex(1<<r)} bank_mask:0xf")
        a(f"v_mov_b32_dpp v22, v6 row_newbcast:{2*r+1} row_mask:{hex(1<<r)} bank_mask:0xf")
    a("s_mov_b32 s70, 0\ns_waitcnt lgkmcnt(0)\ns_branch L_g3chk")
    lab = a.newlabel('G3'); a.label(lab)
    a("s_cmp_lg_u32 s70, 0\ns_cbranch_scc1 L_g3ld\ns_mov_b32 s70, 1")
    lds_wait(L_FLAG+8, NST+3, "L_g3ld", 1)
    a.label("L_g3ld")
    stamp(30)
    a("s_mov_b64 exec, s[68:69]")
    g3_loads()
    a("s_mov_b64 exec, -1")
    a.label("L_g3chk")
    a("s_waitcnt vmcnt(0)")
    for t in range(3):
        a(f"v_pk_mul_f32 v[{48+2*t}:{49+2*t}], v[{112+4*t}:{113+4*t}], v[8:9] op_sel_hi:[1,0]")
    for t in range(3):
        a(f"v_pk_fma_f32 v[{48+2*t}:{49+2*t}], v[{114+4*t}:{115+4*t}], v[22:23], v[{48+2*t}:{49+2*t}] op_sel_hi:[1,0,1]")
    a("v_pk_add_f32 v[56:57], v[48:49], v[50:51]\nv_pk_add_f32 v[56:57], v[56:57], v[52:53]")
    nan_retry([56, 57], list(range(112, 124)), lab, 60, True)
    stamp(13)
    a("""v_mov_b32 v54, v50
    v_mov_b32 v55, v51
    v_permlane32_swap_b32 v48, v52
    v_permlane32_swap_b32 v49, v53
    v_permlane32_swap_b32 v50, v54
    v_permlane32_swap_b32 v51, v55
    v_pk_add_f32 v[48:49], v[48:49], v[52:53]
    v_pk_add_f32 v[50:51], v[50:51], v[54:55]""")
    rs_step(4, [(48, 49), (50, 51)])
    a(f"""v_cvt_pk_bf16_f32 v48, v48, v48
    v_cvt_pk_bf16_f32 v50, v50, v50
    ds_write_b16 v12, v48 offset:{L_O}
    ds_write_b16 v18, v50 offset:{L_O + 64}""")
    for ks in range(3): a(f"ds_read_b128 v[{24+4*ks}:{27+4*ks}], v19 offset:{L_O + 64*ks}")
    for ks in range(3):
        a(f"s_waitcnt lgkmcnt({2-ks})")
        for nt in range(4):
            c = '0' if ks == 0 else f"v[{40+4*nt}:{43+4*nt}]"
            a(f"v_mfma_f32_16x16x32_bf16 v[{40+4*nt}:{43+4*nt}], v[{24+4*ks}:{27+4*ks}], v[{BF+16*ks+4*nt}:{BF+16*ks+4*nt+3}], {c}")
    a(f"""v_cndmask_b32 v56, v40, v44, s[14:15]
    v_cndmask_b32 v57, v48, v52, s[14:15]
    v_cndmask_b32 v56, v56, v57, s[12:13]
    ds_write_b32 v20, v56 offset:{L_WP}
    s_waitcnt lgkmcnt(0)
    s_barrier
    s_cmp_lg_u32 s3, 0
    s_cbranch_scc1 L_end
    ds_read2st64_b32 v[24:25], v13 offset0:{L_WP//256} offset1:{L_WP//256+1}
    ds_read2st64_b32 v[26:27], v13 offset0:{L_WP//256+2} offset1:{L_WP//256+3}
    s_waitcnt lgkmcnt(1)
    v_add_f32 v24, v24, v25
    s_waitcnt lgkmcnt(0)
    v_add_f32 v26, v26, v27
    v_add_f32 v24, v24, v26
    v_min_u32 v24, -2, v24
    global_store_dword v21, v24, s[40:41] sc1""")
    stamp(14)
    a("s_branch L_end")

    a.label("L_notw")
    if MS and STAMP: a("s_add_u32 s9, s66, 1\nv_writelane_b32 v126, s9, 26")

    B1, B2 = 48, 88
    a(f"""s_mul_i32 s8, s3, {160*3072}
    s_lshl_b32 s9, s66, 6
    s_add_u32 s8, s8, s9
    s_add_u32 s52, s28, s8
    s_addc_u32 s53, s29, 0
    s_sub_u32 s54, {640*3072}, s8
    s_mul_i32 s11, s3, 10240
    s_mul_i32 s8, s66, {32*1280}
    s_add_u32 s8, s8, s11
    s_add_u32 s56, s30, s8
    s_addc_u32 s57, s31, 0
    s_mov_b32 s58, 10240
    s_mul_i32 s72, s3, 10496
    v_mov_b32 v31, 0x10000
    v_mul_u32_u24 v14, 3072, v12
    v_lshl_add_u32 v14, v11, 4, v14
""")
    dma(10, 52, 14, 16*3072, L_W)
    for t in range(11):
        a(f"""v_add_u32 v5, {64*t}, v0
        v_mul_u32_u24 v6, 800, v5
        v_lshrrev_b32 v6, 16, v6
        v_mul_u32_u24 v7, 82, v6
        v_sub_u32 v7, v5, v7
        v_lshlrev_b32 v6, 5, v6
        v_lshlrev_b32 v5, 4, v5
        v_sub_u32 v5, v5, v6
        v_cmp_lt_u32 vcc, 79, v7
        v_cndmask_b32 v30, v5, v31, vcc""".replace("v_cndmask_b32 v30, v5, v31, vcc", "v_cndmask_b32 v30, v5, v31, vcc"))
        if t == 10: a("s_mov_b64 exec, 0xffff")
        a(f"""s_add_u32 m0, s72, {L_W2 + 1024*t}
        buffer_load_dwordx4 v30, s[56:59], 0 offen {TLD} lds""")
    a("s_mov_b64 exec, -1")
    stamp(24)
    a(f"""s_mul_i32 s9, s3, 320
    v_lshlrev_b32 v15, 6, v10
    v_lshl_add_u32 v15, v11, 3, v15
    v_add_u32 v15, s11, v15
    v_mul_u32_u24 v16, 1312, v10
    v_lshl_add_u32 v16, v11, 3, v16
    v_add_u32 v16, s9, v16
    v_add_u32 v16, {L_W2}, v16""")
    a(f"""v_and_b32 v5, 1, v2
    v_lshl_add_u32 v5, v3, 1, v5
    v_lshrrev_b32 v6, 5, v0
    v_lshl_add_u32 v6, v6, 6, v5
    v_add_u32 v7, 128, v5
    s_mul_i32 s8, s3, 160
    v_lshl_add_u32 v17, v6, 1, s9
    v_lshl_add_u32 v18, v7, 1, s9
    v_add_u32 v6, s8, v6
    v_add_u32 v7, s8, v7
    v_lshlrev_b32 v19, 2, v6
    v_lshlrev_b32 v20, 2, v7
    v_lshlrev_b32 v8, 2, v0
    global_load_ushort v40, v17, s[16:17]
    global_load_ushort v41, v17, s[16:17] offset:64
    global_load_ushort v42, v18, s[16:17]""")
    for t in range(5): a(f"global_load_dword v{24+t}, v8, s[16:17] offset:{256*t}")
    a(f"""v_lshlrev_b32 v6, 3, v6
    v_lshlrev_b32 v7, 3, v7
    v_add_u32 v6, {WS_GR}, v6
    v_add_u32 v7, {WS_GR}, v7
    v_add_u32 v8, 5120, v6
    v_add_u32 v9, 5120, v7
    v_add_u32 v21, 10240, v6
    v_add_u32 v22, 10240, v7
    s_waitcnt lgkmcnt(0)
    s_add_u32 s6, s6, {hex(TAGC)}""")
    if MS:
        lds_wait(L_KF+4, 140, "L_mmid", 16)
        a.label("L_mmid")
    lab = a.newlabel('GR'); a.label(lab)
    GRB = 88
    srcs = [(6, 0), (6, 256), (7, 0), (8, 0), (8, 256), (9, 0), (21, 0), (21, 256), (22, 0)]
    for i, (v, o) in enumerate(srcs): a(f"global_load_dwordx2 v[{GRB+2*i}:{GRB+2*i+1}], v{v}, s[40:41] offset:{o} sc1")
    a(f"s_waitcnt vmcnt(0)\nv_xor_b32 v5, s6, v{GRB+1}")
    for i in range(1, 9): a(f"v_bitop3_b32 v5, v5, v{GRB+2*i+1}, s6 bitop3:0xf6")
    a("v_cmp_ne_u32 vcc, 0, v5")
    spin_tail(lab, 32 if MS else 4)
    for j in range(3):
        a(f"""v_lshlrev_b32 v{40+j}, 16, v{40+j}
        v_mov_b32 v{43+j}, v{GRB+2*j}
        v_mov_b32 v{120+j}, v{GRB+6+2*j}
        v_add_f32 v{123+j}, 1.0, v{GRB+12+2*j}""")
        rbf(123+j, 123+j)
    a("v_mov_b32 v46, 0")
    for t in range(5): a(f"v_lshlrev_b32 v5, 16, v{24+t}\nv_and_b32 v6, s7, v{24+t}\nv_add_f32 v46, v46, v5\nv_add_f32 v46, v46, v6")
    red16('v_add_f32', [46]); red_hi('v_add_f32', [46], [5])
    a(f"""v_mul_f32 v46, {hex(f2u(1/640))}, v46
    v_mul_u32_u24 v21, 10240, v2
    v_lshl_add_u32 v21, v3, 3, v21
    s_mul_i32 s8, s3, 640
    s_add_u32 s9, s8, {WS_G4}
    v_add_u32 v21, s9, v21
    s_mul_i32 s9, s66, 2560
    s_add_u32 s8, s8, s9
    s_add_u32 s8, s8, {WS_G5}
    v_lshl_add_u32 v22, v0, 2, s8
    s_mul_i32 s8, s3, 320
    v_lshl_add_u32 v23, v2, 4, s8
    s_lshl_b32 s8, s3, 7
    v_add_u32 v47, s8, v13
    s_lshl_b32 s8, s3, 3
    v_mov_b32 v9, s8
    s_lshl_b32 s8, s3, 6
    v_lshrrev_b32 v12, 1, v13
    v_add_u32 v12, s8, v12
    s_add_u32 s8, s8, {L_U}
    v_lshl_add_u32 v5, v2, 4, s8
    v_lshrrev_b32 v6, 2, v3
    v_mov_b32 v7, {L_ZERO}""")
    for g in range(4):
        a(f"v_cmp_eq_u32 vcc, {g}, v6\nv_cndmask_b32 v{[2,3,10,11][g]}, v7, v5, vcc")
    if MS == 2:
        dma(10, 52, 14, 16*3072, L_W, 1)
    if MS == 1:
        lds_wait(L_FLAG+4, 1, "L_mnear", 4)
        a.label("L_mnear")
        lds_wait(L_FLAG+4, NST, "L_mgo", 0)
        a.label("L_mgo")
        dma(10, 52, 14, 16*3072, L_W)
        stamp(24)
    a("s_setprio 2\ns_waitcnt vmcnt(0)")
    for ks in range(5):
        for nt in range(2):
            for hf in range(2):
                r = B1 + 8*ks + 4*nt + 2*hf
                a(f"ds_read_b64_tr_b16 v[{r}:{r+1}], v15 offset:{L_W + 2048*ks + 256*hf + 32*nt}")
    B2R = [B2 + 4*nt for nt in range(8)] + [24, 28]
    a("s_waitcnt vmcnt(0)")
    stamp(25)
    XR = [B2 + 2*i for i in range(16)] + [32, 34, 36, 38]
    raw = [r+k for r in XR for k in range(2)]
    a("v_add_u32 v14, 5120, v21")
    for r in raw: a(f"v_mov_b32 v{r}, -1")
    lab = a.newlabel('G4')
    for b in range(4): a(f"s_mov_b64 s[{84+2*b}:{85+2*b}], -1")
    lds_wait(L_FLAG+8, NST+3, lab, 1)
    again = a.newlabel('G4R'); a.label(again)
    for b in range(4):
        rr = [XR[4*t+b]+k for t in range(5) for k in range(2)]
        a(f"v_max3_u32 v{6+(b&1)}, v{rr[0]}, v{rr[1]}, v{rr[2]}")
        for i in range(3, 9, 2): a(f"v_max3_u32 v{6+(b&1)}, v{6+(b&1)}, v{rr[i]}, v{rr[i+1]}")
        a(f"v_max_u32 v{6+(b&1)}, v{6+(b&1)}, v{rr[9]}\nv_cmp_eq_u32 s[{84+2*b}:{85+2*b}], -1, v{6+(b&1)}")
    a(f"""s_or_b64 s[68:69], s[84:85], s[86:87]
    s_or_b64 s[70:71], s[88:89], s[90:91]
    s_or_b64 s[68:69], s[68:69], s[70:71]
    s_cbranch_scc0 L_g4nan
    s_add_u32 s67, s67, 1
    s_cmp_gt_u32 s67, {SPIN}
    s_cbranch_scc1 L_end""")
    a.label(lab)
    stamp(30)
    for b in range(4):
        a(f"s_mov_b64 exec, s[{84+2*b}:{85+2*b}]\ns_cbranch_execz L_g4s{b}")
        for t in range(5):
            r = XR[4*t+b]
            a(f"global_load_dwordx2 v[{r}:{r+1}], v{21 if b < 2 else 14}, s[40:41] offset:{2560*(b&1)+128*t} sc1")
        a.label(f"L_g4s{b}")
    a("s_mov_b64 exec, -1\ns_waitcnt vmcnt(0)")
    YR = [24, 28, 26, 30, 4]
    for t in range(5): a(f"v_pk_add_f32 v[{YR[t]}:{YR[t]+1}], v[{XR[4*t]}:{XR[4*t]+1}], v[{XR[4*t+1]}:{XR[4*t+1]+1}]")
    for t in range(5): a(f"v_pk_add_f32 v[{YR[t]}:{YR[t]+1}], v[{YR[t]}:{YR[t]+1}], v[{XR[4*t+2]}:{XR[4*t+2]+1}]")
    for t in range(5): a(f"v_pk_add_f32 v[{YR[t]}:{YR[t]+1}], v[{YR[t]}:{YR[t]+1}], v[{XR[4*t+3]}:{XR[4*t+3]+1}]")
    a("""v_pk_add_f32 v[6:7], v[24:25], v[28:29]
    v_pk_add_f32 v[126:127], v[26:27], v[30:31]
    v_pk_add_f32 v[6:7], v[6:7], v[4:5]
    v_pk_add_f32 v[6:7], v[6:7], v[126:127]""".replace("v[126:127]", "v[44:45]" if False else "v[122:123]") if False else """v_pk_add_f32 v[6:7], v[24:25], v[28:29]
    v_pk_add_f32 v[6:7], v[6:7], v[26:27]
    v_pk_add_f32 v[6:7], v[6:7], v[30:31]
    v_pk_add_f32 v[6:7], v[6:7], v[4:5]""")
    a(f"v_cmp_u_f32 vcc, v6, v7\ns_cbranch_vccnz {again}")
    a.label("L_g4nan")
    stamp(15)
    a("v_mov_b32 v6, v4\nv_mov_b32 v7, v5")
    for x, y in ((24, 26), (28, 30), (4, 6)):
        a(f"v_permlane32_swap_b32 v{x}, v{y}\nv_permlane32_swap_b32 v{x+1}, v{y+1}")
    for x, y in ((24, 26), (28, 30), (4, 6)): a(f"v_pk_add_f32 v[{x}:{x+1}], v[{x}:{x+1}], v[{y}:{y+1}]")
    rs_step(4, [(24, 25), (28, 29), (4, 5)])
    C3 = [24, 28, 4]
    def rbf3():
        a("""v_cvt_pk_bf16_f32 v25, v24, v28
        v_cvt_pk_bf16_f32 v4, v4, v4
        v_lshlrev_b32 v24, 16, v25
        v_and_b32 v28, s7, v25
        v_and_b32 v4, s7, v4""")
    rbf3()
    for j, c in enumerate(C3): a(f"v_mul_f32 v{c}, v{43+j}, v{c}")
    rbf3()
    for j, c in enumerate(C3): a(f"v_add_f32 v{c}, v{40+j}, v{c}")
    rbf3()
    a(f"""v_sub_f32 v25, v24, v46
    v_sub_f32 v29, v28, v46
    v_sub_f32 v5, v4, v46
    v_mul_f32 v26, 0.5, v5
    v_add_f32 v30, v25, v29
    v_mul_f32 v31, v25, v25
    v_add_f32 v30, v30, v26
    v_fmac_f32 v31, v29, v29
    v_fmac_f32 v31, v26, v5""")
    red16('v_add_f32', [30, 31]); red_hi('v_add_f32', [30, 31], [6, 7])
    a(f"""ds_write_b64 v9, v[30:31] offset:{L_ST}
    ds_write_b32 v19, v24 offset:{L_X2}
    ds_write_b32 v19, v28 offset:{L_X2+128}
    ds_write_b32 v20, v4 offset:{L_X2}
    v_mov_b32 v8, 0
    s_waitcnt vmcnt(0) lgkmcnt(0)""")
    if MST: stamp(48)
    a(f"""
    s_barrier
    ds_read_b128 v[32:35], v8 offset:{L_ST}
    ds_read_b128 v[36:39], v8 offset:{L_ST+16}""")
    if MST: stamp(49)
    a(f"""""")
    a(f"""s_waitcnt lgkmcnt(0)
    v_pk_add_f32 v[32:33], v[32:33], v[34:35]
    v_pk_add_f32 v[36:37], v[36:37], v[38:39]
    v_pk_add_f32 v[32:33], v[32:33], v[36:37]
    v_mul_f32 v32, {hex(f2u(1/640))}, v32
    v_mul_f32 v33, {hex(f2u(1/640))}, v33
    v_fma_f32 v33, -v32, v32, v33
    v_add_f32 v32, v32, v46
    v_max_f32 v33, 0, v33""")
    a(f"""v_cvt_pk_bf16_f32 v34, v32, v33
    v_and_b32 v33, s7, v34
    v_lshlrev_b32 v32, 16, v34
    v_add_f32 v33, {hex(f2u(1e-5))}, v33""")
    for c in C3: a(f"v_sub_f32 v{c}, v{c}, v32")
    rbf(33, 33)
    a("v_sqrt_f32 v33, v33")
    rbf3()
    rbf(33, 33)
    a("v_rcp_f32 v33, v33")
    for c in C3: a(f"v_mul_f32 v{c}, v{c}, v33")
    rbf3()
    for j, c in enumerate(C3): a(f"v_mul_f32 v{c}, v{c}, v{123+j}")
    rbf3()
    for j, c in enumerate(C3): a(f"v_add_f32 v{c}, v{c}, v{120+j}")
    for c in C3: a(f"v_cvt_pk_bf16_f32 v{c}, v{c}, v{c}")
    a(f"""ds_write_b16 v17, v24 offset:{L_O}
    ds_write_b16 v17, v28 offset:{L_O+64}
    ds_write_b16 v18, v4 offset:{L_O}""")
    if MST: stamp(50)
    a(f"""""")
    A1 = [24, 28, 32, 36, 40]
    for ks in range(5): a(f"ds_read_b128 v[{A1[ks]}:{A1[ks]+3}], v23 offset:{L_O + 64*ks}")
    D1 = [4, 120]
    trs = [(nt, hf) for nt in range(10) for hf in range(2)]
    ntr = 0
    for ks in range(5):
        a(f"s_waitcnt lgkmcnt({min(15, 4-ks+ntr)})")
        for nt in range(2):
            c = '0' if ks == 0 else f"v[{D1[nt]}:{D1[nt]+3}]"
            a(f"v_mfma_f32_16x16x32_bf16 v[{D1[nt]}:{D1[nt]+3}], v[{A1[ks]}:{A1[ks]+3}], v[{B1+8*ks+4*nt}:{B1+8*ks+4*nt+3}], {c}")
            for _ in range(2):
                n2, hf = trs[ntr]; ntr += 1
                a(f"ds_read_b64_tr_b16 v[{B2R[n2]+2*hf}:{B2R[n2]+2*hf+1}], v16 offset:{5248*hf + 32*n2}")
    a(f"""v_cndmask_b32 v8, v4, v120, s[14:15]
    ds_write_b32 v47, v8 offset:{L_WP}
    s_waitcnt lgkmcnt(0)""")
    if MST: stamp(51)
    a(f"""
    s_barrier
    ds_read_b32 v32, v13 offset:{L_WP}
    ds_read_b32 v33, v13 offset:{L_WP+128}
    ds_read_b32 v34, v13 offset:{L_WP+256}
    ds_read_b32 v35, v13 offset:{L_WP+384}""")
    if MST: stamp(52)
    a(f"""
    s_waitcnt lgkmcnt(2)
    v_add_f32 v32, v32, v33
    s_waitcnt lgkmcnt(0)
    v_add_f32 v34, v34, v35
    v_add_f32 v32, v32, v34""")
    rbf(32, 32)
    a(f"""v_mul_f32 v33, s42, v32
    v_exp_f32 v33, -v33
    v_add_f32 v33, 1.0, v33
    v_rcp_f32 v33, v33
    v_mul_f32 v32, v32, v33
    v_cvt_pk_bf16_f32 v32, v32, v32
    ds_write_b16 v12, v32 offset:{L_U}""")
    if MST: stamp(53)
    a(f"""""")
    A2 = [48, 52, 56, 60]
    for g in range(4): a(f"ds_read_b128 v[{A2[g]}:{A2[g]+3}], v{[2,3,10,11][g]}")
    D2 = [64, 68, 72]
    for g in range(4):
        a(f"s_waitcnt lgkmcnt({3-g})")
        for j in range(3):
            nt = 4*j + g
            if nt >= 10: continue
            c = '0' if g == 0 else f"v[{D2[j]}:{D2[j]+3}]"
            a(f"v_mfma_f32_16x16x32_bf16 v[{D2[j]}:{D2[j]+3}], v[{A2[g]}:{A2[g]+3}], v[{B2R[nt]}:{B2R[nt]+3}], {c}")
    a(f"""v_min_u32 v76, -2, v72
    s_mov_b32 exec_hi, 0
    global_store_dword v22, v76, s[40:41] offset:512 sc1
    s_mov_b64 exec, -1
    v_min_u32 v77, -2, v64
    v_min_u32 v78, -2, v68
    global_store_dword v22, v77, s[40:41] sc1
    global_store_dword v22, v78, s[40:41] offset:256 sc1""")
    stamp(16)
    a("s_branch L_end")

    a.label("L_fwave")
    if MS: a(f"s_sub_u32 s8, s2, {MB-1}")
    else:
        lds_wait(L_ROLE, 1, "L_frole", 4, vz=52)
        a.label("L_frole")
    a(f"""s_sub_u32 s66, s8, 1
    s_cmp_ge_u32 s66, 40
    s_cbranch_scc1 L_end
    v_and_b32 v4, 3, v0
    v_lshrrev_b32 v5, 4, v0
    v_lshl_add_u32 v6, v4, 2, v5
    s_lshl_b32 s8, s66, 4
    v_add_u32 v6, s8, v6
    v_lshlrev_b32 v7, 3, v6
    v_add_u32 v7, {WS_GR + 1920*8}, v7
    s_waitcnt lgkmcnt(0)
    s_add_u32 s6, s6, {hex(TAGC)}""")
    if MS:
        lds_wait(L_KF+4, 140, "L_fmid", 16, vz=52)
        a.label("L_fmid")
    lab = a.newlabel('GF'); a.label(lab)
    a(f"""global_load_dwordx2 v[50:51], v7, s[40:41] sc1
    s_waitcnt vmcnt(0)
    v_cmp_ne_u32 vcc, s6, v51""")
    spin_tail(lab, 32 if MS else 4)
    a(f"""v_lshlrev_b32 v8, 2, v6
    v_lshrrev_b32 v7, 2, v0
    v_mul_u32_u24 v7, 2560, v7
    v_lshl_add_u32 v7, v4, 4, v7
    s_lshl_b32 s8, s66, 6
    s_add_u32 s8, s8, {WS_G5}
    v_add_u32 v7, s8, v7
    v_add_u32 v52, {16*2560}, v7
    v_add_u32 v53, {32*2560}, v7
    v_lshlrev_b32 v6, 1, v6
    v_mov_b32 v4, {WS_EPOCH}
    v_mov_b32 v5, s6""")
    for r in range(24, 36): a(f"v_mov_b32 v{r}, -1")
    a(f"""s_barrier
    ds_read_b32 v48, v8 offset:{L_X2}
    s_waitcnt lgkmcnt(0)
    s_barrier""")
    a("s_mov_b64 s[68:69], -1")
    lab = a.newlabel('G5'); a.label(lab)
    stamp(30)
    a(f"""s_mov_b64 exec, s[68:69]
    global_load_dwordx4 v[24:27], v7, s[40:41] sc1
    global_load_dwordx4 v[28:31], v52, s[40:41] sc1
    global_load_dwordx4 v[32:35], v53, s[40:41] sc1
    s_mov_b64 exec, -1
    s_waitcnt vmcnt({3*(PDF-1)})
    v_pk_add_f32 v[36:37], v[24:25], v[28:29]
    v_pk_add_f32 v[38:39], v[26:27], v[30:31]
    v_pk_add_f32 v[36:37], v[36:37], v[32:33]
    v_pk_add_f32 v[38:39], v[38:39], v[34:35]
    v_pk_add_f32 v[42:43], v[36:37], v[38:39]""")
    nan_retry([42, 43], list(range(24, 36)), lab, 40, True)
    stamp(17)
    rs_step(5, [(36, 38), (37, 39)])
    rs_step(4, [(36, 37)])
    dpp('v_add_f32', 36, 36, 36, 'row_ror:8'); dpp('v_add_f32', 36, 36, 36, 'row_ror:4')
    rbf(36, 36)
    a("v_mul_f32 v36, v50, v36"); rbf(36, 36)
    a(f"""v_add_f32 v36, v48, v36
    v_cvt_pk_bf16_f32 v36, v36, v36
    s_mov_b32 exec_lo, 0x000f000f
    s_mov_b32 exec_hi, 0x000f000f
    global_store_short v6, v36, s[36:37] {P.get('ost', '')}
    s_cmp_lg_u32 s66, 0
    s_cbranch_scc1 L_fend
    s_mov_b64 exec, 1
    global_store_dword v4, v5, s[40:41] sc1""")
    if P.get('dbgt'):
        a("""s_memrealtime s[92:93]
        s_waitcnt lgkmcnt(0)
        s_sub_u32 s92, s92, s98
        v_mov_b32 v4, 0
        v_mov_b32 v8, s92
        v_mov_b32 v9, s2
        global_store_dwordx2 v4, v[8:9], s[38:39]""")
    a.label("L_fend")
    a("s_mov_b64 exec, -1")
    stamp(18)
    a.label("L_end")
    if STAMP:
        a(f"""s_mov_b64 exec, -1
        v_writelane_b32 v126, s67, 27
        v_writelane_b32 v126, s63, 28
        v_writelane_b32 v126, s95, 29
        s_lshl_b32 s8, s2, 4
        s_add_u32 s8, s8, s3
        s_lshl_b32 s8, s8, 8
        s_add_u32 s8, s8, {WS_ST}
        v_lshl_add_u32 v4, v0, 2, s8
        global_store_dword v4, v126, s[40:41]""")
    a.label("L_exit")
    a("s_endpgm")

    body = a.text()
    out = HEADER
    out += DOC
    out += f"; @launch grid=(256,1,1) block=(1024,1,1) lds={LDS_BYTES}\n"
    out += '.amdgcn_target "amdgcn-amd-amdhsa--gfx950"\n.text\n'
    out += f".globl {KN}\n.p2align 8\n.type {KN},@function\n{KN}:\n" + body
    out += f""".section .rodata,"a"
.p2align 6
.amdhsa_kernel {KN}
  .amdhsa_next_free_vgpr 128
  .amdhsa_next_free_sgpr 102
  .amdhsa_accum_offset 128
  .amdhsa_group_segment_fixed_size 0
  .amdhsa_kernarg_size 104
  .amdhsa_user_sgpr_count 2
  .amdhsa_user_sgpr_kernarg_segment_ptr 1
  .amdhsa_system_sgpr_workgroup_id_x 1
  .amdhsa_float_denorm_mode_32 3
.end_amdhsa_kernel
"""
    return out

if __name__ == '__main__':
    import json
    P = json.loads(sys.argv[2]) if len(sys.argv) > 2 else {}
    open(sys.argv[1], 'w').write(gen(P))
```

```python
import sys, math
from asmlib import Asm, f2u

KN = "adaLN_cond__gqa_block_cached__dense_activation_silu__decode_kernel"
HEADER = open('adaLN_cond__gqa_block_cached__dense_activation_silu__decode.s.ref').read().split('; Override')[0]

WS_EPOCH = 0
WS_CNT = 0x1000; CNT_STRIDE = 1152
WS_BOARD = 0xC000
WS_GM = 0x10000
WS_GR = WS_GM + 1280*8
WS_G1 = 0x20000
WS_GQ = 0x30000
WS_G3 = 0x100000
WS_G5 = WS_G3 + 0x40000
WS_G4 = WS_G5 + 48*2560
WS_ST = 0x200000
TAGC = 0x9E3779B9
NUNITS = 2048
HEADB = 16384*384
L_Q = 0
L_FLAG = 512
L_ZERO = 528
L_ROLE = L_FLAG + 12
L_KF = 544
L_ML = 576
L_ST = 704
L_O = 1024
L_U = 2560
L_WP = 3072
L_X2 = 4096
L_PART = 6912
L_TP = 6912
L_W = 16384
L_W2 = L_W + 73728
L_SC = L_W2 + 41984
LDS_BYTES = L_SC + 8192

DOC = '''; One persistent launch, 256 workgroups x 16 waves (one workgroup per CU). Workgroup id -> head h (8 workgroups each) and role 0..7.
;             (online softmax, running true maximum); the last ~14 % of each head goes out by ticket for load balance.
'''

def gen(P):
    a = Asm()
    NST = 8
    PW = P.get('pw', 4)
    SLOW = {int(k): v for k, v in P.get('slow', {}).items()}
    STAMP = P.get('stamp', 0); MST = P.get('mst', 0)
    SPIN = P.get('spin', 2000000)
    NLK = P.get('nlk', 2)
    NF = 6 + NLK
    SN = P.get('sn', 232); SQ = P.get('sq', 200)
    SX = P.get('sx', SN - 12)
    SM = P.get('sm', SN)
    NSTAT = 3*SQ + 2*SN + 2*SM + SX
    MB = P.get('mb', 160)
    assert NSTAT <= NUNITS and max(SN, SQ) <= 256 and SN >= 12*NF + 32 and SQ >= 32
    MS = P.get('ms', 0)
    PD = P.get('pd', 1); PDF = P.get('pdf', 2)
    TRIG = RTRIG = MTRIG = NST; W2E = 1; IND = 0; HN = 0; JIT = 0
    LD = P.get('ld', 'nt'); TLD = P.get('tld', ''); XLD = P.get('xld', LD); KLD = P.get('kld', LD); VLD = P.get('vld', LD)

    vL, vOFF = 0, 1
    vT = list(range(2, 10))
    vQ = 10
    vM, vLS = 22, 23
    vACC = 24
    vAK, vAV = 48, 60
    vB = [72, 96]
    vU = 120
    vTK = 127
    vSC = 8

    def stamp(k, cond_wave=None, r=None):
        if not STAMP: return
        a(f"""s_memrealtime s[92:93]
        s_waitcnt lgkmcnt(0)
        v_writelane_b32 v126, s92, {k}""")

    def rbf(d, s):
        a(f"v_cvt_pk_bf16_f32 v{d}, v{s}, v{s}\nv_and_b32 v{d}, s7, v{d}")

    def dpp(op, d, s0, s1, ctl):
        a(f"{op}_dpp v{d}, v{s0}, v{s1} {ctl} row_mask:0xf bank_mask:0xf")

    def red8(op, x):
        dpp(op, x, x, x, "quad_perm:[1,0,3,2]"); dpp(op, x, x, x, "quad_perm:[2,3,0,1]"); dpp(op, x, x, x, "row_half_mirror")
    def red16(op, xs):
        for ctl in ("quad_perm:[1,0,3,2]", "quad_perm:[2,3,0,1]", "row_half_mirror", "row_mirror"):
            for x in xs: dpp(op, x, x, x, ctl)
    def red_hi(op, xs, ts, bits=(4, 5)):
        for b in bits:
            sw = 'v_permlane16_swap_b32' if b == 4 else 'v_permlane32_swap_b32'
            for x, t in zip(xs, ts): a(f"v_mov_b32 v{t}, v{x}")
            for x, t in zip(xs, ts): a(f"{sw} v{x}, v{t}")
            for x, t in zip(xs, ts): a(f"{op} v{x}, v{x}, v{t}")
    def rs_step(bit, pairs):
        sw = 'v_permlane16_swap_b32' if bit == 4 else 'v_permlane32_swap_b32'
        for x, y in pairs: a(f"{sw} v{x}, v{y}")
        for x, y in pairs: a(f"v_add_f32 v{x}, v{x}, v{y}")

    def spin_tail(lab_retry, slp=1):
        done = a.newlabel('GD')
        a(f"""s_cbranch_vccz {done}
        s_add_u32 s67, s67, 1
        s_cmp_gt_u32 s67, {SPIN}
        s_cbranch_scc1 L_end
        s_sleep {slp}
        s_branch {lab_retry}""")
        a.label(done)

    def tile_dots(acc, tile, nrb, chi, clo):
        for rb in range(nrb):
            for d in range(4):
                a(f"v_dot2c_f32_bf16 v{acc+2*d}, v{tile+4*rb+d}, v{clo[rb]}")
                a(f"v_dot2c_f32_bf16 v{acc+2*d+1}, v{tile+4*rb+d}, v{chi[rb]}")
    def tile_reduce8(acc, sel):
        rs_step(5, [(acc+i, acc+4+i) for i in range(4)])
        rs_step(4, [(acc+i, acc+2+i) for i in range(2)])
        dpp('v_add_f32', acc, acc, acc, 'row_ror:8'); dpp('v_add_f32', acc+1, acc+1, acc+1, 'row_ror:8')
        a(f"v_cndmask_b32 v{acc}, v{acc}, v{acc+1}, {sel}")
    def tile_reduce4(acc):
        rs_step(5, [(acc+i, acc+4+i) for i in range(4)])
        rs_step(4, [(acc+i, acc+2+i) for i in range(2)])
        for ctl in ('row_ror:8', 'row_ror:4'):
            dpp('v_add_f32', acc, acc, acc, ctl); dpp('v_add_f32', acc+1, acc+1, acc+1, ctl)

    def loadK(r):
        for j in range(3): a(f"buffer_load_dwordx4 v[{r+4*j}:{r+4*j+3}], v{vOFF}, s[44:47], s62 offen offset:{128*j} {KLD}")
    def loadV(r):
        for j in range(3): a(f"buffer_load_dwordx4 v[{r+4*j}:{r+4*j+3}], v{vOFF}, s[48:51], s62 offen offset:{128*j} {VLD}")
    def ticket(prog=False):
        if JIT: return
        a("s_mov_b64 exec, 1")
        if prog and HN: a(f"ds_max_u32 v{vU+4}, v{vTK} offset:{L_PROG}")
        a(f"""global_atomic_add v{vTK}, v{vU+4}, v{vU+5}, s[60:61] sc0
        s_mov_b64 exec, -1""")
    def qk_dots(K):
        t0, t1, t2 = vT[0], vT[1], vT[2]
        a(f"v_mov_b32 v{t0}, 0\nv_mov_b32 v{t1}, 0\nv_mov_b32 v{t2}, 0")
        for r in range(4):
            for j in range(3):
                a(f"v_dot2c_f32_bf16 v{vT[j]}, v{K+4*j+r}, v{vQ+4*j+r}")
    def softmax(last=False, scored=False):
        t0, t1, t2, t3, p, al = vT[0], vT[1], vT[2], vT[3], vT[4], vU+2
        if not scored:
            a(f"v_add_f32 v{t0}, v{t0}, v{t1}\nv_add_f32 v{t0}, v{t0}, v{t2}")
            red8('v_add_f32', t0)
            rbf(t0, t0)
            a(f"v_mul_f32 v{t0}, s43, v{t0}")
            rbf(t0, t0)
        a(f"v_max_f32 v{t1}, v{vM}, v{t0}")
        if last:
            dpp('v_max_f32', t1, t1, t1, 'row_ror:8')
            red_hi('v_max_f32', [t1], [t2])
        a(f"""v_sub_f32 v{t2}, v{vM}, v{t1}
        v_sub_f32 v{t3}, v{t0}, v{t1}
        v_mul_f32 v{t2}, s42, v{t2}
        v_mul_f32 v{t3}, s42, v{t3}
        v_exp_f32 v{al}, v{t2}
        v_exp_f32 v{p}, v{t3}
        v_mov_b32 v{vM}, v{t1}
        v_fma_f32 v{vLS}, v{vLS}, v{al}, v{p}""")
        if last:
            dpp('v_add_f32', vLS, vLS, vLS, 'row_ror:8')
            red_hi('v_add_f32', [vLS], [t2])
            a(f"""s_lshl_b32 s8, s3, 3
            v_mov_b32 v{t2}, s8
            v_mov_b32 v{t0}, 0
            v_mov_b32 v{t1}, 1
            s_mov_b64 exec, 1
            ds_write_b64 v{t2}, v[{vM}:{vLS}] offset:{L_ML-32}
            ds_add_u32 v{t0}, v{t1} offset:{L_FLAG+4}
            s_mov_b64 exec, -1""")
        for i in range(12):
            r = vACC + 2*i
            a(f"v_pk_mul_f32 v[{r}:{r+1}], v[{r}:{r+1}], v[{al}:{al+1}] op_sel_hi:[1,0]")
    def lds_wait(off, val, lab, slp, cmp='ge', vz=4, vd=5):
        top = a.newlabel('LW'); a.label(top)
        a(f"""ds_read_b32 v{vd}, v{vz} offset:{off}
        s_waitcnt lgkmcnt(0)
        v_readfirstlane_b32 s8, v{vd}
        s_cmp_ge_u32 s8, {val}
        s_cbranch_scc1 {lab}
        s_add_u32 s67, s67, 1
        s_cmp_gt_u32 s67, {SPIN*8}
        s_cbranch_scc1 L_end""")
        if slp: a(f"s_sleep {slp}")
        a(f"s_branch {top}")
    def part_addr():
        a(f"""v_lshrrev_b32 v52, 3, v0
        v_and_b32 v53, 7, v0
        v_mul_u32_u24 v52, 3, v52
        s_mul_i32 s8, s3, 768
        s_add_u32 s8, s8, {L_PART-4*768}
        v_lshl_add_u32 v53, v53, 5, s8
        s_mov_b32 s12, 0xff00ff00
        s_mov_b32 s13, 0xff00ff00""")
        for i in range(3):
            a(f"""v_add_u32 v54, {i}, v52
            v_lshrrev_b32 v55, 3, v54
            v_and_b32 v54, 7, v54
            v_lshl_add_u32 v55, v55, 8, v53
            v_lshl_add_u32 v{48+i}, v54, 2, v55""")
        a("v_mov_b32 v52, 0\nv_mov_b32 v53, 1")
    def part_write():
        for i in range(12): a(f"v_permlane32_swap_b32 v{vACC+i}, v{vACC+12+i}")
        for i in range(0, 12, 2): a(f"v_pk_add_f32 v[{vACC+i}:{vACC+i+1}], v[{vACC+i}:{vACC+i+1}], v[{vACC+12+i}:{vACC+13+i}]")
        for i in range(6): a(f"v_permlane16_swap_b32 v{vACC+i}, v{vACC+6+i}")
        for i in range(0, 6, 2): a(f"v_pk_add_f32 v[{vACC+i}:{vACC+i+1}], v[{vACC+i}:{vACC+i+1}], v[{vACC+6+i}:{vACC+7+i}]")
        for i in range(6): dpp('v_add_f32', vACC+i, vACC+i, vACC+i, 'row_ror:8')
        for i in range(3): a(f"v_cndmask_b32 v{vACC+i}, v{vACC+i}, v{vACC+3+i}, s[12:13]")
        for i in range(3): a(f"ds_write_b32 v{48+i}, v{vACC+i}")
        a(f"""s_mov_b64 exec, 1
        ds_add_u32 v52, v53 offset:{L_FLAG+8}
        s_mov_b64 exec, -1""")
    def nan_retry(regs, raw, lab, tmp, masked=False):
        done = a.newlabel('NR')
        if len(regs) == 1: a(f"v_cmp_u_f32 vcc, v{regs[0]}, v{regs[0]}")
        elif len(regs) == 2: a(f"v_cmp_u_f32 vcc, v{regs[0]}, v{regs[1]}")
        else: a(f"v_add_f32 v{tmp}, v{regs[0]}, v{regs[1]}\nv_cmp_u_f32 vcc, v{tmp}, v{regs[2]}")
        a(f"s_cbranch_vccz {done}")
        if masked: a("s_mov_b64 s[68:69], vcc")
        a(f"""s_add_u32 s67, s67, 1
        s_and_b32 s8, s67, 15
        s_cbranch_scc1 {lab}
        s_cmp_gt_u32 s67, {SPIN}
        s_cbranch_scc1 L_end
        s_cmp_eq_u32 s63, 1
        s_cbranch_scc1 {done}""")
        a(f"v_mov_b32 v{tmp}, v{raw[0]}")
        for i in range(1, len(raw), 2):
            if i+1 < len(raw): a(f"v_max3_u32 v{tmp}, v{tmp}, v{raw[i]}, v{raw[i+1]}")
            else: a(f"v_max_u32 v{tmp}, v{tmp}, v{raw[i]}")
        a(f"""v_cmp_eq_u32 vcc, -1, v{tmp}
        s_cbranch_vccnz {lab}
        s_mov_b32 s63, 1
        s_branch {lab}""")
        a.label(done)
    def pv(V):
        p = vT[4]
        for i in range(12):
            t = vU + 2*(i & 1)
            r = vACC + 2*i
            a(f"""v_lshlrev_b32 v{t}, 16, v{V+i}
            v_and_b32 v{t+1}, s7, v{V+i}
            v_pk_fma_f32 v[{r}:{r+1}], v[{t}:{t+1}], v[{p}:{p+1}], v[{r}:{r+1}] op_sel_hi:[1,0,1]""")

    if STAMP: a("s_memrealtime s[98:99]\nv_mov_b32 v126, 0\ns_mov_b32 s95, 0")
    if P.get('dbgt'): a("s_memrealtime s[98:99]")
    a(f"""s_cmp_ge_u32 s2, 256
    s_cbranch_scc1 L_exit
    s_load_dwordx16 s[16:31], s[0:1], 0
    s_load_dwordx8 s[32:39], s[0:1], 64
    s_load_dwordx2 s[40:41], s[0:1], 96
    v_lshrrev_b32 v1, 6, v0
    v_readfirstlane_b32 s3, v1
    v_and_b32 v0, 63, v0""")
    if P.get('warm', 0):
        a(f"""s_cmp_ge_u32 s2, {P.get('warmwg', 16)}
        s_cbranch_scc1 L_nowarm
        s_cmp_lg_u32 s3, 15
        s_cbranch_scc1 L_nowarm
        s_getpc_b64 s[52:53]""")
        a.label("L_pc")
        a(f"""s_sub_u32 s52, s52, L_pc-{KN}
        s_subb_u32 s53, s53, 0
        s_mov_b32 s54, L_exit+4-{KN}
        s_mov_b32 s55, 0x20000
        v_lshlrev_b32 v5, 4, v0""")
        for i in range(P.get('warm')):
            a(f"s_mov_b32 s8, {1024*i}\nbuffer_load_dwordx4 v[120:123], v5, s[52:55], s8 offen")
        a.label("L_nowarm")
    a(f"""s_lshr_b32 s4, s2, 3
    s_lshl_b32 s5, s2, 2
    s_add_u32 s4, s4, s5
    s_and_b32 s4, s4, 31
    s_lshr_b32 s5, s2, 5
    s_mov_b32 s7, 0xffff0000
    s_mov_b32 s42, {hex(f2u(math.log2(math.e)))}
    s_mov_b32 s43, {hex(f2u(192 ** -0.5))}
    s_mov_b32 s67, 0
    s_mov_b32 s63, 0
    v_lshrrev_b32 v2, 3, v0
    v_and_b32 v3, 7, v0
    v_mul_u32_u24 v1, 384, v2
    v_lshl_add_u32 v1, v3, 4, v1
    s_mul_i32 s8, s4, {HEADB}
    s_mov_b32 s46, {HEADB}
    s_mov_b32 s47, 0x20000
    s_mov_b32 s50, {HEADB}
    s_mov_b32 s51, 0x20000
    s_mov_b32 s55, 0x20000
    s_mov_b32 s59, 0x20000
    s_mul_i32 s9, s4, {CNT_STRIDE}
    s_add_u32 s9, s9, {WS_CNT}
    v_mov_b32 v4, 0
    v_mov_b32 v5, 0
    v_mov_b32 v6, 0
    v_mov_b32 v7, 0
    s_cmp_lt_u32 s5, 3
    s_cselect_b32 s10, 16, {12*NF + 16}
    v_mov_b32 v8, s10
    v_mov_b32 v9, 16
    s_mov_b64 exec, 1
    ds_write_b128 v4, v[4:7] offset:{L_FLAG}
    ds_write_b128 v4, v[4:7] offset:{L_ZERO}
    ds_write_b64 v4, v[8:9] offset:{L_KF}
    s_mov_b64 exec, -1
    v_mov_b32 v10, -1
    v_mov_b32 v11, -1
    v_lshlrev_b32 v12, 3, v0
    v_lshl_add_u32 v12, s3, 9, v12
    v_add_u32 v12, {L_SC}, v12
    ds_write_b64 v12, v[10:11]
    s_waitcnt lgkmcnt(0)""")
    if not P.get('nobar', 1): a("s_barrier")
    if STAMP: a("v_writelane_b32 v126, s98, 22")
    stamp(23)
    a(f"""s_add_u32 s44, s18, s8
    s_addc_u32 s45, s19, 0
    s_add_u32 s48, s20, s8
    s_addc_u32 s49, s21, 0
    s_add_u32 s60, s40, s9
    s_addc_u32 s61, s41, 0
    s_load_dword s6, s[40:41], {WS_EPOCH}
    s_mov_b32 s12, 0xff00ff00
    s_mov_b32 s13, 0xff00ff00
    s_cmp_lt_u32 s5, 3
    s_cbranch_scc1 L_qtile
    s_lshr_b32 s9, s2, 3
    s_and_b32 s8, s9, 3
    s_cmp_eq_u32 s8, 3
    s_cbranch_scc1 {'L_tilebar' if P.get('nobar', 1) else 'L_roles'}
    s_sub_u32 s9, s5, 3
    s_mul_i32 s9, s9, 3
    s_add_u32 s9, s9, s8
    s_cmp_ge_u32 s9, 10
    s_cbranch_scc1 {'L_tilebar' if P.get('nobar', 1) else 'L_roles'}""")
    TILE = 48; CH = 24; CL = 30; TA = 40
    def tile_loads(stride, n=5):
        a(f"""s_mul_i32 s10, s3, {8*n*stride}
        v_mul_u32_u24 v4, {stride}, v2
        v_lshl_add_u32 v4, v3, 4, v4""")
        for t in range(n):
            a(f"buffer_load_dwordx4 v[{TILE+4*t}:{TILE+4*t+3}], v4, s[52:55], s10 offen {LD}")
            if t < n-1: a(f"s_add_u32 s10, s10, {8*stride}")
    def tile_finish(n=5, nwv=16, join=None):
        tile_dots(TA, TILE, n, [CH+t for t in range(n)], [CL+t for t in range(n)])
        tile_reduce8(TA, 's[12:13]')
        a(f"""ds_write_b32 v5, v{TA} offset:{L_TP}""")
        stamp(20)
        if join: a.label(join)
        a(f"""s_waitcnt vmcnt(0) lgkmcnt(0)
        s_barrier""")
        stamp(21)
        a(f"""s_cmp_lg_u32 s3, 0
        s_cbranch_scc1 L_tilebar
        v_lshlrev_b32 v5, 2, v0
        v_add_u32 v5, {L_TP}, v5""")
        for k in range(nwv//2): a(f"ds_read2st64_b32 v[{24+2*k}:{25+2*k}], v5 offset0:{2*k} offset1:{2*k+1}")
        for k in range(nwv//2):
            a(f"s_waitcnt lgkmcnt({nwv//2-1-k})")
            a(f"v_add_f32 v{24+2*k}, v{24+2*k}, v{25+2*k}")
            if k & 1: a(f"v_add_f32 v{22+2*k}, v{22+2*k}, v{24+2*k}")
        tops = [24+4*k for k in range((nwv//2+1)//2)]
        while len(tops) > 1:
            nxt = []
            for i in range(0, len(tops)-1, 2):
                a(f"v_add_f32 v{tops[i]}, v{tops[i]}, v{tops[i+1]}"); nxt.append(tops[i])
            if len(tops) & 1: nxt.append(tops[-1])
            tops = nxt
    def tile_ldsaddr():
        a(f"""v_lshl_add_u32 v5, v3, 3, v2
        s_lshl_b32 s8, s3, 8
        v_lshl_add_u32 v5, v5, 2, s8""")
        for i in range(8): a(f"v_mov_b32 v{TA+i}, 0")
    a.label("L_modtile")
    a(f"""s_lshl_b32 s9, s9, 3
    s_and_b32 s8, s2, 7
    s_add_u32 s9, s9, s8
    s_cmp_ge_u32 s3, 10
    s_cbranch_scc1 L_poison
    s_lshr_b32 s11, s9, 2
    s_and_b32 s15, s9, 3
    s_lshl_b32 s14, s11, 7
    s_mul_i32 s8, s15, {160*7680}
    s_add_u32 s14, s14, s8
    s_add_u32 s52, s34, s14
    s_addc_u32 s53, s35, 0
    s_sub_u32 s54, {640*7680}, s14
    s_mul_i32 s14, s15, 320
    s_lshl_b32 s8, s3, 5
    s_add_u32 s14, s14, s8
    v_lshl_add_u32 v7, v2, 1, s14""")
    for t in range(2): a(f"global_load_ushort v{CH+t}, v7, s[32:33] offset:{16*t}")
    tile_loads(7680, 2)
    tile_ldsaddr()
    a(f"""s_mul_i32 s14, s15, 10240
    s_lshl_b32 s8, s11, 9
    s_add_u32 s14, s14, s8
    s_add_u32 s14, s14, {WS_G1}
    v_lshl_add_u32 v6, v0, 3, s14
    s_waitcnt vmcnt(2)""")
    for t in range(2):
        x, u = CH+t, CL+t
        a(f"""v_lshlrev_b32 v{x}, 16, v{x}
        v_mul_f32 v{u}, s42, v{x}
        v_exp_f32 v{u}, -v{u}
        v_add_f32 v{u}, 1.0, v{u}
        v_rcp_f32 v{u}, v{u}
        v_mul_f32 v{x}, v{x}, v{u}""")
        rbf(x, x)
        a(f"v_lshrrev_b32 v{u}, 16, v{x}")
    a("s_waitcnt vmcnt(0)")
    stamp(19)
    tile_finish(2, 10, "L_modjoin")
    a(f"""s_add_u32 s8, s6, {hex(TAGC)}
    v_mov_b32 v25, s8
    global_store_dwordx2 v6, v[24:25], s[40:41] sc1""")
    stamp(6)
    a("s_branch L_tilebar")
    a.label("L_poison")
    a(f"""s_mul_i32 s14, s9, 6
    s_add_u32 s14, s14, s3
    s_lshl_b32 s14, s14, 10
    s_add_u32 s14, s14, {WS_G3 - 10*1024}
    v_lshl_add_u32 v6, v0, 4, s14
    v_mov_b32 v88, -1
    v_mov_b32 v89, -1
    v_mov_b32 v90, -1
    v_mov_b32 v91, -1
    global_store_dwordx4 v6, v[88:91], s[40:41] sc1
    s_cmp_lg_u32 s3, 15
    s_cbranch_scc1 L_modjoin
    s_cmp_ge_u32 s9, 40
    s_cbranch_scc1 L_modjoin
    s_mul_i32 s14, s9, {CNT_STRIDE}
    s_add_u32 s14, s14, {WS_CNT}
    v_mov_b32 v6, s14
    v_mov_b32 v8, 0
    s_mov_b64 exec, 1
    global_store_dword v6, v8, s[40:41] sc1
    s_mov_b64 exec, -1
    s_branch L_modjoin""")
    a.label("L_qtile")
    a(f"""s_mul_i32 s8, s4, 384
    s_lshl_b32 s9, s5, 7
    s_add_u32 s8, s8, s9
    s_add_u32 s52, s22, s8
    s_addc_u32 s53, s23, 0
    s_sub_u32 s54, {640*12288}, s8
    v_lshlrev_b32 v5, 2, v0
    s_mul_i32 s14, s3, 40
    v_add_u32 v8, s14, v3
    v_lshlrev_b32 v7, 1, v8""")
    XF = P.get('xfirst', 0)
    def xloads():
        for t in range(5): a(f"global_load_dword v{70+t}, v5, s[16:17] offset:{256*t}")
        for t in range(5): a(f"global_load_ushort v{CL+t}, v7, s[16:17] offset:{16*t}")
    if XF: xloads()
    tile_loads(12288)
    a("s_barrier")
    if not XF: xloads()
    a(f"""v_lshlrev_b32 v8, 3, v8
    v_and_b32 v9, 3, v2
    v_mul_u32_u24 v9, 10240, v9
    v_add_u32 v8, v8, v9
    v_lshrrev_b32 v9, 5, v0
    v_mul_u32_u24 v9, 5120, v9
    v_add_u32 v8, v8, v9
    v_add_u32 v8, {WS_G1}, v8
    v_lshlrev_b32 v9, 2, v2""")
    tile_ldsaddr()
    a(f"""v_lshrrev_b32 v10, 1, v0
    v_mul_u32_u24 v11, 43, v10
    v_lshrrev_b32 v11, 7, v11
    v_add_u32 v11, v11, v10
    v_lshlrev_b32 v11, 2, v11
    v_lshlrev_b32 v10, 4, v10
    v_add_u32 v10, 12, v10
    v_and_b32 v12, 1, v0
    v_cmp_eq_u32 s[14:15], 1, v12
    s_mul_i32 s8, s4, 768
    s_lshl_b32 s9, s5, 8
    s_add_u32 s8, s8, s9
    s_add_u32 s8, s8, {WS_GQ}
    v_cndmask_b32 v10, v11, v10, s[14:15]
    v_add_u32 v10, s8, v10
    s_waitcnt vmcnt({5 if XF else 0})""")
    for t in range(5):
        a(f"v_lshlrev_b32 v{76+2*t}, 16, v{70+t}\nv_and_b32 v{77+2*t}, s7, v{70+t}")
    a("v_add_f32 v70, v76, v77")
    for i in range(2, 10): a(f"v_add_f32 v70, v70, v{76+i}")
    red16('v_add_f32', [70]); red_hi('v_add_f32', [70], [71])
    a(f"v_mul_f32 v70, {hex(f2u(1/640))}, v70")
    a("v_mov_b32 v72, 0")
    for i in range(10): a(f"v_sub_f32 v{76+i}, v{76+i}, v70\nv_fmac_f32 v72, v{76+i}, v{76+i}")
    red16('v_add_f32', [72]); red_hi('v_add_f32', [72], [71])
    a(f"v_mul_f32 v72, {hex(f2u(1/640))}, v72")
    rbf(70, 70); rbf(72, 72)
    a(f"v_add_f32 v72, {hex(f2u(1e-5))}, v72")
    rbf(72, 72)
    a("v_sqrt_f32 v72, v72")
    rbf(72, 72)
    a("v_rcp_f32 v72, v72")
    for t in range(5):
        r = CL+t
        a(f"v_lshlrev_b32 v{r}, 16, v{r}\nv_sub_f32 v{r}, v{r}, v70")
        rbf(r, r)
        a(f"v_mul_f32 v{r}, v{r}, v72")
        rbf(r, r)
    a(f"s_waitcnt lgkmcnt(0)\ns_add_u32 s11, s6, {hex(TAGC)}")
    stamp(2, 0, 108)
    GG = 88
    lab = a.newlabel('GM'); a.label(lab)
    for t in range(5):
        a(f"global_load_dwordx2 v[{GG+2*t}:{GG+2*t+1}], v8, s[40:41] offset:{64*t} sc1")
    a("s_waitcnt vmcnt(0)")
    a(f"v_xor_b32 v70, s11, v{GG+1}")
    for k in range(1, 5): a(f"v_bitop3_b32 v70, v70, v{GG+2*k+1}, s11 bitop3:0xf6")
    a("v_cmp_ne_u32 vcc, 0, v70")
    spin_tail(lab, P.get('gmslp', 2))
    stamp(3)
    xs = [GG+2*t for t in range(5)]; ys = [GG+2*t+1 for t in range(5)]
    for x in xs: dpp('v_add_f32', x, x, x, 'row_ror:8')
    red_hi('v_add_f32', xs, ys, bits=(4,))
    for x in xs: rbf(x, x)
    for x, y in zip(xs, ys): a(f"v_mov_b32 v{y}, v{x}")
    for x, y in zip(xs, ys): a(f"v_permlane32_swap_b32 v{x}, v{y}")
    for y in ys: a(f"v_add_f32 v{y}, 1.0, v{y}")
    for y in ys: rbf(y, y)
    for t in range(5): a(f"v_mul_f32 v{ys[t]}, v{CL+t}, v{ys[t]}")
    for y in ys: rbf(y, y)
    for x, y in zip(xs, ys): a(f"v_add_f32 v{y}, v{y}, v{x}")
    for y in ys: a(f"v_cvt_pk_bf16_f32 v{y}, v{y}, 0")
    for t in range(5): a(f"ds_bpermute_b32 v{CL+t}, v9, v{ys[t]}")
    for t in range(5): a(f"s_waitcnt lgkmcnt({4-t})\nv_lshlrev_b32 v{CH+t}, 16, v{CL+t}")
    tile_finish()
    a(f"""v_mov_b32_dpp v25, v24 quad_perm:[1,0,3,2] row_mask:0xf bank_mask:0xf
    v_mov_b32 v26, s11
    v_cvt_pk_bf16_f32 v24, v24, v25
    v_cndmask_b32 v24, v24, v26, s[14:15]
    s_mov_b32 exec_lo, 0x557fffff
    s_mov_b32 exec_hi, 0x55555555
    global_store_dword v10, v24, s[40:41] sc1
    s_mov_b64 exec, -1""")
    stamp(4, 0, 108)
    a.label("L_tilebar")
    a("s_barrier")
    a.label("L_roles")
    a(f"""s_cmp_lt_u32 s3, 4
    s_cbranch_scc1 L_chain""")
    slots = [vAK, vAV, vB[0], vB[0]+12, vB[1], vB[1]+12]
    def ld3(r, srd, soff, pol):
        for j in range(3): a(f"buffer_load_dwordx4 v[{r+4*j}:{r+4*j+3}], v{vOFF}, s[{srd}:{srd+3}], s{soff} offen offset:{128*j} {pol}")
    a(f"""s_sub_u32 s9, s3, 4
    v_lshlrev_b32 v{vSC}, 2, v2
    v_add_u32 v{vSC}, {L_SC}, v{vSC}
    s_cmp_ge_u32 s5, 3
    s_cbranch_scc1 L_fill
    s_cmp_ge_u32 s3, {4+NST}
    s_cbranch_scc1 L_retired
    s_mul_i32 s64, s5, {SQ*3072}
    s_mov_b32 s65, {SQ}
    s_mul_i32 s62, s9, 3072
    s_add_u32 s62, s62, s64
    s_lshl_b32 s74, s9, 5
    s_add_u32 s75, s74, 256""")
    ld3(vAK, 44, 62, KLD)
    a(f"s_add_u32 s62, s62, {NST*3072}")
    ld3(vAV, 44, 62, KLD)
    a("s_branch L_filled")
    a.label("L_fill")
    a(f"""s_mul_i32 s64, s5, {SN*3072}
    s_add_u32 s64, s64, {(3*SQ - 3*SN)*3072}
    s_mul_i32 s8, s5, {SM*3072}
    s_add_u32 s8, s8, {(3*SQ + 2*SN - 5*SM)*3072}
    s_movk_i32 s65, {SN}
    s_cmp_ge_u32 s5, 5
    s_cselect_b32 s64, s8, s64
    s_cselect_b32 s65, {SM}, s65
    s_cmp_eq_u32 s5, 7
    s_cselect_b32 s65, {SX}, s65
    s_mul_i32 s62, s9, 3072
    s_add_u32 s62, s62, s64
    s_lshl_b32 s74, s9, 5
    v_add_u32 v{vSC+1}, s74, v{vSC}
    s_add_u32 s74, s74, {12*NF*32}
    s_add_u32 s75, s74, 256
    s_mul_i32 s11, s9, {3072*NLK}""")
    stamp(0)
    issued = 0
    for k in range(NF):
        for j in range(3):
            if issued in SLOW: a(f"s_waitcnt vmcnt({SLOW[issued]})")
            elif issued >= PW: a(f"s_waitcnt vmcnt({PW-1})")
            if k < 6:
                r = slots[k] + 4*j
                a(f"buffer_load_dwordx4 v[{r}:{r+3}], v{vOFF}, s[44:47], s62 offen offset:{128*j} {KLD}")
            else:
                a(f"s_add_u32 m0, s11, {L_W + 3072*(k-6) + 896*j}")
                a(f"buffer_load_dwordx4 v{vOFF}, s[44:47], s62 offen offset:{128*j} {KLD} lds")
            issued += 1
        a(f"s_add_u32 s62, s62, {12*3072}")
    a.label("L_filled")
    a("v_mov_b32 v4, 0")
    stamp(1)
    lds_wait(L_FLAG, 3, "L_qready", 1)

    a.label("L_chain")
    a(f"""s_cmp_eq_u32 s3, 3
    s_cbranch_scc1 L_xwave
    s_setprio 2
    s_mul_i32 s8, s4, 768
    s_lshl_b32 s9, s3, 8
    s_add_u32 s8, s8, s9
    s_add_u32 s8, s8, {WS_GQ}
    s_add_u32 s60, s40, s8
    s_addc_u32 s61, s41, 0
    v_lshlrev_b32 v5, 2, v0
    v_lshl_add_u32 v5, s3, 7, v5
    v_mov_b32 v6, 0
    v_mov_b32 v7, 1
    s_waitcnt lgkmcnt(0)
    s_add_u32 s88, s6, {hex(TAGC)}""")
    def qreg(k):
        if k < 16: return 44 + k
        if k < 32: return 68 + k - 16
        if k < 40: return 8 + k - 32
        return 84 + k - 40
    a.label("L_qpoll")
    a(f"""s_load_dwordx16 s[44:59], s[60:61], 0 glc
    s_load_dwordx16 s[68:83], s[60:61], 64 glc
    s_load_dwordx8 s[8:15], s[60:61], 128 glc
    s_load_dwordx4 s[84:87], s[60:61], 160 glc
    s_waitcnt lgkmcnt(0)
    s_xor_b32 s89, s{qreg(3)}, s88""")
    for g in range(1, 11): a(f"s_xor_b32 s90, s{qreg(4*g+3)}, s88\ns_or_b32 s89, s89, s90")
    a(f"""s_cbranch_scc0 L_qgot
    s_add_u32 s67, s67, 1
    s_cmp_gt_u32 s67, {SPIN}
    s_cbranch_scc1 L_end
    s_sleep 2
    s_branch L_qpoll""")
    a.label("L_qgot")
    for i in range(32): a(f"v_writelane_b32 v4, s{qreg(4*(i//3) + i%3)}, {i}")
    a(f"""s_mov_b32 exec_hi, 0
    ds_write_b32 v5, v4 offset:{L_Q}
    s_mov_b64 exec, 1
    ds_add_u32 v6, v7 offset:{L_FLAG}
    s_mov_b64 exec, -1""")
    stamp(5, 0, 44)
    a("s_branch L_tail")

    a.label("L_xwave")
    XT = 48; XG = 88
    a(f"""s_cmp_lt_u32 s2, 216
    s_cbranch_scc1 L_tail
    s_sub_u32 s9, s2, 196""")
    a.label("L_xrest")
    a(f"""v_mul_u32_u24 v4, 7680, v2
    v_lshl_add_u32 v4, v3, 4, v4
    s_lshl_b32 s14, s9, 7
    s_add_u32 s52, s34, s14
    s_addc_u32 s53, s35, 0
    s_sub_u32 s54, {640*7680}, s14
    s_mov_b32 s10, 0
    s_mov_b32 s11, 0
    v_lshlrev_b32 v7, 1, v2
    v_mov_b32 v6, 0""")
    for i in range(8): a(f"v_mov_b32 v{XG+i}, 0")
    lds_wait(L_FLAG, 3, "L_xrloop", 4, vz=6)
    a.label("L_xrloop")
    for rb in range(10): a(f"global_load_ushort v{24+rb}, v7, s[32:33] offset:{16*rb}")
    for rb in range(10):
        a(f"buffer_load_dwordx4 v[{XT+4*rb}:{XT+4*rb+3}], v4, s[52:55], s10 offen {XLD}")
        a(f"s_add_u32 s10, s10, {8*7680}")
    a("s_waitcnt vmcnt(10)")
    for rb in range(10):
        x, t = 24+rb, 34+rb
        a(f"""v_lshlrev_b32 v{x}, 16, v{x}
        v_mul_f32 v{t}, s42, v{x}
        v_exp_f32 v{t}, -v{t}
        v_add_f32 v{t}, 1.0, v{t}
        v_rcp_f32 v{t}, v{t}
        v_mul_f32 v{x}, v{x}, v{t}""")
        rbf(x, x)
        a(f"v_lshrrev_b32 v{t}, 16, v{x}")
    a("s_waitcnt vmcnt(0)")
    tile_dots(XG, XT, 10, [24+rb for rb in range(10)], [34+rb for rb in range(10)])
    a(f"""v_add_u32 v7, 160, v7
    s_add_u32 s11, s11, 1
    s_cmp_lt_u32 s11, 8
    s_cbranch_scc1 L_xrloop""")
    tile_reduce8(XG, 's[12:13]')
    rbf(XG, XG)
    a(f"""s_lshl_b32 s9, s9, 9
    s_add_u32 s9, s9, {WS_GM}
    s_add_u32 s8, s6, {hex(TAGC)}
    v_lshl_add_u32 v5, v3, 3, v2
    v_lshl_add_u32 v5, v5, 3, s9
    v_mov_b32 v{XG+1}, s8
    global_store_dwordx2 v5, v[{XG}:{XG+1}], s[40:41] sc1""")
    stamp(7, 3, 44)
    a("s_branch L_tail")

    def read_q_init():
        a(f"""v_lshlrev_b32 v4, 4, v3
        ds_read_b128 v[{vQ}:{vQ+3}], v4 offset:{L_Q}
        ds_read_b128 v[{vQ+4}:{vQ+7}], v4 offset:{L_Q+128}
        ds_read_b128 v[{vQ+8}:{vQ+11}], v4 offset:{L_Q+256}
        v_mov_b32 v{vM}, 0xff7fffff
        v_mov_b32 v{vLS}, 0
        v_mov_b32 v{vU+4}, 0
        v_mov_b32 v{vU+5}, 1""")
        for i in range(24): a(f"v_mov_b32 v{vACC+i}, 0")
        a("s_waitcnt lgkmcnt(0)")

    vLT = 126 if not STAMP else 119
    def score(addr, off=0):
        t0, t1, t2 = vT[0], vT[1], vT[2]
        a(f"v_add_f32 v{t0}, v{t0}, v{t1}\nv_add_f32 v{t0}, v{t0}, v{t2}")
        red8('v_add_f32', t0)
        rbf(t0, t0)
        a(f"v_mul_f32 v{t0}, s43, v{t0}")
        rbf(t0, t0)
        a(f"v_min_u32 v{t0}, -2, v{t0}\nds_write_b32 v{addr}, v{t0} offset:{off}")
    def lticket(which):
        a(f"""s_mov_b64 exec, 1
        ds_add_rtn_u32 v{vLT}, v{vU+4}, v{vU+5} offset:{L_KF + 4*which}
        s_mov_b64 exec, -1""")
    def take(k, out):
        a(f"""s_waitcnt lgkmcnt(0)
        v_readfirstlane_b32 s8, v{vLT}
        s_cmp_ge_u32 s8, s65
        s_cbranch_scc1 {out}
        s_mul_i32 s62, s8, 3072
        s_add_u32 s62, s62, s64
        s_lshl_b32 s{74+k}, s8, 5""")
    def rest_of_buffer(first, extra):
        for k in range(first, 6):
            a(f"s_waitcnt vmcnt({3*(NF-1-k) + extra})")
            qk_dots(slots[k]); score(vSC+1, 384*k)
        if NLK:
            a(f"s_waitcnt vmcnt({extra})\nv_lshl_add_u32 v{vU}, v0, 4, s11")
            for k in range(NLK):
                for j in range(3): a(f"ds_read_b128 v[{vB[0]+12*k+4*j}:{vB[0]+12*k+4*j+3}], v{vU} offset:{L_W + 3072*k + 1024*j}")
            for k in range(NLK):
                a(f"s_waitcnt lgkmcnt({3*(NLK-1-k)})" if k == 0 else "s_waitcnt lgkmcnt(0)")
                qk_dots(vB[0]+12*k); score(vSC+1, 384*(6+k))
    a.label("L_qready")
    read_q_init()
    stamp(8)
    a(f"""s_cmp_ge_u32 s3, {4+NST}
    s_cbranch_scc1 L_catch2
    s_cmp_lt_u32 s5, 3
    s_cbranch_scc1 L_kgo""")
    for k in range(2):
        a(f"s_waitcnt vmcnt({3*(NF-1)})")
        qk_dots(slots[k])
        ld3(slots[k], 44, 62, KLD)
        if k == 0: a(f"s_add_u32 s62, s62, {NST*3072}")
        score(vSC+1, 384*k)
    rest_of_buffer(2, 6)
    stamp(9)
    a.label("L_kgo")
    lticket(0)
    a.label("L_kloop")
    for k in range(2):
        a(f"s_waitcnt vmcnt(3)\nv_add_u32 v{vSC+1}, s{74+k}, v{vSC}")
        qk_dots(slots[k])
        take(k, f"L_kend{k}")
        ld3(slots[k], 44, 62, KLD)
        lticket(0)
        score(vSC+1)
    a("s_branch L_kloop")
    def v_fill(k, i):
        a(f"""s_add_u32 s8, s3, {8*i - 4}
        s_mul_i32 s62, s8, 3072
        s_add_u32 s62, s62, s64
        s_lshl_b32 s{74+k}, s8, 5""")
        ld3(slots[k], 48, 62, VLD)
    for k in range(2):
        a.label(f"L_kend{k}")
        stamp(31)
        v_fill(k, 0)
        score(vSC+1)
        a(f"s_waitcnt vmcnt(3)\nv_add_u32 v{vSC+1}, s{75-k}, v{vSC}")
        qk_dots(slots[1-k])
        v_fill(1-k, 1)
        lticket(1)
        score(vSC+1)
        a(f"s_branch L_v{k}")
    slow = []
    def weigh(k, last=False):
        lab = a.newlabel('SC')
        a(f"v_add_u32 v{vSC+1}, s{74+k}, v{vSC}")
        a.label(lab)
        a(f"""ds_read_b32 v{vT[0]}, v{vSC+1}
        s_waitcnt lgkmcnt(0)
        v_cmp_eq_u32 vcc, -1, v{vT[0]}
        s_cbranch_vccnz {lab}_again""")
        slow.append(lab)
        softmax(last, True)
    for k in range(2):
        a.label(f"L_v{k}")
        weigh(k)
        a("s_waitcnt vmcnt(3)")
        pv(slots[k])
        take(k, f"L_vend{k}")
        ld3(slots[k], 48, 62, VLD)
        lticket(1)
    a("s_branch L_v0")
    def shared_first(none):
        a(f"""s_waitcnt lgkmcnt(0)
        s_add_u32 s8, s8, {NSTAT}
        s_cmp_ge_u32 s8, {NUNITS}
        s_cbranch_scc1 {none}
        s_mul_i32 s62, s8, 3072""")
    a.label("L_vend1")
    a("s_mov_b32 s8, 1\ns_atomic_add s8, s[60:61], 0 glc")
    shared_first("L_vnoneA")
    weigh(0)
    a("s_waitcnt vmcnt(0)")
    pv(vAK)
    ticket(); loadK(vAK); loadV(vAV)
    a("s_branch L_loop")
    a.label("L_vend0")
    a("s_mov_b32 s8, 1\ns_atomic_add s8, s[60:61], 0 glc")
    shared_first("L_vnoneB")
    ticket(); loadK(vAK)
    weigh(1)
    a("s_waitcnt vmcnt(4)")
    pv(vAV)
    loadV(vAV)
    a.label("L_loop")
    if JIT == 2: a("s_waitcnt vmcnt(5)\ns_mov_b32 s8, 1\ns_atomic_add s8, s[60:61], 0 glc")
    a("s_waitcnt vmcnt(3)")
    if JIT == 1: a("s_mov_b32 s8, 1\ns_atomic_add s8, s[60:61], 0 glc")
    if not JIT: a(f"v_readfirstlane_b32 s8, v{vTK}")
    qk_dots(vAK)
    if JIT: a("s_waitcnt lgkmcnt(0)")
    a(f"""s_add_u32 s8, s8, {NSTAT}
    s_cmp_ge_u32 s8, {NUNITS}
    s_cbranch_scc1 L_drain
    s_mul_i32 s62, s8, 3072""")
    if STAMP: a("s_memrealtime s[92:93]\ns_lshr_b32 s94, s8, 7\ns_add_u32 m0, s94, 32\ns_waitcnt lgkmcnt(0)\nv_writelane_b32 v126, s92, m0")
    ticket(True); loadK(vAK)
    softmax()
    a("s_waitcnt vmcnt(4)")
    pv(vAV)
    loadV(vAV)
    a("s_branch L_loop")

    a.label("L_drain")
    a("s_setprio 3")
    stamp(10)
    softmax(last=True)
    a.label("L_drain2")
    part_addr()
    a("s_waitcnt vmcnt(0)")
    pv(vAV)
    a.label("L_drain3")
    stamp(11)
    part_write()
    a("s_branch L_end")

    a.label("L_vnoneB")
    a("s_setprio 3")
    stamp(10)
    weigh(1, True)
    a("s_branch L_drain2")
    a.label("L_vnoneA")
    a("s_setprio 3")
    stamp(10)
    weigh(0, True)
    a("s_waitcnt vmcnt(0)")
    pv(vAK)
    part_addr()
    a("s_branch L_drain3")

    for lab in slow:
        a.label(lab + "_again")
        a(f"""s_add_u32 s67, s67, 1
        s_cmp_gt_u32 s67, {SPIN*8}
        s_cbranch_scc1 L_end
        s_branch {lab}""")

    a.label("L_catch2")
    rest_of_buffer(0, 0)
    a.label("L_retired")
    a(f"""v_mov_b32 v52, 0
    v_mov_b32 v53, 1
    s_cmp_eq_u32 s3, 15
    s_cbranch_scc1 L_fwave""")
    a(f"""s_sub_u32 s9, s3, 12
    s_lshl_b32 s8, s9, 8
    v_lshl_add_u32 v4, v0, 2, s8
    v_and_b32 v11, 7, v0
    v_lshlrev_b32 v11, 3, v11
    v_add_u32 v12, {L_PART}, v4
    s_lshl_b32 s8, s4, 3
    s_add_u32 s8, s8, s5
    s_lshl_b32 s8, s8, 10
    s_add_u32 s8, s8, {WS_G3}
    v_add_u32 v4, s8, v4""")
    lds_wait(L_FLAG+4, 1, "L_cnear", 4, vz=52)
    a.label("L_cnear")
    lds_wait(L_FLAG+4, NST, "L_cml", 0, vz=52)
    a.label("L_cml")
    a(f"""ds_read_b64 v[6:7], v11 offset:{L_ML}
    s_waitcnt lgkmcnt(0)
    v_mov_b32 v8, v6""")
    red8('v_max_f32', 8)
    a(f"""v_sub_f32 v6, v6, v8
    v_mul_f32 v6, s42, v6
    v_exp_f32 v6, v6
    v_mov_b32 v40, 0
    v_mov_b32 v41, 0
    v_mul_f32 v9, v7, v6
    s_setprio 3
    s_cmp_lg_u32 s9, 0
    s_cbranch_scc1 L_cwait""")
    red8('v_add_f32', 9)
    a(f"""v_min_u32 v8, -2, v8
    v_min_u32 v9, -2, v9
    s_mov_b64 exec, 1
    global_store_dwordx2 v4, v[8:9], s[40:41] offset:768 sc1
    s_mov_b64 exec, -1""")
    a.label("L_cwait")
    lds_wait(L_FLAG+8, NST, "L_cgo", 0, vz=52)
    a.label("L_cgo")
    for k in range(4): a(f"ds_read2st64_b32 v[{24+2*k}:{25+2*k}], v12 offset0:{6*k} offset1:{6*k+3}")
    for k in range(8):
        if k % 2 == 0: a(f"s_waitcnt lgkmcnt({3-k//2})")
        a(f"v_fmac_f32_dpp v{40+(k&1)}, v6, v{24+k} row_newbcast:{k} row_mask:0xf bank_mask:0xf")
    a(f"""v_add_f32 v40, v40, v41
    v_min_u32 v40, -2, v40
    global_store_dword v4, v40, s[40:41] sc1
    s_mov_b64 exec, 1
    ds_add_u32 v52, v53 offset:{L_FLAG+8}
    s_mov_b64 exec, -1""")
    stamp(12)
    a("s_branch L_end")

    def dma(n, srd, voff, sstep, lbase, pace=None):
        for t in range(n):
            v = voff[t] if isinstance(voff, list) else voff
            a(f"""s_mov_b32 s10, {t*sstep}
            s_add_u32 m0, s11, {lbase + 1024*t}
            buffer_load_dwordx4 v{v}, s[{srd}:{srd+3}], s10 offen {TLD} lds""")
            if pace is not None: a(f"s_waitcnt vmcnt({pace})")
    a.label("L_tail")
    a(f"""s_setprio 0
    v_lshrrev_b32 v2, 4, v0
    v_and_b32 v3, 15, v0
    v_lshrrev_b32 v10, 2, v3
    v_lshl_add_u32 v10, v2, 3, v10
    v_and_b32 v11, 3, v0
    v_mov_b32 v4, 0
    v_lshrrev_b32 v12, 2, v0
    v_and_b32 v13, 31, v0
    v_lshlrev_b32 v13, 2, v13
    s_mov_b32 s14, 0xffff0000
    s_mov_b32 s15, 0xffff0000
    s_mov_b32 s55, 0x20000
    s_mov_b32 s59, 0x20000""")
    if MS: a(f"s_sub_u32 s66, s2, {MB}\ns_cmp_lt_u32 s66, 48\ns_cbranch_scc1 L_notw")
    lds_wait(L_FLAG+4, 1, "L_near", 4)
    a.label("L_near")
    a(f"""s_cmp_lg_u32 s3, 0
    s_cbranch_scc1 L_rolewait
    s_and_b32 s9, s2, 7
    s_mul_i32 s8, s9, {CNT_STRIDE}
    s_add_u32 s8, s8, {WS_CNT + 32*CNT_STRIDE}
    s_add_u32 s60, s40, s8
    s_addc_u32 s61, s41, 0""")
    lds_wait(L_FLAG+4, RTRIG, "L_roleget", 0)
    a.label("L_roleget")
    a(f"""s_mov_b32 s8, 1
    s_atomic_add s8, s[60:61], 0 glc
    s_waitcnt lgkmcnt(0)
    s_lshl_b32 s8, s8, 3
    s_add_u32 s8, s8, s9
    s_add_u32 s8, s8, 1
    v_mov_b32 v5, s8
    ds_write_b32 v4, v5 offset:{L_ROLE}
    s_branch L_rolegot""")
    a.label("L_rolewait")
    lds_wait(L_ROLE, 1, "L_rolegot", 0)
    a.label("L_rolegot")
    if STAMP: a("v_writelane_b32 v126, s8, 26")
    if MS:
        if STAMP: a("s_add_u32 s9, s8, 48\nv_writelane_b32 v126, s9, 26")
        a("s_sub_u32 s64, s8, 1\ns_cmp_ge_u32 s64, 160\ns_cbranch_scc1 L_end")
    else:
        a(f"""s_sub_u32 s66, s8, 1
        s_cmp_lt_u32 s66, 48
        s_cbranch_scc1 L_notw
        s_sub_u32 s64, s66, 48
        s_cmp_ge_u32 s64, 160
        s_cbranch_scc1 L_end""")
    BF = 64
    a(f"""s_mul_i32 s65, s64, 205
    s_lshr_b32 s65, s65, 11
    s_mul_i32 s8, s65, 10
    s_sub_u32 s64, s64, s8
    s_lshl_b32 s9, s65, 2
    s_add_u32 s9, s9, s3
    s_mul_i32 s8, s9, {96*1280}
    s_lshl_b32 s10, s64, 7
    s_add_u32 s8, s8, s10
    s_add_u32 s52, s24, s8
    s_addc_u32 s53, s25, 0
    s_sub_u32 s54, {6144*1280}, s8
    v_lshrrev_b32 v14, 3, v0
    v_mul_u32_u24 v14, 1280, v14
    v_and_b32 v16, 7, v0
    v_lshl_add_u32 v14, v16, 4, v14
    s_mul_i32 s11, s3, 12288""")
    if RTRIG >= TRIG:
        dma(12, 52, 14, 8*1280, L_W)
        stamp(24)
    a(f"""v_lshlrev_b32 v15, 7, v10
    v_lshl_add_u32 v15, v11, 3, v15
    v_add_u32 v15, s11, v15
    s_lshr_b32 s9, s9, 1
    s_lshl_b32 s9, s9, 13
    s_add_u32 s9, s9, {WS_G3}
    v_lshl_add_u32 v16, v16, 10, s9
    s_and_b32 s8, s3, 1
    s_mul_i32 s8, s8, 384
    s_add_u32 s9, s9, s8
    v_lshlrev_b32 v17, 11, v2
    v_lshl_add_u32 v17, v3, 3, v17
    v_add_u32 v17, s9, v17
    s_mul_i32 s8, s3, 384
    v_and_b32 v19, 1, v2
    v_lshl_add_u32 v18, v3, 1, v19
    v_lshl_add_u32 v18, v18, 1, s8
    v_lshrrev_b32 v19, 5, v0
    v_lshl_add_u32 v12, v19, 7, v18
    v_lshl_add_u32 v19, v2, 4, s8
    v_lshlrev_b32 v13, 2, v0
    s_lshl_b32 s8, s3, 8
    v_add_u32 v20, s8, v13
    s_mul_i32 s8, s65, 2560
    s_lshl_b32 s10, s64, 8
    s_add_u32 s8, s8, s10
    s_add_u32 s8, s8, {WS_G4}
    v_add_u32 v21, s8, v13
    s_mov_b32 s12, 0
    s_mov_b32 s13, -1
    s_setprio 2""")
    def g3_loads():
        for t in range(3):
            for b in range(2):
                r = 112 + 4*t + 2*b
                a(f"global_load_dwordx2 v[{r}:{r+1}], v17, s[40:41] offset:{1024*b+128*t} sc1")
    if RTRIG < TRIG:
        lds_wait(L_FLAG+4, TRIG, "L_wgo", 0)
        a.label("L_wgo")
        dma(12, 52, 14, 8*1280, L_W)
        stamp(24)
    lab = a.newlabel('ML'); a.label(lab)
    a("global_load_dwordx2 v[6:7], v16, s[40:41] offset:768 sc1")
    g3_loads()
    a("""s_waitcnt vmcnt(0)
    v_max_u32 v8, v6, v7
    v_cmp_eq_u32 vcc, -1, v8""")
    spin_tail(lab)
    stamp(25)
    for ks in range(3):
        for nt in range(4):
            for hf in range(2):
                r = BF + 16*ks + 4*nt + 2*hf
                a(f"ds_read_b64_tr_b16 v[{r}:{r+1}], v15 offset:{L_W + 4096*ks + 512*hf + 32*nt}")
    a("v_mov_b32 v8, v6")
    red8('v_max_f32', 8)
    a(f"""v_sub_f32 v6, v6, v8
    v_mul_f32 v6, s42, v6
    v_exp_f32 v6, v6
    v_mul_f32 v7, v7, v6""")
    red8('v_add_f32', 7)
    a("v_rcp_f32 v7, v7\nv_mul_f32 v6, v6, v7")
    for r in range(4):
        a(f"v_mov_b32_dpp v8, v6 row_newbcast:{2*r} row_mask:{hex(1<<r)} bank_mask:0xf")
        a(f"v_mov_b32_dpp v22, v6 row_newbcast:{2*r+1} row_mask:{hex(1<<r)} bank_mask:0xf")
    a("s_mov_b32 s70, 0\ns_waitcnt lgkmcnt(0)\ns_branch L_g3chk")
    lab = a.newlabel('G3'); a.label(lab)
    a("s_cmp_lg_u32 s70, 0\ns_cbranch_scc1 L_g3ld\ns_mov_b32 s70, 1")
    lds_wait(L_FLAG+8, NST+3, "L_g3ld", 1)
    a.label("L_g3ld")
    stamp(30)
    a("s_mov_b64 exec, s[68:69]")
    g3_loads()
    a("s_mov_b64 exec, -1")
    a.label("L_g3chk")
    a("s_waitcnt vmcnt(0)")
    for t in range(3):
        a(f"v_pk_mul_f32 v[{48+2*t}:{49+2*t}], v[{112+4*t}:{113+4*t}], v[8:9] op_sel_hi:[1,0]")
    for t in range(3):
        a(f"v_pk_fma_f32 v[{48+2*t}:{49+2*t}], v[{114+4*t}:{115+4*t}], v[22:23], v[{48+2*t}:{49+2*t}] op_sel_hi:[1,0,1]")
    a("v_pk_add_f32 v[56:57], v[48:49], v[50:51]\nv_pk_add_f32 v[56:57], v[56:57], v[52:53]")
    nan_retry([56, 57], list(range(112, 124)), lab, 60, True)
    stamp(13)
    a("""v_mov_b32 v54, v50
    v_mov_b32 v55, v51
    v_permlane32_swap_b32 v48, v52
    v_permlane32_swap_b32 v49, v53
    v_permlane32_swap_b32 v50, v54
    v_permlane32_swap_b32 v51, v55
    v_pk_add_f32 v[48:49], v[48:49], v[52:53]
    v_pk_add_f32 v[50:51], v[50:51], v[54:55]""")
    rs_step(4, [(48, 49), (50, 51)])
    a(f"""v_cvt_pk_bf16_f32 v48, v48, v48
    v_cvt_pk_bf16_f32 v50, v50, v50
    ds_write_b16 v12, v48 offset:{L_O}
    ds_write_b16 v18, v50 offset:{L_O + 64}""")
    for ks in range(3): a(f"ds_read_b128 v[{24+4*ks}:{27+4*ks}], v19 offset:{L_O + 64*ks}")
    for ks in range(3):
        a(f"s_waitcnt lgkmcnt({2-ks})")
        for nt in range(4):
            c = '0' if ks == 0 else f"v[{40+4*nt}:{43+4*nt}]"
            a(f"v_mfma_f32_16x16x32_bf16 v[{40+4*nt}:{43+4*nt}], v[{24+4*ks}:{27+4*ks}], v[{BF+16*ks+4*nt}:{BF+16*ks+4*nt+3}], {c}")
    a(f"""v_cndmask_b32 v56, v40, v44, s[14:15]
    v_cndmask_b32 v57, v48, v52, s[14:15]
    v_cndmask_b32 v56, v56, v57, s[12:13]
    ds_write_b32 v20, v56 offset:{L_WP}
    s_waitcnt lgkmcnt(0)
    s_barrier
    s_cmp_lg_u32 s3, 0
    s_cbranch_scc1 L_end
    ds_read2st64_b32 v[24:25], v13 offset0:{L_WP//256} offset1:{L_WP//256+1}
    ds_read2st64_b32 v[26:27], v13 offset0:{L_WP//256+2} offset1:{L_WP//256+3}
    s_waitcnt lgkmcnt(1)
    v_add_f32 v24, v24, v25
    s_waitcnt lgkmcnt(0)
    v_add_f32 v26, v26, v27
    v_add_f32 v24, v24, v26
    v_min_u32 v24, -2, v24
    global_store_dword v21, v24, s[40:41] sc1""")
    stamp(14)
    a("s_branch L_end")

    a.label("L_notw")
    if MS and STAMP: a("s_add_u32 s9, s66, 1\nv_writelane_b32 v126, s9, 26")

    B1, B2 = 48, 88
    a(f"""s_mul_i32 s9, s3, 320
    v_and_b32 v5, 1, v2
    v_lshl_add_u32 v5, v3, 1, v5
    v_lshrrev_b32 v6, 5, v0
    v_lshl_add_u32 v6, v6, 6, v5
    v_add_u32 v7, 128, v5
    s_mul_i32 s8, s3, 160
    v_lshl_add_u32 v17, v6, 1, s9
    v_lshl_add_u32 v18, v7, 1, s9
    v_add_u32 v6, s8, v6
    v_add_u32 v7, s8, v7
    v_lshlrev_b32 v19, 2, v6
    v_lshlrev_b32 v20, 2, v7
    v_lshlrev_b32 v8, 2, v0
    global_load_ushort v40, v17, s[16:17]
    global_load_ushort v41, v17, s[16:17] offset:64
    global_load_ushort v42, v18, s[16:17]""")
    for t in range(5): a(f"global_load_dword v{24+t}, v8, s[16:17] offset:{256*t}")
    a(f"""v_lshlrev_b32 v32, 3, v6
    v_lshlrev_b32 v33, 3, v7
    v_add_u32 v32, {WS_GR}, v32
    v_add_u32 v33, {WS_GR}, v33
    v_add_u32 v8, 5120, v32
    v_add_u32 v9, 5120, v33
    v_add_u32 v21, 10240, v32
    v_add_u32 v22, 10240, v33""")
    GRB = 88
    srcs = [(32, 0), (32, 256), (33, 0), (8, 0), (8, 256), (9, 0), (21, 0), (21, 256), (22, 0)]
    def gr_loads():
        for i, (v, o) in enumerate(srcs): a(f"global_load_dwordx2 v[{GRB+2*i}:{GRB+2*i+1}], v{v}, s[40:41] offset:{o} sc1")
    gr_loads()
    a(f"""s_mul_i32 s8, s3, {160*3072}
    s_lshl_b32 s10, s66, 6
    s_add_u32 s8, s8, s10
    s_add_u32 s52, s28, s8
    s_addc_u32 s53, s29, 0
    s_sub_u32 s54, {640*3072}, s8
    s_mul_i32 s11, s3, 10240
    s_mul_i32 s8, s66, {32*1280}
    s_add_u32 s8, s8, s11
    s_add_u32 s56, s30, s8
    s_addc_u32 s57, s31, 0
    s_mov_b32 s58, 10240
    s_mul_i32 s72, s3, 10496
    v_mov_b32 v31, 0x10000
    v_mul_u32_u24 v14, 3072, v12
    v_lshl_add_u32 v14, v11, 4, v14""")
    dma(10, 52, 14, 16*3072, L_W)
    for t in range(11):
        a(f"""v_add_u32 v5, {64*t}, v0
        v_mul_u32_u24 v6, 800, v5
        v_lshrrev_b32 v6, 16, v6
        v_mul_u32_u24 v7, 82, v6
        v_sub_u32 v7, v5, v7
        v_lshlrev_b32 v6, 5, v6
        v_lshlrev_b32 v5, 4, v5
        v_sub_u32 v5, v5, v6
        v_cmp_lt_u32 vcc, 79, v7
        v_cndmask_b32 v30, v5, v31, vcc""")
        if t == 10: a("s_mov_b64 exec, 0xffff")
        a(f"""s_add_u32 m0, s72, {L_W2 + 1024*t}
        buffer_load_dwordx4 v30, s[56:59], 0 offen {TLD} lds""")
    a("s_mov_b64 exec, -1")
    stamp(24)
    a(f"""v_lshlrev_b32 v15, 6, v10
    v_lshl_add_u32 v15, v11, 3, v15
    v_add_u32 v15, s11, v15
    v_mul_u32_u24 v16, 1312, v10
    v_lshl_add_u32 v16, v11, 3, v16
    v_add_u32 v16, s9, v16
    v_add_u32 v16, {L_W2}, v16
    s_waitcnt lgkmcnt(0)
    s_add_u32 s6, s6, {hex(TAGC)}
    s_waitcnt vmcnt(21)
    s_branch L_grchk""")
    lab = a.newlabel('GR'); a.label(lab)
    gr_loads()
    a("s_waitcnt vmcnt(0)")
    a.label("L_grchk")
    a(f"v_xor_b32 v5, s6, v{GRB+1}")
    for i in range(1, 9): a(f"v_bitop3_b32 v5, v5, v{GRB+2*i+1}, s6 bitop3:0xf6")
    a("v_cmp_ne_u32 vcc, 0, v5")
    spin_tail(lab, 4)
    for j in range(3):
        a(f"""v_lshlrev_b32 v{40+j}, 16, v{40+j}
        v_mov_b32 v{43+j}, v{GRB+2*j}
        v_mov_b32 v{120+j}, v{GRB+6+2*j}
        v_add_f32 v{123+j}, 1.0, v{GRB+12+2*j}""")
        rbf(123+j, 123+j)
    a("v_mov_b32 v46, 0")
    for t in range(5): a(f"v_lshlrev_b32 v5, 16, v{24+t}\nv_and_b32 v6, s7, v{24+t}\nv_add_f32 v46, v46, v5\nv_add_f32 v46, v46, v6")
    red16('v_add_f32', [46]); red_hi('v_add_f32', [46], [5])
    a(f"""v_mul_f32 v46, {hex(f2u(1/640))}, v46
    v_mul_u32_u24 v21, 10240, v2
    v_lshl_add_u32 v21, v3, 3, v21
    s_mul_i32 s8, s3, 640
    s_add_u32 s9, s8, {WS_G4}
    v_add_u32 v21, s9, v21
    s_mul_i32 s9, s66, 2560
    s_add_u32 s8, s8, s9
    s_add_u32 s8, s8, {WS_G5}
    v_lshl_add_u32 v22, v0, 2, s8
    s_mul_i32 s8, s3, 320
    v_lshl_add_u32 v23, v2, 4, s8
    s_lshl_b32 s8, s3, 7
    v_add_u32 v47, s8, v13
    s_lshl_b32 s8, s3, 3
    v_mov_b32 v9, s8
    s_lshl_b32 s8, s3, 6
    v_lshrrev_b32 v12, 1, v13
    v_add_u32 v12, s8, v12
    s_add_u32 s8, s8, {L_U}
    v_lshl_add_u32 v5, v2, 4, s8
    v_lshrrev_b32 v6, 2, v3
    v_mov_b32 v7, {L_ZERO}""")
    for g in range(4):
        a(f"v_cmp_eq_u32 vcc, {g}, v6\nv_cndmask_b32 v{[2,3,10,11][g]}, v7, v5, vcc")
    B2R = [B2 + 4*nt for nt in range(8)] + [24, 28]
    XR = [B2 + 2*i for i in range(16)] + [32, 34, 36, 38]
    raw = [r+k for r in XR for k in range(2)]
    lab = a.newlabel('G4')
    a("v_add_u32 v14, 5120, v21\ns_mov_b32 s73, 0\ns_setprio 2")
    for b in range(4):
        for t in range(5):
            r = XR[4*t+b]
            a(f"global_load_dwordx2 v[{r}:{r+1}], v{21 if b < 2 else 14}, s[40:41] offset:{2560*(b&1)+128*t} sc1")
    a("s_waitcnt vmcnt(0)")
    stamp(25)
    for ks in range(5):
        for nt in range(2):
            for hf in range(2):
                r = B1 + 8*ks + 4*nt + 2*hf
                a(f"ds_read_b64_tr_b16 v[{r}:{r+1}], v15 offset:{L_W + 2048*ks + 256*hf + 32*nt}")
    a("s_branch L_g4sum")
    again = a.newlabel('G4R'); a.label(again)
    for b in range(4):
        rr = [XR[4*t+b]+k for t in range(5) for k in range(2)]
        a(f"v_max3_u32 v{6+(b&1)}, v{rr[0]}, v{rr[1]}, v{rr[2]}")
        for i in range(3, 9, 2): a(f"v_max3_u32 v{6+(b&1)}, v{6+(b&1)}, v{rr[i]}, v{rr[i+1]}")
        a(f"v_max_u32 v{6+(b&1)}, v{6+(b&1)}, v{rr[9]}\nv_cmp_eq_u32 s[{84+2*b}:{85+2*b}], -1, v{6+(b&1)}")
    a(f"""s_or_b64 s[68:69], s[84:85], s[86:87]
    s_or_b64 s[70:71], s[88:89], s[90:91]
    s_or_b64 s[68:69], s[68:69], s[70:71]
    s_cbranch_scc0 L_g4nan
    s_add_u32 s67, s67, 1
    s_cmp_gt_u32 s67, {SPIN}
    s_cbranch_scc1 L_end
    s_cmp_lg_u32 s73, 0
    s_cbranch_scc1 {lab}
    s_mov_b32 s73, 1
    v_mov_b32 v6, 0""")
    lds_wait(L_FLAG+8, NST+3, lab, 1, vz=6, vd=7)
    a.label(lab)
    stamp(30)
    for b in range(4):
        a(f"s_mov_b64 exec, s[{84+2*b}:{85+2*b}]\ns_cbranch_execz L_g4s{b}")
        for t in range(5):
            r = XR[4*t+b]
            a(f"global_load_dwordx2 v[{r}:{r+1}], v{21 if b < 2 else 14}, s[40:41] offset:{2560*(b&1)+128*t} sc1")
        a.label(f"L_g4s{b}")
    a("s_mov_b64 exec, -1\ns_waitcnt vmcnt(0)")
    a.label("L_g4sum")
    YR = [24, 28, 26, 30, 4]
    for t in range(5): a(f"v_pk_add_f32 v[{YR[t]}:{YR[t]+1}], v[{XR[4*t]}:{XR[4*t]+1}], v[{XR[4*t+1]}:{XR[4*t+1]+1}]")
    for t in range(5): a(f"v_pk_add_f32 v[{YR[t]}:{YR[t]+1}], v[{YR[t]}:{YR[t]+1}], v[{XR[4*t+2]}:{XR[4*t+2]+1}]")
    for t in range(5): a(f"v_pk_add_f32 v[{YR[t]}:{YR[t]+1}], v[{YR[t]}:{YR[t]+1}], v[{XR[4*t+3]}:{XR[4*t+3]+1}]")
    a("""v_pk_add_f32 v[6:7], v[24:25], v[28:29]
    v_pk_add_f32 v[126:127], v[26:27], v[30:31]
    v_pk_add_f32 v[6:7], v[6:7], v[4:5]
    v_pk_add_f32 v[6:7], v[6:7], v[126:127]""".replace("v[126:127]", "v[44:45]" if False else "v[122:123]") if False else """v_pk_add_f32 v[6:7], v[24:25], v[28:29]
    v_pk_add_f32 v[6:7], v[6:7], v[26:27]
    v_pk_add_f32 v[6:7], v[6:7], v[30:31]
    v_pk_add_f32 v[6:7], v[6:7], v[4:5]""")
    a(f"v_cmp_u_f32 vcc, v6, v7\ns_cbranch_vccnz {again}")
    a.label("L_g4nan")
    stamp(15)
    a("v_mov_b32 v6, v4\nv_mov_b32 v7, v5")
    for x, y in ((24, 26), (28, 30), (4, 6)):
        a(f"v_permlane32_swap_b32 v{x}, v{y}\nv_permlane32_swap_b32 v{x+1}, v{y+1}")
    for x, y in ((24, 26), (28, 30), (4, 6)): a(f"v_pk_add_f32 v[{x}:{x+1}], v[{x}:{x+1}], v[{y}:{y+1}]")
    rs_step(4, [(24, 25), (28, 29), (4, 5)])
    C3 = [24, 28, 4]
    def rbf3():
        a("""v_cvt_pk_bf16_f32 v25, v24, v28
        v_cvt_pk_bf16_f32 v4, v4, v4
        v_lshlrev_b32 v24, 16, v25
        v_and_b32 v28, s7, v25
        v_and_b32 v4, s7, v4""")
    rbf3()
    for j, c in enumerate(C3): a(f"v_mul_f32 v{c}, v{43+j}, v{c}")
    rbf3()
    for j, c in enumerate(C3): a(f"v_add_f32 v{c}, v{40+j}, v{c}")
    rbf3()
    a(f"""v_sub_f32 v25, v24, v46
    v_sub_f32 v29, v28, v46
    v_sub_f32 v5, v4, v46
    v_mul_f32 v26, 0.5, v5
    v_add_f32 v30, v25, v29
    v_mul_f32 v31, v25, v25
    v_add_f32 v30, v30, v26
    v_fmac_f32 v31, v29, v29
    v_fmac_f32 v31, v26, v5""")
    red16('v_add_f32', [30, 31]); red_hi('v_add_f32', [30, 31], [6, 7])
    a(f"""ds_write_b64 v9, v[30:31] offset:{L_ST}
    ds_write_b32 v19, v24 offset:{L_X2}
    ds_write_b32 v19, v28 offset:{L_X2+128}
    ds_write_b32 v20, v4 offset:{L_X2}
    v_mov_b32 v8, 0
    s_waitcnt vmcnt(0) lgkmcnt(0)""")
    if MST: stamp(48)
    a(f"""
    s_barrier
    ds_read_b128 v[32:35], v8 offset:{L_ST}
    ds_read_b128 v[36:39], v8 offset:{L_ST+16}""")
    if MST: stamp(49)
    a(f"""""")
    a(f"""s_waitcnt lgkmcnt(0)
    v_pk_add_f32 v[32:33], v[32:33], v[34:35]
    v_pk_add_f32 v[36:37], v[36:37], v[38:39]
    v_pk_add_f32 v[32:33], v[32:33], v[36:37]
    v_mul_f32 v32, {hex(f2u(1/640))}, v32
    v_mul_f32 v33, {hex(f2u(1/640))}, v33
    v_fma_f32 v33, -v32, v32, v33
    v_add_f32 v32, v32, v46
    v_max_f32 v33, 0, v33""")
    a(f"""v_cvt_pk_bf16_f32 v34, v32, v33
    v_and_b32 v33, s7, v34
    v_lshlrev_b32 v32, 16, v34
    v_add_f32 v33, {hex(f2u(1e-5))}, v33""")
    for c in C3: a(f"v_sub_f32 v{c}, v{c}, v32")
    rbf(33, 33)
    a("v_sqrt_f32 v33, v33")
    rbf3()
    rbf(33, 33)
    a("v_rcp_f32 v33, v33")
    for c in C3: a(f"v_mul_f32 v{c}, v{c}, v33")
    rbf3()
    for j, c in enumerate(C3): a(f"v_mul_f32 v{c}, v{c}, v{123+j}")
    rbf3()
    for j, c in enumerate(C3): a(f"v_add_f32 v{c}, v{c}, v{120+j}")
    for c in C3: a(f"v_cvt_pk_bf16_f32 v{c}, v{c}, v{c}")
    a(f"""ds_write_b16 v17, v24 offset:{L_O}
    ds_write_b16 v17, v28 offset:{L_O+64}
    ds_write_b16 v18, v4 offset:{L_O}""")
    if MST: stamp(50)
    a(f"""""")
    A1 = [24, 28, 32, 36, 40]
    for ks in range(5): a(f"ds_read_b128 v[{A1[ks]}:{A1[ks]+3}], v23 offset:{L_O + 64*ks}")
    D1 = [4, 120]
    trs = [(nt, hf) for nt in range(10) for hf in range(2)]
    ntr = 0
    for ks in range(5):
        a(f"s_waitcnt lgkmcnt({min(15, 4-ks+ntr)})")
        for nt in range(2):
            c = '0' if ks == 0 else f"v[{D1[nt]}:{D1[nt]+3}]"
            a(f"v_mfma_f32_16x16x32_bf16 v[{D1[nt]}:{D1[nt]+3}], v[{A1[ks]}:{A1[ks]+3}], v[{B1+8*ks+4*nt}:{B1+8*ks+4*nt+3}], {c}")
            for _ in range(2):
                n2, hf = trs[ntr]; ntr += 1
                a(f"ds_read_b64_tr_b16 v[{B2R[n2]+2*hf}:{B2R[n2]+2*hf+1}], v16 offset:{5248*hf + 32*n2}")
    a(f"""v_cndmask_b32 v8, v4, v120, s[14:15]
    ds_write_b32 v47, v8 offset:{L_WP}
    s_waitcnt lgkmcnt(0)""")
    if MST: stamp(51)
    a(f"""
    s_barrier
    ds_read_b32 v32, v13 offset:{L_WP}
    ds_read_b32 v33, v13 offset:{L_WP+128}
    ds_read_b32 v34, v13 offset:{L_WP+256}
    ds_read_b32 v35, v13 offset:{L_WP+384}""")
    if MST: stamp(52)
    a(f"""
    s_waitcnt lgkmcnt(2)
    v_add_f32 v32, v32, v33
    s_waitcnt lgkmcnt(0)
    v_add_f32 v34, v34, v35
    v_add_f32 v32, v32, v34""")
    rbf(32, 32)
    a(f"""v_mul_f32 v33, s42, v32
    v_exp_f32 v33, -v33
    v_add_f32 v33, 1.0, v33
    v_rcp_f32 v33, v33
    v_mul_f32 v32, v32, v33
    v_cvt_pk_bf16_f32 v32, v32, v32
    ds_write_b16 v12, v32 offset:{L_U}""")
    if MST: stamp(53)
    a(f"""""")
    A2 = [48, 52, 56, 60]
    for g in range(4): a(f"ds_read_b128 v[{A2[g]}:{A2[g]+3}], v{[2,3,10,11][g]}")
    D2 = [64, 68, 72]
    for g in range(4):
        a(f"s_waitcnt lgkmcnt({3-g})")
        for j in range(3):
            nt = 4*j + g
            if nt >= 10: continue
            c = '0' if g == 0 else f"v[{D2[j]}:{D2[j]+3}]"
            a(f"v_mfma_f32_16x16x32_bf16 v[{D2[j]}:{D2[j]+3}], v[{A2[g]}:{A2[g]+3}], v[{B2R[nt]}:{B2R[nt]+3}], {c}")
    a(f"""v_min_u32 v76, -2, v72
    s_mov_b32 exec_hi, 0
    global_store_dword v22, v76, s[40:41] offset:512 sc1
    s_mov_b64 exec, -1
    v_min_u32 v77, -2, v64
    v_min_u32 v78, -2, v68
    global_store_dword v22, v77, s[40:41] sc1
    global_store_dword v22, v78, s[40:41] offset:256 sc1""")
    stamp(16)
    a("s_branch L_end")

    a.label("L_fwave")
    if MS: a(f"s_sub_u32 s8, s2, {MB-1}")
    else:
        lds_wait(L_ROLE, 1, "L_frole", 4, vz=52)
        a.label("L_frole")
    a(f"""s_sub_u32 s66, s8, 1
    s_cmp_ge_u32 s66, 40
    s_cbranch_scc1 L_end
    v_and_b32 v4, 3, v0
    v_lshrrev_b32 v5, 4, v0
    v_lshl_add_u32 v6, v4, 2, v5
    s_lshl_b32 s8, s66, 4
    v_add_u32 v6, s8, v6
    v_lshlrev_b32 v7, 3, v6
    v_add_u32 v7, {WS_GR + 1920*8}, v7
    s_waitcnt lgkmcnt(0)
    s_add_u32 s6, s6, {hex(TAGC)}""")
    if MS:
        lds_wait(L_KF+4, 140, "L_fmid", 16, vz=52)
        a.label("L_fmid")
    lab = a.newlabel('GF'); a.label(lab)
    a(f"""global_load_dwordx2 v[50:51], v7, s[40:41] sc1
    s_waitcnt vmcnt(0)
    v_cmp_ne_u32 vcc, s6, v51""")
    spin_tail(lab, 32 if MS else 4)
    a(f"""v_lshlrev_b32 v8, 2, v6
    v_lshrrev_b32 v7, 2, v0
    v_mul_u32_u24 v7, 2560, v7
    v_lshl_add_u32 v7, v4, 4, v7
    s_lshl_b32 s8, s66, 6
    s_add_u32 s8, s8, {WS_G5}
    v_add_u32 v7, s8, v7
    v_add_u32 v52, {16*2560}, v7
    v_add_u32 v53, {32*2560}, v7
    v_lshlrev_b32 v6, 1, v6
    v_mov_b32 v4, {WS_EPOCH}
    v_mov_b32 v5, s6""")
    for r in range(24, 36): a(f"v_mov_b32 v{r}, -1")
    a(f"""s_barrier
    ds_read_b32 v48, v8 offset:{L_X2}
    s_waitcnt lgkmcnt(0)
    s_barrier""")
    a("s_mov_b64 s[68:69], -1")
    lab = a.newlabel('G5'); a.label(lab)
    stamp(30)
    a(f"""s_mov_b64 exec, s[68:69]
    global_load_dwordx4 v[24:27], v7, s[40:41] sc1
    global_load_dwordx4 v[28:31], v52, s[40:41] sc1
    global_load_dwordx4 v[32:35], v53, s[40:41] sc1
    s_mov_b64 exec, -1
    s_waitcnt vmcnt({3*(PDF-1)})
    v_pk_add_f32 v[36:37], v[24:25], v[28:29]
    v_pk_add_f32 v[38:39], v[26:27], v[30:31]
    v_pk_add_f32 v[36:37], v[36:37], v[32:33]
    v_pk_add_f32 v[38:39], v[38:39], v[34:35]
    v_pk_add_f32 v[42:43], v[36:37], v[38:39]""")
    nan_retry([42, 43], list(range(24, 36)), lab, 40, True)
    stamp(17)
    rs_step(5, [(36, 38), (37, 39)])
    rs_step(4, [(36, 37)])
    dpp('v_add_f32', 36, 36, 36, 'row_ror:8'); dpp('v_add_f32', 36, 36, 36, 'row_ror:4')
    rbf(36, 36)
    a("v_mul_f32 v36, v50, v36"); rbf(36, 36)
    a(f"""v_add_f32 v36, v48, v36
    v_cvt_pk_bf16_f32 v36, v36, v36
    s_mov_b32 exec_lo, 0x000f000f
    s_mov_b32 exec_hi, 0x000f000f
    global_store_short v6, v36, s[36:37] {P.get('ost', '')}
    s_cmp_lg_u32 s66, 0
    s_cbranch_scc1 L_fend
    s_mov_b64 exec, 1
    global_store_dword v4, v5, s[40:41] sc1""")
    if P.get('dbgt'):
        a("""s_memrealtime s[92:93]
        s_waitcnt lgkmcnt(0)
        s_sub_u32 s92, s92, s98
        v_mov_b32 v4, 0
        v_mov_b32 v8, s92
        v_mov_b32 v9, s2
        global_store_dwordx2 v4, v[8:9], s[38:39]""")
    a.label("L_fend")
    a("s_mov_b64 exec, -1")
    stamp(18)
    a.label("L_end")
    if STAMP:
        a(f"""s_mov_b64 exec, -1
        v_writelane_b32 v126, s67, 27
        v_writelane_b32 v126, s63, 28
        v_writelane_b32 v126, s95, 29
        s_lshl_b32 s8, s2, 4
        s_add_u32 s8, s8, s3
        s_lshl_b32 s8, s8, 8
        s_add_u32 s8, s8, {WS_ST}
        v_lshl_add_u32 v4, v0, 2, s8
        global_store_dword v4, v126, s[40:41]""")
    a.label("L_exit")
    a("s_endpgm")

    body = a.text()
    out = HEADER
    out += DOC
    out += f"; @launch grid=(256,1,1) block=(1024,1,1) lds={LDS_BYTES}\n"
    out += '.amdgcn_target "amdgcn-amd-amdhsa--gfx950"\n.text\n'
    out += f".globl {KN}\n.p2align 8\n.type {KN},@function\n{KN}:\n" + body
    out += f""".section .rodata,"a"
.p2align 6
.amdhsa_kernel {KN}
  .amdhsa_next_free_vgpr 128
  .amdhsa_next_free_sgpr 102
  .amdhsa_accum_offset 128
  .amdhsa_group_segment_fixed_size 0
  .amdhsa_kernarg_size 104
  .amdhsa_user_sgpr_count 2
  .amdhsa_user_sgpr_kernarg_segment_ptr 1
  .amdhsa_system_sgpr_workgroup_id_x 1
  .amdhsa_float_denorm_mode_32 3
.end_amdhsa_kernel
"""
    return out

if __name__ == '__main__':
    import json
    P = json.loads(sys.argv[2]) if len(sys.argv) > 2 else {}
    open(sys.argv[1], 'w').write(gen(P))
```
